```python
import torch

def _softmax(x, axis=-1):
    return torch.softmax(x, dim=axis)

def _gelu(x):
    return torch.nn.functional.gelu(x, approximate='tanh')

def _silu(x):
    return torch.nn.functional.silu(x)

def _sigmoid(x):
    return torch.sigmoid(x)

def _layernorm(x, axis=-1, eps=1e-05):
    m = x.mean(dim=axis, keepdim=True)
    v = x.var(dim=axis, keepdim=True, unbiased=False)
    return (x - m) / torch.sqrt(v + eps)

def _scatter_add(tgt, idx, src, axis=0):
    return tgt.clone().index_add_(axis, idx, src)

def _segment_sum(src, seg, n):
    out = torch.zeros((n,) + src.shape[1:], dtype=src.dtype)
    return out.index_add_(0, seg, src)

def _pad(x, pw):
    flat = tuple((v for pair in reversed(pw) for v in pair))
    return torch.nn.functional.pad(x, flat)
kernel_name = 'recurrent_scan__memory_aug_recurrent_mem_tr__mixer_token_mlp__prompt'

def setup_inputs():

    _w = lambda a: (lambda t: t.to(torch.bfloat16) if t.is_floating_point() else t)(torch.as_tensor(a))

    def _A_setup():
        B, S, Dm = (1, 2048, 1024)
        H, Dh = (32, 128)
        M, seg = (8, 32)
        seg = min(seg, S)
        S = S // seg * seg
        return {'x': _w((lambda *s: torch.randn(*s, dtype=torch.bfloat16) * 0.05)(B, S, Dm)), 'mem0': _w((lambda *s: torch.randn(*s, dtype=torch.bfloat16) * 0.8)(B, M, Dm)), 'Wq': _w((lambda *s: torch.randn(*s, dtype=torch.bfloat16) * 1.6)(Dm, H, Dh) * Dm ** (-0.5)), 'Wk': _w((lambda *s: torch.randn(*s, dtype=torch.bfloat16) * 1.6)(Dm, H, Dh) * Dm ** (-0.5)), 'Wv': _w((lambda *s: torch.randn(*s, dtype=torch.bfloat16) * 0.8)(Dm, H, Dh) * Dm ** (-0.5)), 'Wo': _w((lambda *s: torch.randn(*s, dtype=torch.bfloat16) * 0.8)(H, Dh, Dm) * (H * Dh) ** (-0.5)), 'seg_len': seg}
    _A_in = _A_setup()

    def _B_setup():
        B, S, D, F = (1, 2048, 1024, 3584)
        return {'x': _w((lambda *s: torch.randn(*s, dtype=torch.bfloat16) * 0.05)(B, S, D)), 'w1': _w((lambda *s: torch.randn(*s, dtype=torch.bfloat16) * 0.8)(S, F) * S ** (-0.5)), 'b1': _w((lambda *s: torch.randn(*s, dtype=torch.bfloat16) * 12.8)(F) * 0.02), 'w2': _w((lambda *s: torch.randn(*s, dtype=torch.bfloat16) * 0.2)(F, S) * F ** (-0.5)), 'b2': _w((lambda *s: torch.randn(*s, dtype=torch.bfloat16) * 1.6)(S) * 0.02)}
    _B_in = _B_setup()
    return {'A_x': _A_in['x'], 'A_mem0': _A_in['mem0'], 'A_Wq': _A_in['Wq'], 'A_Wk': _A_in['Wk'], 'A_Wv': _A_in['Wv'], 'A_Wo': _A_in['Wo'], 'A_seg_len': _A_in['seg_len'], 'B_x': _B_in['x'], 'B_w1': _B_in['w1'], 'B_b1': _B_in['b1'], 'B_w2': _B_in['w2'], 'B_b2': _B_in['b2']}

def reference(A_x, A_mem0, A_Wq, A_Wk, A_Wv, A_Wo, A_seg_len, B_x, B_w1, B_b1, B_w2, B_b2):

    def _A_ref(x, mem0, Wq, Wk, Wv, Wo, seg_len):
        B, S, Dm = x.shape
        H, Dh = (Wq.shape[1], Wq.shape[2])
        M = mem0.shape[1]
        scale = Dh ** (-0.5)
        n_seg = S // seg_len
        L = M + seg_len
        idx = torch.arange(L)
        mask = (idx[:, None] < M) | (idx[:, None] >= idx[None, :])
        mem = mem0
        outs = []
        for s in range(n_seg):
            xs = x[:, s * seg_len:(s + 1) * seg_len, :].clone()
            h = torch.concatenate([mem, xs], axis=1)
            q = torch.einsum('btd,dhe->bhte', h, Wq)
            k = torch.einsum('btd,dhe->bhte', h, Wk)
            v = torch.einsum('btd,dhe->bhte', h, Wv)
            scores = torch.einsum('bhqe,bhke->bhqk', q, k) * scale
            scores = torch.where(mask[None, None], scores, -1000000000.0)
            p = _softmax(scores, axis=-1)
            o = torch.einsum('bhqk,bhke->bhqe', p, v)
            o = torch.einsum('bhte,hed->btd', o, Wo)
            mem = o[:, :M, :].clone()
            outs.append(o[:, M:, :])
        return torch.concatenate(outs, axis=1)

    def _B_ref(x, w1, b1, w2, b2):
        B, S, D = x.shape
        h = _layernorm(x, axis=-1)
        u = torch.einsum('bsd,sf->bdf', h, w1) + b1
        u = _gelu(u)
        y = torch.einsum('bdf,fs->bds', u, w2) + b2
        return (lambda x, *d: x.permute(*d))(y, 0, 2, 1)
    x = A_x
    xn = _layernorm(x, axis=-1)
    s = _A_ref(xn, A_mem0, A_Wq, A_Wk, A_Wv, A_Wo, A_seg_len)
    g = _silu(_B_ref(xn, B_w1, B_b1, B_w2, B_b2))
    return x + s * g
```

```python
import re

def v(n, c=1):  return f"v{n}" if c == 1 else f"v[{n}:{n+c-1}]"
def a(n, c=1):  return f"a{n}" if c == 1 else f"a[{n}:{n+c-1}]"
def s(n, c=1):  return f"s{n}" if c == 1 else f"s[{n}:{n+c-1}]"

_REG = re.compile(r'^(-|abs\(|\|)?([vas])(\d+)\)?\|?$')
_RNG = re.compile(r'^(-)?([vas])\[(\d+):(\d+)\]$')

def regs_of(tok):
    tok = tok.strip()
    if tok.startswith('-'): tok = tok[1:]
    if tok.startswith('abs(') and tok.endswith(')'): tok = tok[4:-1]
    if tok.startswith('|') and tok.endswith('|'): tok = tok[1:-1]
    m = re.match(r'^([vas])(\d+)$', tok)
    if m: return {(m.group(1), int(m.group(2)))}
    m = re.match(r'^([vas])\[(\d+):(\d+)\]$', tok)
    if m: return {(m.group(1), i) for i in range(int(m.group(2)), int(m.group(3)) + 1)}
    if tok == 'vcc': return {('s', 'vcc_lo'), ('s', 'vcc_hi')}
    if tok in ('vcc_lo', 'vcc_hi'): return {('s', tok)}
    if tok == 'exec': return {('s', 'exec_lo'), ('s', 'exec_hi')}
    if tok in ('exec_lo', 'exec_hi'): return {('s', tok)}
    if tok == 'm0': return {('s', 'm0')}
    return set()

def split_ops(rest):
    ops, depth, cur = [], 0, ''
    for ch in rest:
        if ch in '[(': depth += 1
        if ch in '])': depth -= 1
        if ch == ',' and depth == 0:
            ops.append(cur.strip()); cur = ''
        else: cur += ch
    if cur.strip(): ops.append(cur.strip())
    return ops

TRANS = ('v_exp_f32', 'v_log_f32', 'v_rcp_f32', 'v_rsq_f32', 'v_sqrt_f32', 'v_sin_f32', 'v_cos_f32', 'v_rcp_iflag_f32')

def mfma_passes(op):
    if '32x32x16' in op or '32x32x8' in op: return 8
    if 'smfmac' in op:
        if '16x16x64' in op: return 4
        if '32x32x32' in op: return 8
    if '16x16x32' in op or '16x16x16' in op: return 4
    if '4x4x4' in op: return 2
    raise ValueError('unknown mfma ' + op)

class Insn:
    __slots__ = ('text', 'op', 'ops', 'mods', 'defs', 'uses', 'cls', 'srcC', 'srcAB', 'passes', 'dpp', 'nopn', 'target', 'store_data')
    def __init__(self, text):
        self.text = text
        t = text.split(';')[0].strip()
        parts = t.split(None, 1)
        self.op = parts[0]
        rest = parts[1] if len(parts) > 1 else ''
        ops = split_ops(rest)
        mods = ''
        if ops:
            last = ops[-1].split()
            if len(last) > 1:
                ops[-1] = last[0]; mods = ' '.join(last[1:])
        self.ops, self.mods = ops, mods
        self.dpp = any(k in rest for k in ('quad_perm', 'row_shr', 'row_shl', 'row_ror', 'row_bcast', 'row_mirror', 'row_half_mirror', 'wave_', 'row_newbcast'))
        self.srcC = set(); self.srcAB = set(); self.passes = 0; self.nopn = 1; self.target = None; self.store_data = set()
        op = self.op
        R = lambda i: regs_of(ops[i]) if i < len(ops) else set()
        allr = lambda lo: set().union(*[regs_of(o) for o in ops[lo:]]) if len(ops) > lo else set()
        d, u = set(), set()
        if op.startswith('v_mfma') or op.startswith('v_smfmac'):
            self.cls = 'mfma'; self.passes = mfma_passes(op)
            d = R(0); self.srcAB = R(1) | R(2)
            if op.startswith('v_smfmac'):
                self.srcC = R(0); self.srcAB |= R(3)
            else:
                self.srcC = R(3)
            u = self.srcAB | self.srcC
        elif op.startswith('v_cmp'):
            self.cls = 'valu'; d = R(0); u = allr(1)
            if op.startswith('v_cmpx'): d |= regs_of('exec')
        elif op in ('v_readfirstlane_b32', 'v_readlane_b32'):
            self.cls = 'valu'; d = R(0); u = allr(1)
        elif op.startswith('v_permlane') and 'swap' in op:
            self.cls = 'valu'; d = R(0) | R(1); u = R(0) | R(1)
        elif op.startswith('v_'):
            self.cls = 'trans' if op.replace('_e32', '').replace('_e64', '') in TRANS else 'valu'
            d = R(0)
            if re.match(r'v_(add|sub|subrev|addc|subb|subbrev)_co_', op) or op.startswith('v_div_scale') or op.startswith('v_mad_u64'):
                d |= R(1); u = allr(2)
            else:
                u = allr(1)
            if re.match(r'v_(fmac|mac|pk_fmac|dot2c|writelane|accvgpr_mov)', op) or self.dpp or 'v_bfi' == op:
                u |= R(0)
            if 'op_sel' in mods or 'dst_sel' in mods: u |= R(0)
        elif op.startswith('ds_'):
            self.cls = 'ds'
            if op.startswith('ds_read') or op.startswith('ds_bpermute') or op.startswith('ds_permute') or op.startswith('ds_swizzle'):
                d = R(0); u = allr(1)
            elif '_rtn' in op:
                d = R(0); u = allr(1)
            else:
                u = allr(0)
        elif op.startswith('global_') or op.startswith('buffer_') or op.startswith('flat_'):
            self.cls = 'vmem'
            if op.startswith('buffer_inv') or op.startswith('buffer_wbl2'):
                pass
            elif 'load_lds' in op or (op.startswith('buffer_load') and re.search(r'\blds\b', mods)):
                u = allr(0) | regs_of('m0')
            elif '_load' in op:
                d = R(0); u = allr(1)
            elif '_store' in op:
                u = allr(0)
                if 'x3' in op or 'x4' in op:
                    self.store_data = R(1) if op.startswith('global') or op.startswith('flat') else R(0)
            elif 'atomic' in op:
                if re.search(r'\bsc0\b', mods):
                    if op.startswith('global'): d = R(0); u = allr(1)
                    else: d = R(0); u = allr(0)
                else: u = allr(0)
        elif op.startswith('s_'):
            self.cls = 'salu'
            if op == 's_nop':
                self.nopn = int(ops[0], 0) + 1
            elif op.startswith('s_cbranch') or op == 's_branch':
                self.target = ops[0]
                if 'vcc' in op: u = regs_of('vcc')
                if 'exec' in op: u = regs_of('exec')
            elif op.startswith('s_cmp') or op.startswith('s_bitcmp') or op in ('s_waitcnt', 's_barrier', 's_endpgm', 's_sleep', 's_setprio', 's_setreg_b32', 's_setreg_imm32_b32'):
                u = allr(0)
            elif op.startswith('s_setpc'):
                u = allr(0)
            elif op.startswith('s_load') or op.startswith('s_buffer_load') or op in ('s_memtime', 's_memrealtime'):
                self.cls = 'smem'; d = R(0); u = allr(1)
            else:
                d = R(0); u = allr(1)
                if 'saveexec' in op: d |= regs_of('exec'); u |= regs_of('exec')
        else:
            raise ValueError('unknown op: ' + text)
        self.defs, self.uses = d, u

def isv(rs): return {r for r in rs if r[0] in 'va'}
def iss(rs): return {r for r in rs if r[0] == 's'}

def required(p, c):
    n = 0
    pv = p.cls in ('valu', 'trans')
    cv = c.cls in ('valu', 'trans')
    if pv:
        sd = iss(p.defs)
        if sd:
            if c.cls == 'vmem' and (sd & c.uses): n = max(n, 5)
            if cv and (sd & c.uses):
                n = max(n, 4 if c.op in ('v_readlane_b32', 'v_writelane_b32') else 2)
            if c.cls == 'mfma' and (sd & regs_of('exec')): n = max(n, 4)
            if cv and c.dpp and (sd & regs_of('exec')): n = max(n, 5)
        vd = isv(p.defs)
        if vd:
            if c.op in ('v_readlane_b32', 'v_readfirstlane_b32') and (vd & c.uses): n = max(n, 1)
            if cv and c.dpp and (vd & c.uses): n = max(n, 2)
            if c.op.startswith('v_permlane') and (vd & c.uses): n = max(n, 2)
            if c.cls == 'mfma' and (vd & c.uses): n = max(n, 2)
            if p.cls == 'trans' and cv and (vd & c.uses): n = max(n, 1)
            if ('op_sel' in p.mods or 'dst_sel' in p.mods or 'cvt_pk_fp8' in p.op) and cv and (vd & (c.uses | c.defs)): n = max(n, 1)
    if p.cls == 'salu' and ('s', 'm0') in p.defs and c.cls == 'vmem' and ('s', 'm0') in c.uses: n = max(n, 1)
    if p.store_data and (p.store_data & c.defs):
        n = max(n, 2 if cv else 1)
    if p.cls == 'mfma':
        P = p.passes
        if c.cls == 'mfma':
            if p.defs & c.srcAB: n = max(n, {2: 5, 4: 8, 8: 12, 16: 20}[P])
            ov = p.defs & c.srcC
            if ov:
                if p.defs == c.srcC and p.op == c.op: n = max(n, 2 if P == 2 else 0)
                else: n = max(n, {2: 4, 4: 6, 8: 10, 16: 18}[P])
            elif p.defs & c.defs:
                n = max(n, {2: 4, 4: 6, 8: 10, 16: 18}[P])
        else:
            if (p.defs & (c.uses | c.defs)) and c.cls in ('valu', 'trans', 'vmem', 'ds'):
                n = max(n, {2: 5, 4: 8, 8: 12, 16: 20}[P])
            if cv and (p.srcC & c.defs): n = max(n, {2: 1, 4: 3, 8: 7, 16: 15}[P])
    return n

class Asm:
    def __init__(self, prefix=''):
        self.items = []
        self.uid = 0
        self.prefix = prefix
    def __call__(self, text):
        for line in text.split('\n'):
            line = line.strip()
            if not line: continue
            if line.startswith(';'): self.items.append(('d', '    ' + line)); continue
            if line.endswith(':') and ' ' not in line: self.items.append(('l', line[:-1])); continue
            if line.startswith('.'): self.items.append(('d', line)); continue
            self.items.append(('i', Insn(line)))
    def label(self, name): self.items.append(('l', name))
    def raw(self, text): self.items.append(('d', text))
    def newlabel(self, base):
        self.uid += 1
        return f"{self.prefix}{base}_{self.uid}"

    def fix_hazards(self, maxd=22):
        items = self.items
        brs = {}
        for i, it in enumerate(items):
            if it[0] == 'i' and it[1].target: brs.setdefault(it[1].target, []).append(i)
        out, outpos = [], {}
        total = 0
        def scan(lst, start, dist, c, cur, seen):
            need = 0
            j = start
            while j >= 0:
                k, x = lst[j]
                if k == 'l':
                    for b in brs.get(x, []):
                        if seen.get(b, 99) <= dist: continue
                        seen[b] = dist
                        p = items[b][1]
                        need = max(need, required(p, c) - dist)
                        nd = dist + p.nopn
                        if nd < maxd:
                            if b < cur: need = max(need, scan(out, outpos[b] - 1, nd, c, cur, seen))
                            else: need = max(need, scan(items, b - 1, nd, c, cur, seen))
                elif k == 'i':
                    if x.op in ('s_branch', 's_endpgm') or x.op.startswith('s_setpc'): break
                    need = max(need, required(x, c) - dist)
                    dist += x.nopn
                    if dist >= maxd: break
                j -= 1
            return need
        for i, it in enumerate(items):
            if it[0] == 'i':
                need = scan(out, len(out) - 1, 0, it[1], i, {})
                total += max(need, 0)
                while need > 0:
                    k = min(need, 16)
                    out.append(('i', Insn(f's_nop {k-1}  ; hz')))
                    need -= k
                outpos[i] = len(out)
            out.append(it)
        self.items = out
        return total

    def text(self):
        out = []
        for k, x in self.items:
            if k == 'i': out.append('    ' + x.text)
            elif k == 'l': out.append(x + ':')
            else: out.append(x)
        return '\n'.join(out) + '\n'

    def count(self):
        return sum(1 for k, _ in self.items if k == 'i')
```

```python
from asmlib import *
from layout import *
from gemm import f2u
import math

def att_one(A, SSEG, SH, SWS, t0=40, flags_ld='', flags_st=''):
    P_Q, P_K, P_V, P_KM, P_VM, P_O = t0, t0+2, t0+4, t0+6, t0+8, t0+10
    T0, T1, SC = t0+12, t0+13, t0+14
    HI, = (t0+16,)
    L, N, G, T = 1, 2, 3, 4
    VQ, VV, VKM, VVM, VO = 10, 12, 14, 15, 16
    QF, KF, KMF, VF, VMF, S, P, O, X = 20, 52, 84, 100, 132, 148, 168, 180, 188
    A(f'v_and_b32 {v(L)}, 63, v0'); A(f'v_and_b32 {v(N)}, 15, {v(L)}'); A(f'v_lshrrev_b32 {v(G)}, 4, {v(L)}')
    def ptr(dst, base, expr_s):
        A(f's_add_u32 {s(T1)}, {expr_s}, {base}')
        A(f's_add_u32 {s(dst)}, {s(SWS)}, {s(T1)}'); A(f's_addc_u32 {s(dst+1)}, {s(SWS+1)}, 0')
    A(f's_lshl_b32 {s(T0)}, {s(SSEG)}, 18'); A(f's_lshl_b32 {s(T1)}, {s(SH)}, 8'); A(f's_add_u32 {s(T0)}, {s(T0)}, {s(T1)}')
    ptr(P_Q, QB, s(T0)); ptr(P_K, KB, s(T0)); ptr(P_O, OB, s(T0))
    A(f's_lshl_b32 {s(T0)}, {s(SH)}, 19'); A(f's_lshl_b32 {s(T1)}, {s(SSEG)}, 6'); A(f's_add_u32 {s(T0)}, {s(T0)}, {s(T1)}')
    ptr(P_V, VT, s(T0))
    A(f's_lshl_b32 {s(T0)}, {s(SSEG)}, 16'); A(f's_lshl_b32 {s(T1)}, {s(SH)}, 11'); A(f's_add_u32 {s(T0)}, {s(T0)}, {s(T1)}')
    ptr(P_KM, KM, s(T0)); ptr(P_VM, VM, s(T0))
    A(f's_mov_b32 {s(SC)}, 0x{f2u(128 ** -0.5 * math.log2(math.e)):08x}')
    A(f's_mov_b32 {s(HI)}, 0'); A(f's_mov_b32 {s(HI+1)}, -1')
    A(f'v_lshlrev_b32 {v(VQ)}, 13, {v(N)}'); A(f'v_lshl_add_u32 {v(VQ)}, {v(G)}, 4, {v(VQ)}')
    A(f'v_add_u32 {v(VQ+1)}, 0x20000, {v(VQ)}')
    A(f'v_lshlrev_b32 {v(VV)}, 12, {v(N)}'); A(f'v_lshl_add_u32 {v(VV)}, {v(G)}, 3, {v(VV)}')
    A(f'v_and_b32 {v(T)}, 7, {v(L)}'); A(f'v_lshlrev_b32 {v(T)}, 4, {v(T)}'); A(f'v_lshl_add_u32 {v(VKM)}, {v(G)}, 7, {v(T)}')
    A(f'v_and_b32 {v(T)}, 31, {v(L)}'); A(f'v_lshlrev_b32 {v(VVM)}, 3, {v(T)}')
    A(f'v_lshlrev_b32 {v(VO)}, 13, {v(N)}'); A(f'v_lshl_add_u32 {v(VO)}, {v(G)}, 3, {v(VO)}')
    A(f'v_add_u32 {v(VO+1)}, 0x20000, {v(VO)}')
    for t in range(2):
        for c in range(4):
            A(f'global_load_dwordx4 {v(QF+16*t+4*c,4)}, {v(VQ+t)}, {s(P_Q,2)} offset:{64*c}{flags_ld}')
            A(f'global_load_dwordx4 {v(KF+16*t+4*c,4)}, {v(VQ+t)}, {s(P_K,2)} offset:{64*c}{flags_ld}')
    for c in range(4): A(f'global_load_dwordx4 {v(KMF+4*c,4)}, {v(VKM)}, {s(P_KM,2)} offset:{512*c}{flags_ld}')
    for et in range(8):
        A(f'v_add_u32 {v(T)}, {et*65536}, {v(VV)}')
        A(f'global_load_dwordx2 {v(VF+4*et,2)}, {v(T)}, {s(P_V,2)}{flags_ld}')
        A(f'global_load_dwordx2 {v(VF+4*et+2,2)}, {v(T)}, {s(P_V,2)} offset:32{flags_ld}')
        A(f'global_load_dwordx2 {v(VMF+2*et,2)}, {v(VVM)}, {s(P_VM,2)} offset:{256*et}{flags_ld}')
    A('s_waitcnt vmcnt(24)')
    tiles = [(0, KF, 0), (0, KMF, 1), (1, KF, 2), (1, KF + 16, 3), (1, KMF, 4)]
    for qt, kb, si in tiles:
        for c in range(4):
            C = '0' if c == 0 else v(S + 4*si, 4)
            A(f'v_mfma_f32_16x16x32_bf16 {v(S+4*si,4)}, {v(kb+4*c,4)}, {v(QF+16*qt+4*c,4)}, {C}')
    A(f'v_mov_b32 {v(X)}, 0xff800000')
    A(f'v_lshlrev_b32 {v(X+1)}, 2, {v(G)}')
    for i in range(4):
        A(f'v_add_u32 {v(X+2)}, {i}, {v(X+1)}')
        A(f'v_cmp_gt_u32 vcc, {v(X+2)}, {v(N)}')
        A(f'v_cndmask_b32 {v(S+i)}, {v(S+i)}, {v(X)}, vcc')
        A(f'v_cndmask_b32 {v(S+12+i)}, {v(S+12+i)}, {v(X)}, vcc')
        A(f'v_cndmask_b32 {v(S+4+i)}, {v(S+4+i)}, {v(X)}, {s(HI,2)}')
        A(f'v_cndmask_b32 {v(S+16+i)}, {v(S+16+i)}, {v(X)}, {s(HI,2)}')
    A('s_waitcnt vmcnt(0)')
    for qt, regs in ((0, list(range(S, S + 8))), (1, list(range(S + 8, S + 20)))):
        M = X + 3
        A(f'v_max3_f32 {v(M)}, {v(regs[0])}, {v(regs[1])}, {v(regs[2])}')
        k = 3
        while k + 1 < len(regs): A(f'v_max3_f32 {v(M)}, {v(M)}, {v(regs[k])}, {v(regs[k+1])}'); k += 2
        if k < len(regs): A(f'v_max_f32 {v(M)}, {v(M)}, {v(regs[k])}')
        for sw in ('v_permlane16_swap_b32', 'v_permlane32_swap_b32'):
            A(f'v_mov_b32 {v(M+1)}, {v(M)}'); A(f'{sw} {v(M)}, {v(M+1)}'); A(f'v_max_f32 {v(M)}, {v(M)}, {v(M+1)}')
        A(f'v_mul_f32 {v(M)}, {s(SC)}, {v(M)}')
        for r in regs: A(f'v_fma_f32 {v(r)}, {v(r)}, {s(SC)}, -{v(M)}')
        for r in regs: A(f'v_exp_f32 {v(r)}, {v(r)}')
        Ls = X + 5 + qt
        A(f'v_add_f32 {v(Ls)}, {v(regs[0])}, {v(regs[1])}')
        for r in regs[2:]: A(f'v_add_f32 {v(Ls)}, {v(Ls)}, {v(r)}')
        for sw in ('v_permlane16_swap_b32', 'v_permlane32_swap_b32'):
            A(f'v_mov_b32 {v(M+1)}, {v(Ls)}'); A(f'{sw} {v(Ls)}, {v(M+1)}'); A(f'v_add_f32 {v(Ls)}, {v(Ls)}, {v(M+1)}')
        A(f'v_rcp_f32 {v(Ls)}, {v(Ls)}')
        for r in regs: A(f'v_mul_f32 {v(r)}, {v(r)}, {v(Ls)}')
        if qt == 0:
            A(f'v_cvt_pk_bf16_f32 {v(P)}, {v(regs[0])}, {v(regs[1])}'); A(f'v_cvt_pk_bf16_f32 {v(P+1)}, {v(regs[2])}, {v(regs[3])}')
            A(f'v_mov_b32 {v(P+2)}, 0'); A(f'v_mov_b32 {v(P+3)}, 0')
            A(f'v_cvt_pk_bf16_f32 {v(P+4)}, {v(regs[4])}, {v(regs[5])}'); A(f'v_cvt_pk_bf16_f32 {v(P+5)}, {v(regs[6])}, {v(regs[7])}')
        else:
            for i in range(6): A(f'v_cvt_pk_bf16_f32 {v(P+6+i)}, {v(regs[2*i])}, {v(regs[2*i+1])}')
    for qt in range(2):
        Pb = P + 6 * qt
        for et in range(8):
            o = O + 4 * (et % 2)
            A(f'v_mfma_f32_16x16x32_bf16 {v(o,4)}, {v(VF+4*et,4)}, {v(Pb,4)}, 0')
            A(f'v_mfma_f32_16x16x16_bf16 {v(o,4)}, {v(VMF+2*et,2)}, {v(Pb+4,2)}, {v(o,4)}')
            pk = X + 8 + 2 * (et % 2)
            A(f'v_cvt_pk_bf16_f32 {v(pk)}, {v(o)}, {v(o+1)}'); A(f'v_cvt_pk_bf16_f32 {v(pk+1)}, {v(o+2)}, {v(o+3)}')
            A(f'global_store_dwordx2 {v(VO+qt)}, {v(pk,2)}, {s(P_O,2)} offset:{32*et}{flags_st}')
```

```python
from asmlib import *
from layout import *

POLL_LIMIT = 300000

S_WQ, S_WK, S_WV, S_WO, S_MEM0, S_DBG, S_WS = 4, 6, 8, 10, 12, 14, 16
S_X, S_I, S_W, S_H, S_J, S_STEP = 18, 19, 20, 21, 22, 23
P_MEM, P_QK, P_OX, P_PART, P_KX, P_VX, P_KM, P_VM = 24, 26, 28, 30, 32, 34, 36, 38
S_T0, S_T1, S_T2, S_T3 = 40, 41, 42, 43
S_EVEN, S_SC, S_RETRY, S_LO16, S_HI32 = 44, 46, 47, 48, 50
S_TM0, S_TM1 = 52, 54
S_ST = 56
S_ACC = 64

V_L, V_N, V_G, V_L16, V_QKST, V_QLD, V_KX0, V_KX1, V_VX0, V_VX1, V_OST, V_MST, V_IDX = 1, 2, 3, 4, 5, 6, 7, 8, 9, 10, 11, 12, 14
V_ONES = 16
V_FMEM, V_FQK, V_FOX, V_FPART, V_VMST, V_VPLD, V_T = 20, 21, 22, 23, 24, 25, 26
V_POLL = 32
V_ACC = 48
V_TMP = 56
V_AF = 64
V_KXF, V_VXF, V_QF, V_KMF, V_S, V_P, V_VMF, V_O, V_X = 128, 160, 168, 184, 200, 212, 218, 222, 230

LDS_AF, LDS_VP, LDS_WOP = 0, 16384, 20480
A_MAIN, A_V, A_WO = 0, 128, 192

def poll(A, loads, regs, tmp, exit_label):
    L = A.newlabel('poll'); D = A.newlabel('polld')
    A(f's_mov_b32 {s(S_RETRY)}, 0')
    A.label(L)
    for ld in loads: A(ld)
    A('s_waitcnt vmcnt(0)')
    r = list(regs)
    A(f'v_max3_u32 {v(tmp)}, {v(r[0])}, {v(r[1])}, {v(r[2])}')
    k = 3
    while k + 1 < len(r):
        A(f'v_max3_u32 {v(tmp)}, {v(tmp)}, {v(r[k])}, {v(r[k+1])}'); k += 2
    if k < len(r): A(f'v_max_u32 {v(tmp)}, {v(tmp)}, {v(r[k])}')
    A(f'v_cmp_eq_u32 vcc, -1, {v(tmp)}')
    A(f's_cbranch_vccz {D}')
    A(f's_add_u32 {s(S_RETRY)}, {s(S_RETRY)}, 1')
    A(f's_cmp_lt_u32 {s(S_RETRY)}, {POLL_LIMIT}')
    A(f's_cbranch_scc1 {L}')
    A(f's_branch {exit_label}')
    A.label(D)

def add64(A, dst, src, imm):
    A(f's_add_u32 {s(dst)}, {s(src)}, {imm & 0xffffffff}')
    A(f's_addc_u32 {s(dst+1)}, {s(src+1)}, 0')

def add64s(A, dst, src, sreg):
    A(f's_add_u32 {s(dst)}, {s(src)}, {s(sreg)}')
    A(f's_addc_u32 {s(dst+1)}, {s(src+1)}, 0')

LOGSTEP = 40
def stamp(A, k, timing):
    if not timing: return
    L = A.newlabel('st')
    A(f's_cmp_lg_u32 {s(S_STEP)}, {LOGSTEP}'); A(f's_cbranch_scc1 {L}')
    A(f's_memrealtime {s(S_ACC+2*k,2)}')
    A.label(L)

def load_weights(A):
    vG, vR, vT = V_T, V_T + 1, V_T + 2
    jobs = []
    A(f'v_lshrrev_b32 {v(vT)}, 1, {v(V_L)}')
    A(f'v_and_b32 {v(vT+1)}, 1, {v(V_L)}')
    A(f'v_lshlrev_b32 {v(vT+1)}, 4, {v(vT+1)}')
    A(f'v_lshl_add_u32 {v(vG)}, {v(vT)}, 13, {v(vT+1)}')
    A(f'v_lshl_add_u32 {v(vT+2)}, {v(vT)}, 11, {v(vT+1)}')
    vGo = vT + 2
    A(f'v_lshrrev_b32 {v(vT)}, 2, {v(V_N)}')
    A(f'v_lshl_add_u32 {v(vT)}, {v(V_G)}, 3, {v(vT)}')
    A(f'v_lshlrev_b32 {v(vT)}, 5, {v(vT)}')
    A(f'v_and_b32 {v(vT+1)}, 3, {v(V_N)}')
    A(f'v_lshl_add_u32 {v(vR)}, {v(vT+1)}, 3, {v(vT)}')
    A(f's_lshl_b32 {s(S_T0)}, {s(S_W)}, 15')
    A(f'v_add_u32 {v(vR)}, {s(S_T0)}, {v(vR)}')
    PM, PV_, PO = P_MEM, P_QK, P_OX
    A(f's_cmp_lt_u32 {s(S_W)}, 2')
    A(f's_cselect_b32 {s(PM)}, {s(S_WQ)}, {s(S_WK)}')
    A(f's_cselect_b32 {s(PM+1)}, {s(S_WQ+1)}, {s(S_WK+1)}')
    A(f's_lshl_b32 {s(S_T0)}, {s(S_H)}, 8')
    A(f's_lshl_b32 {s(S_T1)}, {s(S_J)}, 6')
    A(f's_add_u32 {s(S_T0)}, {s(S_T0)}, {s(S_T1)}')
    A(f's_and_b32 {s(S_T1)}, {s(S_W)}, 1')
    A(f's_lshl_b32 {s(S_T2)}, {s(S_T1)}, 5')
    A(f's_add_u32 {s(S_T2)}, {s(S_T2)}, {s(S_T0)}')
    add64s(A, PM, PM, S_T2)
    A(f's_lshl_b32 {s(S_T1)}, {s(S_T1)}, 22')
    A(f's_add_u32 {s(S_T0)}, {s(S_T0)}, {s(S_T1)}')
    A(f's_lshr_b32 {s(S_T1)}, {s(S_W)}, 1')
    A(f's_lshl_b32 {s(S_T1)}, {s(S_T1)}, 5')
    A(f's_add_u32 {s(S_T0)}, {s(S_T0)}, {s(S_T1)}')
    add64s(A, PV_, S_WV, S_T0)
    A(f's_lshl_b32 {s(S_T0)}, {s(S_X)}, 21')
    A(f's_lshl_b32 {s(S_T1)}, {s(S_W)}, 19')
    A(f's_add_u32 {s(S_T0)}, {s(S_T0)}, {s(S_T1)}')
    A(f's_lshl_b32 {s(S_T1)}, {s(S_I)}, 6')
    A(f's_add_u32 {s(S_T0)}, {s(S_T0)}, {s(S_T1)}')
    add64s(A, PO, S_WO, S_T0)
    A(f's_lshl_b32 {s(S_T3)}, {s(S_W)}, 15')
    def dma_block(base, voff, rowstride, k0, coloff, slot):
        for half in range(2):
            add64(A, S_T0, base, (k0 + 32 * half) * rowstride + coloff)
            A(f's_add_u32 m0, {s(S_T3)}, {slot * 2048 + half * 1024}')
            A('s_nop 0')
            A(f'global_load_lds_dwordx4 {v(voff)}, {s(S_T0,2)}')
    def read_block(slot, areg):
        for q, off in enumerate((0, 128, 1024, 1152)):
            A(f'ds_read_b64_tr_b16 {a(areg + 2*q, 2)}, {v(vR)} offset:{slot * 2048 + off}')
    for c in range(16): dma_block(PM, vG, 8192, 64 * c, 0, c)
    A('s_waitcnt vmcnt(0)')
    for c in range(16): read_block(c, A_MAIN + 8 * c)
    A('s_waitcnt lgkmcnt(0)')
    for c in range(8): dma_block(PV_, vG, 8192, 64 * c, 0, c)
    for c in range(4):
        for t in range(2): dma_block(PO, vGo, 2048, 64 * c, 32 * t, 8 + c * 2 + t)
    A('s_waitcnt vmcnt(0)')
    for c in range(8): read_block(c, A_V + 8 * c)
    for c in range(8): read_block(8 + c, A_WO + 8 * c)
    A('s_waitcnt lgkmcnt(0)')

def lane_setup(A):
    T = V_T
    A(f'v_and_b32 {v(V_L)}, 63, v0')
    A(f'v_lshrrev_b32 {v(T)}, 6, v0')
    A('s_nop 0')
    A(f'v_readfirstlane_b32 {s(S_W)}, {v(T)}')
    A(f'v_and_b32 {v(V_N)}, 15, {v(V_L)}')
    A(f'v_lshrrev_b32 {v(V_G)}, 4, {v(V_L)}')
    A(f'v_lshlrev_b32 {v(V_L16)}, 4, {v(V_L)}')
    A(f's_lshr_b32 {s(S_T0)}, {s(S_I)}, 2')
    A(f's_lshl_b32 {s(S_H)}, {s(S_X)}, 3')
    A(f's_add_u32 {s(S_H)}, {s(S_H)}, {s(S_T0)}')
    A(f's_and_b32 {s(S_J)}, {s(S_I)}, 3')
    A(f's_mov_b32 {s(S_EVEN)}, 0x55555555'); A(f's_mov_b32 {s(S_EVEN+1)}, 0x55555555')
    A(f's_mov_b32 {s(S_LO16)}, 0x00ff00ff'); A(f's_mov_b32 {s(S_LO16+1)}, 0x00ff00ff')
    A(f's_mov_b32 {s(S_HI32)}, 0'); A(f's_mov_b32 {s(S_HI32+1)}, -1')
    A(f's_mov_b32 {s(S_SC)}, 0x3e0293ee')
    import struct, math
    c = 128 ** -0.5 * math.log2(math.e)
    A(f's_mov_b32 {s(S_SC)}, 0x{struct.unpack("<I", struct.pack("<f", c))[0]:08x}')
    for k in range(4): A(f'v_mov_b32 {v(V_ONES+k)}, -1')
    A(f'v_mov_b32 {v(T)}, 0xeeee'); A(f'v_mov_b32 {v(T+1)}, 0x4444')
    A(f'v_cndmask_b32 {v(V_IDX)}, {v(T)}, {v(T+1)}, {s(S_LO16,2)}')
    A(f'v_and_b32 {v(T)}, 1, {v(V_G)}'); A(f'v_lshlrev_b32 {v(T)}, 2, {v(T)}')
    A(f'v_lshrrev_b32 {v(T+1)}, 1, {v(V_G)}'); A(f'v_add_u32 {v(T)}, {v(T)}, {v(T+1)}')
    A(f'v_and_b32 {v(T+1)}, 1, {v(V_N)}'); A(f'v_lshl_add_u32 {v(T)}, {v(T+1)}, 1, {v(T)}')
    A(f'v_lshlrev_b32 {v(T)}, 4, {v(T)}')
    A(f'v_lshrrev_b32 {v(T+1)}, 3, {v(V_N)}'); A(f'v_lshl_add_u32 {v(T)}, {v(T+1)}, 7, {v(T)}')
    A(f'v_bfe_u32 {v(T+1)}, {v(V_N)}, 1, 2'); A(f'v_lshl_add_u32 {v(T)}, {v(T+1)}, 2, {v(T)}')
    A(f's_lshr_b32 {s(S_T0)}, {s(S_W)}, 1'); A(f's_lshl_b32 {s(S_T0)}, {s(S_T0)}, 11')
    A(f's_lshl_b32 {s(S_T1)}, {s(S_J)}, 9'); A(f's_add_u32 {s(S_T0)}, {s(S_T0)}, {s(S_T1)}')
    A(f's_and_b32 {s(S_T1)}, {s(S_W)}, 1'); A(f's_lshl_b32 {s(S_T1)}, {s(S_T1)}, 8'); A(f's_add_u32 {s(S_T0)}, {s(S_T0)}, {s(S_T1)}')
    A(f'v_add_u32 {v(V_QKST)}, {s(S_T0)}, {v(T)}')
    A(f'v_and_b32 {v(T)}, 7, {v(V_L)}'); A(f'v_lshlrev_b32 {v(T)}, 4, {v(T)}')
    A(f'v_lshl_add_u32 {v(V_QLD)}, {v(V_G)}, 7, {v(T)}')
    A(f'v_lshlrev_b32 {v(T)}, 13, {v(V_N)}'); A(f'v_lshl_add_u32 {v(T)}, {v(V_G)}, 4, {v(T)}')
    A(f's_lshl_b32 {s(S_T0)}, {s(S_H)}, 8')
    A(f'v_add_u32 {v(V_KX0)}, {s(S_T0)}, {v(T)}')
    A(f'v_add_u32 {v(V_KX1)}, 0x20000, {v(V_KX0)}')
    A(f's_lshl_b32 {s(S_T0)}, {s(S_H)}, 7'); A(f's_lshl_b32 {s(S_T1)}, {s(S_J)}, 5'); A(f's_add_u32 {s(S_T0)}, {s(S_T0)}, {s(S_T1)}')
    A(f'v_add_u32 {v(T)}, {s(S_T0)}, {v(V_N)}'); A(f'v_lshlrev_b32 {v(T)}, 12, {v(T)}')
    A(f'v_lshl_add_u32 {v(V_VX0)}, {v(V_G)}, 3, {v(T)}')
    A(f'v_add_u32 {v(V_VX1)}, 0x10000, {v(V_VX0)}')
    A(f'v_lshrrev_b32 {v(T)}, 3, {v(V_N)}'); A(f'v_lshlrev_b32 {v(T)}, 4, {v(T)}')
    A(f'v_and_b32 {v(T+1)}, 7, {v(V_N)}'); A(f'v_add_u32 {v(T)}, {v(T)}, {v(T+1)}')
    A(f'v_lshlrev_b32 {v(T)}, 4, {v(T)}'); A(f'v_lshl_add_u32 {v(T)}, {v(V_G)}, 2, {v(T)}')
    A(f's_lshl_b32 {s(S_T0)}, {s(S_I)}, 9')
    A(f'v_add_u32 {v(V_OST)}, {s(S_T0)}, {v(T)}')
    A(f'v_lshrrev_b32 {v(T)}, 1, {v(V_G)}'); A(f'v_lshlrev_b32 {v(T)}, 4, {v(T)}')
    A(f'v_and_b32 {v(T+1)}, 1, {v(V_G)}'); A(f'v_lshl_add_u32 {v(T)}, {v(T+1)}, 2, {v(T)}')
    A(f'v_and_b32 {v(T+1)}, 1, {v(V_N)}'); A(f'v_lshl_add_u32 {v(T)}, {v(T+1)}, 1, {v(T)}')
    A(f'v_bfe_u32 {v(T+1)}, {v(V_N)}, 1, 1'); A(f'v_lshl_add_u32 {v(T)}, {v(T+1)}, 3, {v(T)}')
    A(f'v_lshlrev_b32 {v(T)}, 4, {v(T)}')
    A(f'v_lshrrev_b32 {v(T+1)}, 2, {v(V_N)}'); A(f'v_lshl_add_u32 {v(T)}, {v(T+1)}, 2, {v(T)}')
    A(f'v_add_u32 {v(V_MST)}, {s(S_T0)}, {v(T)}')
    A(f'v_add_u32 {v(V_FMEM)}, {s(S_T0)}, {v(V_L16)}')
    A(f'v_mov_b32 {v(V_FOX)}, {v(V_FMEM)}')
    A(f'v_and_b32 {v(T)}, 31, {v(V_L)}'); A(f'v_lshlrev_b32 {v(T)}, 4, {v(T)}')
    A(f'v_lshrrev_b32 {v(T+1)}, 5, {v(V_L)}'); A(f'v_lshl_add_u32 {v(T)}, {v(T+1)}, 11, {v(T)}')
    A(f's_lshl_b32 {s(S_T1)}, {s(S_J)}, 9')
    A(f'v_add_u32 {v(V_FQK)}, {s(S_T1)}, {v(T)}')
    A(f's_lshl_b32 {s(S_T1)}, {s(S_X)}, 10')
    A(f'v_add_u32 {v(V_FPART)}, {s(S_T1)}, {v(V_L16)}')
    A(f'v_and_b32 {v(T)}, 31, {v(V_L)}'); A(f'v_lshlrev_b32 {v(T)}, 3, {v(T)}')
    A(f's_lshl_b32 {s(S_T1)}, {s(S_J)}, 9')
    A(f'v_add_u32 {v(V_VMST)}, {s(S_T1)}, {v(T)}')
    A(f'v_and_b32 {v(T)}, 31, {v(V_L)}'); A(f'v_lshlrev_b32 {v(V_VPLD)}, 4, {v(T)}')

def set_ptrs(A):
    A(f's_mul_i32 {s(S_T0)}, {s(S_X)}, {MEMX_XS}'); A(f's_add_u32 {s(S_T0)}, {s(S_T0)}, {MEMX}'); add64s(A, P_MEM, S_WS, S_T0)
    A(f's_mul_i32 {s(S_T0)}, {s(S_X)}, {QKX_XS}'); A(f's_add_u32 {s(S_T0)}, {s(S_T0)}, {QKX}')
    A(f's_lshr_b32 {s(S_T1)}, {s(S_I)}, 2'); A(f's_lshl_b32 {s(S_T1)}, {s(S_T1)}, 12'); A(f's_add_u32 {s(S_T0)}, {s(S_T0)}, {s(S_T1)}')
    add64s(A, P_QK, S_WS, S_T0)
    A(f's_mul_i32 {s(S_T0)}, {s(S_X)}, {OX_XS}'); A(f's_add_u32 {s(S_T0)}, {s(S_T0)}, {OX}'); add64s(A, P_OX, S_WS, S_T0)
    A(f's_lshl_b32 {s(S_T0)}, {s(S_I)}, 12'); A(f's_add_u32 {s(S_T0)}, {s(S_T0)}, {PART}'); add64s(A, P_PART, S_WS, S_T0)
    add64(A, P_KX, S_WS, KB); add64(A, P_VX, S_WS, VT)
    A(f's_lshl_b32 {s(S_T0)}, {s(S_H)}, 11'); A(f's_add_u32 {s(S_T1)}, {s(S_T0)}, {KM}'); add64s(A, P_KM, S_WS, S_T1)
    A(f's_add_u32 {s(S_T1)}, {s(S_T0)}, {VM}'); add64s(A, P_VM, S_WS, S_T1)

STEP_MEM, STEP_QK, STEP_OX, STEP_PART, STEP_KX, STEP_VX, STEP_KM = 16384, 32768, 16384, 131072, 32 * 8192, 64, 65536

def advance_ptrs(A):
    for p, d in ((P_MEM, STEP_MEM), (P_QK, STEP_QK), (P_OX, STEP_OX), (P_PART, STEP_PART), (P_KM, STEP_KM), (P_VM, STEP_KM)):
        add64(A, p, p, d)

def fill_slots(A, ahead):
    T = S_T0
    add64(A, T, P_QK, ahead * STEP_QK)
    A(f'global_store_dwordx4 {v(V_FQK)}, {v(V_ONES,4)}, {s(T,2)}')
    add64(A, T, P_PART, ahead * STEP_PART)
    A(f'global_store_dwordx4 {v(V_FPART)}, {v(V_ONES,4)}, {s(T,2)} sc1')
    A('s_mov_b32 exec_hi, 0')
    add64(A, T, P_MEM, (ahead + 1) * STEP_MEM)
    A(f'global_store_dwordx4 {v(V_FMEM)}, {v(V_ONES,4)}, {s(T,2)}')
    add64(A, T, P_OX, ahead * STEP_OX)
    A(f'global_store_dwordx4 {v(V_FOX)}, {v(V_ONES,4)}, {s(T,2)}')
    A(f's_mov_b64 exec, -1')

def prefetch_kv(A):
    for t, vo in ((0, V_KX0), (1, V_KX1)):
        for c in range(4):
            A(f'global_load_dwordx4 {v(V_KXF + 16*t + 4*c, 4)}, {v(vo)}, {s(P_KX,2)} offset:{64*c} sc1')
    for et, vo in ((0, V_VX0), (1, V_VX1)):
        A(f'global_load_dwordx2 {v(V_VXF + 4*et, 2)}, {v(vo)}, {s(P_VX,2)} sc1')
        A(f'global_load_dwordx2 {v(V_VXF + 4*et + 2, 2)}, {v(vo)}, {s(P_VX,2)} offset:32 sc1')

def pack_pairs(A, x0, x1, x2, x3, d0, d1, t):
    dp = 'quad_perm:[1,0,3,2] row_mask:0xf bank_mask:0xf'
    for k, x in enumerate((x0, x1, x2, x3)): A(f'v_mov_b32_dpp {v(t+k)}, {v(x)} {dp}')
    E = s(S_EVEN, 2)
    A(f'v_cndmask_b32 {v(t+4)}, {v(t+2)}, {v(x0)}, {E}')
    A(f'v_cndmask_b32 {v(t+5)}, {v(x2)}, {v(t+0)}, {E}')
    A(f'v_cvt_pk_bf16_f32 {v(d0)}, {v(t+4)}, {v(t+5)}')
    A(f'v_cndmask_b32 {v(t+4)}, {v(t+3)}, {v(x1)}, {E}')
    A(f'v_cndmask_b32 {v(t+5)}, {v(x3)}, {v(t+1)}, {E}')
    A(f'v_cvt_pk_bf16_f32 {v(d1)}, {v(t+4)}, {v(t+5)}')

def step_body(A, EXIT, timing, last_label):
    W_ATT = 3
    loads = [f'global_load_dwordx4 {v(V_POLL+4*c,4)}, {v(V_TMP)}, {s(P_MEM,2)} offset:{1024*c} sc1' for c in range(4)]
    A(f's_lshl_b32 {s(S_T0)}, {s(S_W)}, 12')
    A(f'v_add_u32 {v(V_TMP)}, {s(S_T0)}, {v(V_L16)}')
    poll(A, loads, range(V_POLL, V_POLL + 16), V_TMP + 1, EXIT)
    stamp(A, 0, timing)
    for c in range(4): A(f'ds_write_b128 {v(V_TMP)}, {v(V_POLL+4*c,4)} offset:{LDS_AF + 1024*c}')
    A('s_waitcnt lgkmcnt(0)')
    A('s_barrier')
    stamp(A, 8, timing)
    for c in range(16): A(f'ds_read_b128 {v(V_AF+4*c,4)}, {v(V_L16)} offset:{LDS_AF + 1024*c}')
    for k in range(4): A(f'v_mov_b32 {v(V_ACC+k)}, 0'); A(f'v_mov_b32 {v(V_ACC+4+k)}, 0')
    for c in range(16):
        A(f's_waitcnt lgkmcnt({min(15 - c, 15)})')
        A(f'v_smfmac_f32_16x16x64_bf16 {v(V_ACC,4)}, {v(V_AF+4*c,4)}, {a(A_MAIN+8*c,8)}, {v(V_IDX)}')
    LV1, LV2 = A.newlabel('vh1'), A.newlabel('vhd')
    T = V_TMP
    A(f's_bitcmp1_b32 {s(S_W)}, 0')
    A(f's_cbranch_scc1 {LV1}')
    def vpart(base):
        seq = [f'v_smfmac_f32_16x16x64_bf16 {v(V_ACC+4,4)}, {v(V_AF+4*(base+c),4)}, {a(A_V+8*c,8)}, {v(V_IDX)}' for c in range(8)]
        A(seq[0]); A(seq[1])
        r = V_ACC
        A(f'v_permlane32_swap_b32 {v(r)}, {v(r+1)}')
        A(f'v_permlane32_swap_b32 {v(r+2)}, {v(r+3)}')
        A(seq[2])
        A(f'v_add_f32 {v(T+2)}, {v(r)}, {v(r+1)}')
        A(f'v_add_f32 {v(T+3)}, {v(r+2)}, {v(r+3)}')
        A(seq[3])
        dp = 'quad_perm:[1,0,3,2] row_mask:0xf bank_mask:0xf'
        A(f'v_mov_b32_dpp {v(T+4)}, {v(T+2)} {dp}')
        A(f'v_mov_b32_dpp {v(T+5)}, {v(T+3)} {dp}')
        E = s(S_EVEN, 2)
        A(f'v_cndmask_b32 {v(T+6)}, {v(T+5)}, {v(T+2)}, {E}')
        A(f'v_cndmask_b32 {v(T+7)}, {v(T+3)}, {v(T+4)}, {E}')
        A(f'v_cvt_pk_bf16_f32 {v(T+6)}, {v(T+6)}, {v(T+7)}')
        A(f'global_store_dword {v(V_QKST)}, {v(T+6)}, {s(P_QK,2)}')
        for x in seq[4:]: A(x)
    vpart(0)
    A(f's_branch {LV2}')
    A.label(LV1)
    vpart(8)
    A.label(LV2)
    stamp(A, 1, timing)
    LK = A.newlabel('nok')
    A(f's_cmp_lt_u32 {s(S_W)}, 2'); A(f's_cbranch_scc1 {LK}')
    A(f'global_store_dword {v(V_QKST)}, {v(T+6)}, {s(P_KM,2)} offset:-2048 sc1')
    A.label(LK)
    A(f's_lshl_b32 {s(S_T0)}, {s(S_W)}, 10')
    A(f'v_add_u32 {v(T)}, {s(S_T0)}, {v(V_L16)}')
    A(f'ds_write_b128 {v(T)}, {v(V_ACC+4,4)} offset:{LDS_VP}')
    A('s_waitcnt lgkmcnt(0)')
    A('s_barrier')
    LB = A.newlabel('noatt')
    A(f's_cmp_lg_u32 {s(S_W)}, {W_ATT}'); A(f's_cbranch_scc1 {LB}')
    X = V_X
    for et in range(2):
        for k, (wv, hf) in enumerate(((0, 0), (0, 1), (1, 0), (1, 1))):
            A(f'ds_read_b128 {v(V_AF + 16*et + 4*k, 4)}, {v(V_VPLD)} offset:{LDS_VP + (2*et + wv)*1024 + hf*512}')
    A('s_waitcnt lgkmcnt(0)')
    for et in range(2):
        b = V_AF + 16 * et
        for i in range(4):
            A(f'v_add_f32 {v(b+i)}, {v(b+i)}, {v(b+4+i)}'); A(f'v_add_f32 {v(b+8+i)}, {v(b+8+i)}, {v(b+12+i)}')
        for i in range(4): A(f'v_add_f32 {v(b+i)}, {v(b+i)}, {v(b+8+i)}')
        A(f'v_cvt_pk_bf16_f32 {v(V_VMF+2*et)}, {v(b)}, {v(b+1)}')
        A(f'v_cvt_pk_bf16_f32 {v(V_VMF+2*et+1)}, {v(b+2)}, {v(b+3)}')
    loads = [f'global_load_dwordx4 {v(V_QF+4*c,4)}, {v(V_QLD)}, {s(P_QK,2)} offset:{512*c} sc1' for c in range(4)]
    loads += [f'global_load_dwordx4 {v(V_KMF+4*c,4)}, {v(V_QLD)}, {s(P_QK,2)} offset:{2048+512*c} sc1' for c in range(4)]
    poll(A, loads, range(V_QF, V_QF + 32), X, EXIT)
    stamp(A, 2, timing)
    for t, base in ((0, V_KXF), (1, V_KXF + 16), (2, V_KMF)):
        for c in range(4):
            C = '0' if c == 0 else v(V_S + 4*t, 4)
            A(f'v_mfma_f32_16x16x32_bf16 {v(V_S+4*t,4)}, {v(base+4*c,4)}, {v(V_QF+4*c,4)}, {C}')
    S = V_S
    A(f'v_max3_f32 {v(X)}, {v(S)}, {v(S+1)}, {v(S+2)}')
    A(f'v_max3_f32 {v(X)}, {v(X)}, {v(S+3)}, {v(S+4)}')
    A(f'v_max3_f32 {v(X)}, {v(X)}, {v(S+5)}, {v(S+6)}')
    A(f'v_max_f32 {v(X)}, {v(X)}, {v(S+7)}')
    A(f'v_mov_b32 {v(X+1)}, 0xff800000')
    for i in range(4): A(f'v_cndmask_b32 {v(S+8+i)}, {v(S+8+i)}, {v(X+1)}, {s(S_HI32,2)}')
    A(f'v_max3_f32 {v(X)}, {v(X)}, {v(S+8)}, {v(S+9)}')
    A(f'v_max3_f32 {v(X)}, {v(X)}, {v(S+10)}, {v(S+11)}')
    for sw in ('v_permlane16_swap_b32', 'v_permlane32_swap_b32'):
        A(f'v_mov_b32 {v(X+1)}, {v(X)}')
        A(f'{sw} {v(X)}, {v(X+1)}')
        A(f'v_max_f32 {v(X)}, {v(X)}, {v(X+1)}')
    A(f'v_mul_f32 {v(X)}, {s(S_SC)}, {v(X)}')
    for i in range(12): A(f'v_fma_f32 {v(S+i)}, {v(S+i)}, {s(S_SC)}, -{v(X)}')
    for i in range(12): A(f'v_exp_f32 {v(S+i)}, {v(S+i)}')
    for i in range(6): A(f'v_cvt_pk_bf16_f32 {v(V_P+i)}, {v(S+2*i)}, {v(S+2*i+1)}')
    for et in range(2):
        A(f'v_mfma_f32_16x16x32_bf16 {v(V_O+4*et,4)}, {v(V_VXF+4*et,4)}, {v(V_P,4)}, 0')
    for et in range(2):
        A(f'v_mfma_f32_16x16x16_bf16 {v(V_O+4*et,4)}, {v(V_VMF+2*et,2)}, {v(V_P+4,2)}, {v(V_O+4*et,4)}')
    for i in range(6): A(f'v_add_f32 {v(S+i)}, {v(S+i)}, {v(S+6+i)}')
    for i in range(3): A(f'v_add_f32 {v(S+i)}, {v(S+i)}, {v(S+3+i)}')
    A(f'v_add_f32 {v(S)}, {v(S)}, {v(S+1)}'); A(f'v_add_f32 {v(X)}, {v(S)}, {v(S+2)}')
    for sw in ('v_permlane16_swap_b32', 'v_permlane32_swap_b32'):
        A(f'v_mov_b32 {v(X+1)}, {v(X)}')
        A(f'{sw} {v(X)}, {v(X+1)}')
        A(f'v_add_f32 {v(X)}, {v(X)}, {v(X+1)}')
    A(f'v_rcp_f32 {v(X)}, {v(X)}')
    for i in range(4): A(f'v_cndmask_b32 {v(X+2+i)}, {v(V_O+4+i)}, {v(V_O+i)}, {s(S_LO16,2)}')
    for i in range(4): A(f'v_mul_f32 {v(X+2+i)}, {v(X+2+i)}, {v(X)}')
    A(f'v_cvt_pk_bf16_f32 {v(X+6)}, {v(X+2)}, {v(X+3)}')
    A(f'v_cvt_pk_bf16_f32 {v(X+7)}, {v(X+4)}, {v(X+5)}')
    A(f'global_store_dword {v(V_OST)}, {v(X+6)}, {s(P_OX,2)}')
    A(f'global_store_dword {v(V_OST)}, {v(X+7)}, {s(P_OX,2)} offset:128')
    stamp(A, 3, timing)
    A.label(LB)
    A('s_barrier')
    A(f's_lshl_b32 {s(S_T0)}, {s(S_W)}, 12')
    A(f'v_add_u32 {v(V_TMP)}, {s(S_T0)}, {v(V_L16)}')
    loads = [f'global_load_dwordx4 {v(V_POLL+4*c,4)}, {v(V_TMP)}, {s(P_OX,2)} offset:{1024*c} sc1' for c in range(4)]
    poll(A, loads, range(V_POLL, V_POLL + 16), V_TMP + 1, EXIT)
    stamp(A, 4, timing)
    for k in range(8): A(f'v_mov_b32 {v(V_ACC+k)}, 0')
    for c in range(4):
        for t in range(2):
            A(f'v_smfmac_f32_16x16x64_bf16 {v(V_ACC+4*t,4)}, {v(V_POLL+4*c,4)}, {a(A_WO+8*(2*c+t),8)}, {v(V_IDX)}')
    for i in range(4): A(f'v_permlane32_swap_b32 {v(V_ACC+i)}, {v(V_ACC+4+i)}')
    for i in range(4): A(f'v_add_f32 {v(V_ACC+i)}, {v(V_ACC+i)}, {v(V_ACC+4+i)}')
    A(f's_lshl_b32 {s(S_T0)}, {s(S_W)}, 10')
    A(f'v_add_u32 {v(V_TMP)}, {s(S_T0)}, {v(V_L16)}')
    A(f'ds_write_b128 {v(V_TMP)}, {v(V_ACC,4)} offset:{LDS_WOP}')
    A('s_waitcnt lgkmcnt(0)')
    A('s_barrier')
    LD, LE, LF = A.newlabel('notw0'), A.newlabel('endD'), A.newlabel('notw1')
    A(f's_cmp_lg_u32 {s(S_W)}, 0'); A(f's_cbranch_scc1 {LD}')
    for k in range(4): A(f'ds_read_b128 {v(V_POLL+4*k,4)}, {v(V_L16)} offset:{LDS_WOP + 1024*k}')
    A('s_waitcnt lgkmcnt(0)')
    P = V_POLL
    for i in range(4):
        A(f'v_add_f32 {v(P+i)}, {v(P+i)}, {v(P+4+i)}'); A(f'v_add_f32 {v(P+8+i)}, {v(P+8+i)}, {v(P+12+i)}')
    for i in range(4): A(f'v_add_f32 {v(P+i)}, {v(P+i)}, {v(P+8+i)}')
    A(f'global_store_dwordx4 {v(V_FPART)}, {v(P,4)}, {s(P_PART,2)} sc1')
    stamp(A, 5, timing)
    loads = [f'global_load_dwordx4 {v(V_AF+4*k,4)}, {v(V_L16)}, {s(P_PART,2)} offset:{1024*k} sc1' for k in range(4)]
    poll(A, loads, range(V_AF, V_AF + 16), V_TMP + 1, EXIT)
    stamp(A, 6, timing)
    Q = V_AF
    for i in range(4):
        A(f'v_add_f32 {v(Q+i)}, {v(Q+i)}, {v(Q+4+i)}'); A(f'v_add_f32 {v(Q+8+i)}, {v(Q+8+i)}, {v(Q+12+i)}')
    for i in range(4): A(f'v_add_f32 {v(Q+i)}, {v(Q+i)}, {v(Q+8+i)}')
    pack_pairs(A, Q, Q + 1, Q + 2, Q + 3, V_TMP + 6, V_TMP + 7, V_TMP)
    add64(A, S_T0, P_MEM, STEP_MEM)
    A(f'global_store_dword {v(V_MST)}, {v(V_TMP+6)}, {s(S_T0,2)}')
    A(f'global_store_dword {v(V_MST)}, {v(V_TMP+7)}, {s(S_T0,2)} offset:16')
    stamp(A, 7, timing)
    A(f's_branch {LE}')
    A.label(LD)
    A(f's_cmp_lg_u32 {s(S_W)}, 1'); A(f's_cbranch_scc1 {LF}')
    fill_slots(A, 2)
    A(f's_branch {LE}')
    A.label(LF)
    A(f's_cmp_lg_u32 {s(S_W)}, {W_ATT}'); A(f's_cbranch_scc1 {LE}')
    A('s_mov_b32 exec_hi, 0')
    for et in range(2):
        A(f'global_store_dwordx2 {v(V_VMST)}, {v(V_VMF+2*et,2)}, {s(P_VM,2)} offset:{256*et} sc1')
    A(f's_mov_b64 exec, -1')
    LN = A.newlabel('nopf')
    A(f's_cmp_ge_u32 {s(S_STEP)}, 63'); A(f's_cbranch_scc1 {LN}')
    add64(A, P_KX, P_KX, STEP_KX); add64(A, P_VX, P_VX, STEP_VX)
    prefetch_kv(A)
    A.label(LN)
    A.label(LE)
    A('s_barrier')
    stamp(A, 9, timing)

def kernel_footer(K, nv=512, ns=100, acc=256):
    return f"""
.section .rodata,"a"
.p2align 6
.amdhsa_kernel {K}
  .amdhsa_next_free_vgpr {nv}
  .amdhsa_next_free_sgpr {ns}
  .amdhsa_accum_offset {acc}
  .amdhsa_group_segment_fixed_size 0
  .amdhsa_kernarg_size 120
  .amdhsa_user_sgpr_count 2
  .amdhsa_user_sgpr_kernarg_segment_ptr 1
  .amdhsa_system_sgpr_workgroup_id_x 1
.end_amdhsa_kernel
"""

def kernel_head(K):
    return f""".text
.globl {K}
.p2align 8
.type {K},@function
{K}:
"""

LDS_TK = 163836
def ticket(A):
    A(f's_getreg_b32 {s(S_X)}, hwreg(HW_REG_XCC_ID, 0, 4)')
    A(f'v_lshrrev_b32 v2, 6, v0'); A('s_nop 0'); A(f'v_readfirstlane_b32 {s(S_W)}, v2')
    A(f'v_mov_b32 v6, {LDS_TK}')
    A(f's_cmp_lg_u32 {s(S_W)}, 0'); A('s_cbranch_scc1 C_tk')
    A(f's_lshl_b32 {s(S_T0)}, {s(S_X)}, 2')
    A(f'v_mov_b32 v3, {s(S_T0)}'); A('v_mov_b32 v4, 1')
    A('s_mov_b64 exec, 1')
    A(f'global_atomic_add v5, v3, v4, {s(S_DBG,2)} sc0')
    A('s_waitcnt vmcnt(0)')
    A('ds_write_b32 v6, v5')
    A('s_waitcnt lgkmcnt(0)')
    A('s_mov_b64 exec, -1')
    A.label('C_tk')
    A('s_barrier')
    A('ds_read_b32 v5, v6')
    A('s_waitcnt lgkmcnt(0)')
    A(f'v_readfirstlane_b32 {s(S_I)}, v5')
    A('s_barrier')

def chain_barrier(A, count, EXIT):
    L, D, W = A.newlabel('cb'), A.newlabel('cbd'), A.newlabel('cbw')
    A('s_waitcnt vmcnt(0)')
    A('s_barrier')
    A(f'v_mov_b32 {v(V_T)}, 32'); A(f'v_mov_b32 {v(V_T+1)}, 1')
    A(f's_cmp_lg_u32 {s(S_W)}, 0'); A(f's_cbranch_scc1 {W}')
    A('s_mov_b64 exec, 1')
    A(f'global_atomic_add {v(V_T)}, {v(V_T+1)}, {s(S_DBG,2)}')
    A('s_mov_b64 exec, -1')
    A.label(W)
    A(f's_mov_b32 {s(S_RETRY)}, 0')
    A.label(L)
    A(f'global_load_dword {v(V_T+2)}, {v(V_T)}, {s(S_DBG,2)} sc1')
    A('s_waitcnt vmcnt(0)')
    A(f'v_readfirstlane_b32 {s(S_T0)}, {v(V_T+2)}')
    A(f's_cmp_ge_u32 {s(S_T0)}, {count}'); A(f's_cbranch_scc1 {D}')
    A(f's_add_u32 {s(S_RETRY)}, {s(S_RETRY)}, 1')
    A(f's_cmp_lt_u32 {s(S_RETRY)}, {POLL_LIMIT}')
    A(f's_cbranch_scc1 {L}')
    A(f's_branch {EXIT}')
    A.label(D)

def publish_mem0(A):
    T = V_TMP
    A(f'v_and_b32 {v(T)}, 1, {v(V_G)}'); A(f'v_lshlrev_b32 {v(T)}, 2, {v(T)}')
    A(f'v_and_b32 {v(T+1)}, 1, {v(V_N)}'); A(f'v_lshl_add_u32 {v(T)}, {v(T+1)}, 1, {v(T)}')
    A(f'v_lshlrev_b32 {v(T)}, 11, {v(T)}')
    A(f'v_lshrrev_b32 {v(T+1)}, 1, {v(V_G)}'); A(f'v_lshlrev_b32 {v(T+1)}, 4, {v(T+1)}')
    A(f'v_and_b32 {v(T+2)}, 14, {v(V_N)}'); A(f'v_add_u32 {v(T+1)}, {v(T+1)}, {v(T+2)}')
    A(f'v_lshl_add_u32 {v(T)}, {v(T+1)}, 1, {v(T)}')
    A(f's_lshl_b32 {s(S_T0)}, {s(S_I)}, 6')
    A(f'v_add_u32 {v(T)}, {s(S_T0)}, {v(T)}')
    A(f'global_load_dword {v(T+1)}, {v(T)}, {s(S_MEM0,2)}')
    A(f'global_load_dword {v(T+2)}, {v(T)}, {s(S_MEM0,2)} offset:2048')
    A('s_waitcnt vmcnt(0)')
    A(f'global_store_dword {v(V_MST)}, {v(T+1)}, {s(P_MEM,2)}')
    A(f'global_store_dword {v(V_MST)}, {v(T+2)}, {s(P_MEM,2)} offset:16')

def chain_main(A, EXIT, timing, nbar):
    lane_setup(A)
    load_weights(A)
    set_ptrs(A)
    L0 = A.newlabel('nf')
    A(f's_cmp_lg_u32 {s(S_W)}, 1'); A(f's_cbranch_scc1 {L0}')
    fill_slots(A, 0); fill_slots(A, 1)
    A('s_mov_b32 exec_hi, 0')
    A(f'global_store_dwordx4 {v(V_FMEM)}, {v(V_ONES,4)}, {s(P_MEM,2)}')
    A(f's_mov_b64 exec, -1')
    A.label(L0)
    chain_barrier(A, nbar, EXIT)
    L1, L2 = A.newlabel('nm0'), A.newlabel('npf')
    A(f's_cmp_lg_u32 {s(S_W)}, 0'); A(f's_cbranch_scc1 {L1}')
    publish_mem0(A)
    A.label(L1)
    A(f's_cmp_lg_u32 {s(S_W)}, 3'); A(f's_cbranch_scc1 {L2}')
    prefetch_kv(A)
    A.label(L2)
    A(f's_mov_b32 {s(S_STEP)}, 0')
    if timing:
        for k in range(20): A(f's_mov_b32 {s(S_ACC+k)}, 0')
    A(f's_memrealtime {s(S_TM0,2)}')
    A('s_waitcnt lgkmcnt(0)')
    A.label('C_step')
    step_body(A, EXIT, timing, None)
    advance_ptrs(A)
    A(f's_add_u32 {s(S_STEP)}, {s(S_STEP)}, 1')
    A(f's_cmp_lt_u32 {s(S_STEP)}, 64')
    A('s_cbranch_scc1 C_step')
    A(f's_memrealtime {s(S_TM1,2)}')
    A('s_waitcnt lgkmcnt(0)')

def gen_standalone(timing=False):
    A = Asm()
    K = NAME + '_kernel'
    EXIT = 'L_exit'
    A('s_cmp_ge_u32 s2, 256'); A('s_cbranch_scc1 L_end')
    for r, k in ((S_WQ, 'Wq'), (S_WK, 'Wk'), (S_WV, 'Wv'), (S_WO, 'Wo'), (S_MEM0, 'mem0'), (S_DBG, 'dbg'), (S_WS, 'ws')):
        A(f's_load_dwordx2 {s(r,2)}, s[0:1], {KA[k]}')
    A('s_waitcnt lgkmcnt(0)')
    ticket(A)
    A(f's_cmp_ge_u32 {s(S_X)}, 4'); A('s_cbranch_scc1 L_end')
    A(f's_cmp_ge_u32 {s(S_I)}, 32'); A('s_cbranch_scc1 L_end')
    chain_main(A, EXIT, timing, 128)
    if timing:
        A(f's_lshl_b32 {s(S_T0)}, {s(S_X)}, 5'); A(f's_add_u32 {s(S_T0)}, {s(S_T0)}, {s(S_I)}')
        A(f's_lshl_b32 {s(S_T0)}, {s(S_T0)}, 2'); A(f's_add_u32 {s(S_T0)}, {s(S_T0)}, {s(S_W)}')
        A(f's_lshl_b32 {s(S_T0)}, {s(S_T0)}, 6'); A(f's_add_u32 {s(S_T0)}, {s(S_T0)}, {0xA000000}')
        A(f'v_mov_b32 v2, {s(S_T0)}')
        A('s_mov_b64 exec, 1')
        for k in range(10):
            A(f'v_mov_b32 v3, {s(S_ACC+2*k)}')
            A(f'global_store_dword v2, v3, {s(S_WS,2)} offset:{4*k}')
    A(f's_or_b32 {s(S_T0)}, {s(S_X)}, {s(S_I)}'); A(f's_cmp_lg_u32 {s(S_T0)}, 0'); A('s_cbranch_scc1 L_end')
    A(f's_sub_u32 {s(S_T0)}, {s(S_TM1)}, {s(S_TM0)}')
    A(f's_lshl_b32 {s(S_T1)}, {s(S_W)}, 5')
    A(f's_add_u32 {s(S_T1)}, {s(S_T1)}, 64')
    A(f'v_mov_b32 v2, {s(S_T1)}')
    A('s_mov_b64 exec, 1')
    A(f'v_mov_b32 v3, {s(S_T0)}')
    A(f'global_store_dword v2, v3, {s(S_DBG,2)}')
    A('s_sub_u32 s90, s92, s90')
    A('v_mov_b32 v3, s90')
    A(f'global_store_dword v2, v3, {s(S_DBG,2)} offset:4')
    A('s_branch L_end')
    A.label(EXIT)
    A('v_mov_b32 v2, 40'); A('v_mov_b32 v3, 1')
    A('s_mov_b64 exec, 1')
    A(f'global_atomic_add v2, v3, {s(S_DBG,2)}')
    A.label('L_end')
    A('s_endpgm')
    n = A.fix_hazards()
    txt = HEADER + '; @launch grid=(256,1,1) block=(256,1,1) lds=163840\n.amdgcn_target "amdgcn-amd-amdhsa--gfx950"\n' + kernel_head(K) + A.text() + kernel_footer(K)
    return txt, A.count(), n

if __name__ == '__main__':
    import sys
    timing = len(sys.argv) > 2 and sys.argv[2] == 't'
    txt, n, nz = gen_standalone(timing)
    open(sys.argv[1], 'w').write(txt)
    print('instructions', n, 'nops', nz)
```

```python
from asmlib import *
from layout import *
import struct, math

def f2u(x): return struct.unpack('<I', struct.pack('<f', x))[0]

G_X, G_W, G_LDX, G_LDW, G_NST, G_CNT = 4, 6, 8, 9, 10, 11
G_OUT, G_LDO, G_P2, G_P3 = 12, 14, 16, 18
G_WV, G_T0, G_T1, G_T2, G_T3 = 20, 21, 22, 23, 24
G_MX, G_MW = 25, 26
G_C0, G_C1, G_C2, G_C3 = 27, 28, 29, 30
GV_L = 1
GV_XO, GV_WO = 2, 10
GV_XR, GV_WR = 18, 26
GV_T = 34
GV_F = 48
GV_E = 112

def setup_tr_operand(A, ld, vdma, vrd, sel_shift_and, ldsbase):
    T = GV_T
    A(f'v_lshrrev_b32 {v(T)}, 5, {v(GV_L)}')
    A(f's_lshl_b32 {s(G_T0)}, {s(G_WV)}, 4')
    A(f'v_add_u32 {v(T+1)}, {s(G_T0)}, {v(T)}')
    A(f'v_mul_lo_u32 {v(T+1)}, {v(T+1)}, {s(ld)}')
    A(f'v_and_b32 {v(T+2)}, 31, {v(GV_L)}')
    A(f'v_lshlrev_b32 {v(T)}, 2, {v(T)}')
    A(f'v_xor_b32 {v(T+3)}, {v(T+2)}, {v(T)}')
    A(f'v_xor_b32 {v(T+4)}, 8, {v(T+3)}')
    A(f'v_lshl_add_u32 {v(T+3)}, {v(T+3)}, 4, {v(T+1)}')
    A(f'v_lshl_add_u32 {v(T+4)}, {v(T+4)}, 4, {v(T+1)}')
    A(f's_lshl_b32 {s(G_T1)}, {s(ld)}, 1')
    A(f's_mov_b32 {s(G_T0)}, 0')
    for t in range(8):
        A(f'v_add_u32 {v(vdma+t)}, {s(G_T0)}, {v(T+3+(t%2))}')
        A(f's_add_u32 {s(G_T0)}, {s(G_T0)}, {s(G_T1)}')
    A(f'v_and_b32 {v(T)}, 15, {v(GV_L)}')
    A(f'v_lshrrev_b32 {v(T+1)}, 2, {v(T)}')
    A(f'v_lshrrev_b32 {v(T+2)}, 5, {v(GV_L)}')
    A(f'v_lshl_add_u32 {v(T+2)}, {v(T+2)}, 3, {v(T+1)}')
    A(f'v_lshlrev_b32 {v(T+2)}, 9, {v(T+2)}')
    A(f'v_and_b32 {v(T+3)}, 1, {v(T)}'); A(f'v_lshl_add_u32 {v(T+2)}, {v(T+3)}, 3, {v(T+2)}')
    if ldsbase: A(f'v_add_u32 {v(T+2)}, {ldsbase}, {v(T+2)}')
    A(f'v_bfe_u32 {v(T+3)}, {v(GV_L)}, 4, 1'); A(f'v_lshlrev_b32 {v(T+3)}, 1, {v(T+3)}')
    A(f'v_bfe_u32 {v(T+4)}, {v(T)}, 1, 1'); A(f'v_add_u32 {v(T+3)}, {v(T+3)}, {v(T+4)}')
    if sel_shift_and == 'wn': A(f's_and_b32 {s(G_T0)}, {s(G_WV)}, 1')
    else: A(f's_lshr_b32 {s(G_T0)}, {s(G_WV)}, 1')
    A(f's_lshl_b32 {s(G_T0)}, {s(G_T0)}, 4')
    A(f'v_add_u32 {v(T+3)}, {s(G_T0)}, {v(T+3)}')
    A(f'v_lshlrev_b32 {v(T+1)}, 2, {v(T+1)}')
    for t in range(4):
        A(f'v_add_u32 {v(T+4)}, {4*t}, {v(T+3)}')
        A(f'v_xor_b32 {v(T+4)}, {v(T+4)}, {v(T+1)}')
        A(f'v_lshl_add_u32 {v(vrd+t)}, {v(T+4)}, 4, {v(T+2)}')
        A(f'v_add_u32 {v(vrd+4+t)}, 0x10000, {v(vrd+t)}')

def gemm_setup(A, xt):
    T = GV_T
    if xt:
        setup_tr_operand(A, G_LDX, GV_XO, GV_XR, 'wm', 0)
    else:
        A(f'v_lshrrev_b32 {v(T)}, 3, {v(GV_L)}')
        A(f's_lshl_b32 {s(G_T0)}, {s(G_WV)}, 6')
        A(f'v_add_u32 {v(T)}, {s(G_T0)}, {v(T)}')
        A(f'v_mul_lo_u32 {v(T)}, {v(T)}, {s(G_LDX)}')
        A(f'v_and_b32 {v(T+1)}, 7, {v(GV_L)}'); A(f'v_lshrrev_b32 {v(T+2)}, 4, {v(GV_L)}')
        A(f'v_xor_b32 {v(T+3)}, {v(T+1)}, {v(T+2)}')
        A(f'v_xor_b32 {v(T+4)}, 4, {v(T+3)}')
        A(f'v_lshl_add_u32 {v(T+3)}, {v(T+3)}, 4, {v(T)}')
        A(f'v_lshl_add_u32 {v(T+4)}, {v(T+4)}, 4, {v(T)}')
        A(f's_lshl_b32 {s(G_T1)}, {s(G_LDX)}, 3')
        A(f's_mov_b32 {s(G_T0)}, 0')
        for t in range(8):
            A(f'v_add_u32 {v(GV_XO+t)}, {s(G_T0)}, {v(T+3+(t%2))}')
            A(f's_add_u32 {s(G_T0)}, {s(G_T0)}, {s(G_T1)}')
        A(f'v_and_b32 {v(T)}, 31, {v(GV_L)}')
        A(f's_lshr_b32 {s(G_T0)}, {s(G_WV)}, 1'); A(f's_lshl_b32 {s(G_T0)}, {s(G_T0)}, 14')
        A(f'v_lshlrev_b32 {v(T+1)}, 7, {v(T)}'); A(f'v_add_u32 {v(T+1)}, {s(G_T0)}, {v(T+1)}')
        A(f'v_bfe_u32 {v(T+2)}, {v(T)}, 1, 3')
        A(f'v_lshrrev_b32 {v(T+3)}, 5, {v(GV_L)}'); A(f'v_xor_b32 {v(T+2)}, {v(T+2)}, {v(T+3)}')
        for ks in range(4):
            A(f'v_xor_b32 {v(T+3)}, {2*ks}, {v(T+2)}')
            A(f'v_lshl_add_u32 {v(GV_XR+ks)}, {v(T+3)}, 4, {v(T+1)}')
            A(f'v_add_u32 {v(GV_XR+4+ks)}, 0x10000, {v(GV_XR+ks)}')
    setup_tr_operand(A, G_LDW, GV_WO, GV_WR, 'wn', 0x8000)
    A(f's_lshl_b32 {s(G_MX)}, {s(G_WV)}, 13')
    A(f's_add_u32 {s(G_MW)}, {s(G_MX)}, 32768')

def wave_id(A):
    A(f'v_and_b32 {v(GV_L)}, 63, v0')
    A(f'v_lshrrev_b32 {v(GV_T)}, 6, v0'); A('s_nop 0')
    A(f'v_readfirstlane_b32 {s(G_WV)}, {v(GV_T)}')

def dma_list(buf):
    out = []
    for t in range(8):
        out.append([f's_add_u32 m0, {s(G_MX)}, {buf*65536 + t*1024}', f'global_load_lds_dwordx4 {v(GV_XO+t)}, {s(G_X,2)}'])
    for t in range(8):
        out.append([f's_add_u32 m0, {s(G_MW)}, {buf*65536 + t*1024}', f'global_load_lds_dwordx4 {v(GV_WO+t)}, {s(G_W,2)}'])
    return out

def adv_x(): return [f's_add_u32 {s(G_X)}, {s(G_X)}, {s(G_C1)}', f's_addc_u32 {s(G_X+1)}, {s(G_X+1)}, 0']
def adv_w(): return [f's_add_u32 {s(G_W)}, {s(G_W)}, {s(G_C0)}', f's_addc_u32 {s(G_W+1)}, {s(G_W+1)}, 0']

def frag_reads(buf, ks, fset, xt):
    X, W = GV_F + 32 * fset, GV_F + 32 * fset + 16
    r = []
    for t in range(4):
        r.append(f'ds_read_b64_tr_b16 {v(W+4*t,2)}, {v(GV_WR+4*buf+t)} offset:{8192*ks}')
        r.append(f'ds_read_b64_tr_b16 {v(W+4*t+2,2)}, {v(GV_WR+4*buf+t)} offset:{8192*ks+2048}')
        if xt:
            r.append(f'ds_read_b64_tr_b16 {v(X+4*t,2)}, {v(GV_XR+4*buf+t)} offset:{8192*ks}')
            r.append(f'ds_read_b64_tr_b16 {v(X+4*t+2,2)}, {v(GV_XR+4*buf+t)} offset:{8192*ks+2048}')
        else:
            r.append(f'ds_read_b128 {v(X+4*t,4)}, {v(GV_XR+4*buf+ks)} offset:{4096*t}')
    return r

def mfmas(fset, orient):
    X, W = GV_F + 32 * fset, GV_F + 32 * fset + 16
    r = []
    for tn in range(4):
        for tm in range(4):
            acc = a(16 * (4 * tn + tm), 16)
            if orient == 'N': r.append(f'v_mfma_f32_32x32x16_bf16 {acc}, {v(W+4*tn,4)}, {v(X+4*tm,4)}, {acc}')
            else: r.append(f'v_mfma_f32_32x32x16_bf16 {acc}, {v(X+4*tm,4)}, {v(W+4*tn,4)}, {acc}')
    return r

def interleave(A, mf, fillers):
    flat = [x for g in fillers for x in g]
    n = len(mf)
    per = -(-len(flat) // n) if flat else 0
    k = 0
    for m in mf:
        A(m)
        for _ in range(per):
            if k < len(flat): A(flat[k]); k += 1
    while k < len(flat): A(flat[k]); k += 1

def gemm_mainloop(A, orient, xt):
    A(f's_lshl_b32 {s(G_C0)}, {s(G_LDW)}, 6')
    if xt: A(f's_lshl_b32 {s(G_C1)}, {s(G_LDX)}, 6')
    else: A(f's_mov_b32 {s(G_C1)}, 128')
    for b in range(2):
        for g in dma_list(b):
            A(g[0]); A('s_nop 0'); A(g[1])
        for x in adv_x() + adv_w(): A(x)
    for i in range(256): A(f'v_accvgpr_write_b32 {a(i)}, 0')
    A('s_waitcnt vmcnt(16)')
    A('s_barrier')
    for x in frag_reads(0, 0, 0, xt): A(x)
    A(f's_lshr_b32 {s(G_CNT)}, {s(G_NST)}, 1'); A(f's_sub_u32 {s(G_CNT)}, {s(G_CNT)}, 1')
    def one(buf, dma, rd, pend):
        for ks in range(4):
            fs = ks % 2
            fill = []
            if ks == 3:
                A('s_waitcnt vmcnt(0) lgkmcnt(0)')
                A('s_barrier')
                if rd: fill += [[x] for x in frag_reads(1 - buf, 0, 1 - fs, xt)]
                if dma: fill += dma_list(buf)[:8] + [adv_x()]
            else:
                A('s_waitcnt lgkmcnt(0)')
                fill += [[x] for x in frag_reads(buf, ks + 1, 1 - fs, xt)]
                if ks == 0 and pend: fill += pend
            interleave(A, mfmas(fs, orient), fill)
    half2 = lambda b: dma_list(b)[8:] + [adv_w()]
    L = A.newlabel('gl'); LE = A.newlabel('gle')
    one(0, True, True, None)
    A.label(L)
    one(1, True, True, half2(0))
    A(f's_sub_u32 {s(G_CNT)}, {s(G_CNT)}, 1')
    A(f's_cmp_eq_u32 {s(G_CNT)}, 0'); A(f's_cbranch_scc1 {LE}')
    one(0, True, True, half2(1))
    A(f's_branch {L}')
    A.label(LE)
    one(0, False, True, half2(1))
    one(1, False, False, None)

E_OFF = GV_E
E_SRC = GV_E + 4
E_PK = GV_E + 20
E_AUX = GV_E + 28

def epi_offsets(A, orient):
    T = GV_T
    rows_sel = 'wm' if orient == 'N' else 'wn'
    if orient == 'N':
        A(f's_lshr_b32 {s(G_T0)}, {s(G_WV)}, 1'); A(f's_and_b32 {s(G_T1)}, {s(G_WV)}, 1')
    else:
        A(f's_and_b32 {s(G_T0)}, {s(G_WV)}, 1'); A(f's_lshr_b32 {s(G_T1)}, {s(G_WV)}, 1')
    A(f's_lshl_b32 {s(G_T0)}, {s(G_T0)}, 7')
    A(f'v_and_b32 {v(T)}, 31, {v(GV_L)}'); A(f'v_add_u32 {v(T)}, {s(G_T0)}, {v(T)}')
    A(f'v_mul_lo_u32 {v(T)}, {v(T)}, {s(G_LDO)}')
    A(f'v_lshrrev_b32 {v(T+1)}, 5, {v(GV_L)}'); A(f'v_lshl_add_u32 {v(T)}, {v(T+1)}, 4, {v(T)}')
    A(f's_lshl_b32 {s(G_T1)}, {s(G_T1)}, 8')
    A(f'v_add_u32 {v(E_OFF)}, {s(G_T1)}, {v(T)}')
    A(f's_lshl_b32 {s(G_T0)}, {s(G_LDO)}, 5')
    for t in range(1, 4): A(f'v_add_u32 {v(E_OFF+t)}, {s(G_T0)}, {v(E_OFF+t-1)}')

def acc_read(A, tn, tm):
    for r in range(16): A(f'v_accvgpr_read_b32 {v(E_SRC+r)}, {a(16*(4*tn+tm)+r)}')

def pack16(A, src, tmp):
    for q in range(4):
        A(f'v_cvt_pk_bf16_f32 {v(tmp+2*q)}, {v(src+4*q)}, {v(src+4*q+1)}')
        A(f'v_cvt_pk_bf16_f32 {v(tmp+2*q+1)}, {v(src+4*q+2)}, {v(src+4*q+3)}')
    for h in range(2):
        b = tmp + 4 * h
        A(f'v_permlane32_swap_b32 {v(b)}, {v(b+2)}')
        A(f'v_permlane32_swap_b32 {v(b+1)}, {v(b+3)}')

def store16(A, orient, tn, tm, tmp, flags=''):
    row, col = (tm, tn) if orient == 'N' else (tn, tm)
    for h in range(2):
        A(f'global_store_dwordx4 {v(E_OFF+row)}, {v(tmp+4*h,4)}, {s(G_OUT,2)} offset:{64*col + 32*h}{flags}')

def epi_plain(A, orient, flags=''):
    epi_offsets(A, orient)
    k = 0
    for tn in range(4):
        for tm in range(4):
            pk = E_PK + 8 * (k % 2) * 0 + (0 if k % 2 == 0 else 40); k += 1
            acc_read(A, tn, tm)
            pack16(A, E_SRC, pk)
            store16(A, orient, tn, tm, pk, flags)

def round_bf16(A, r, t):
    A(f'v_cvt_pk_bf16_f32 {v(t)}, {v(r)}, {v(r)}')
    A(f'v_lshlrev_b32 {v(r)}, 16, {v(t)}')

def epi_mlp1(A):
    epi_offsets(A, 'N')
    T = GV_T
    A(f's_and_b32 {s(G_T0)}, {s(G_WV)}, 1'); A(f's_lshl_b32 {s(G_T0)}, {s(G_T0)}, 8')
    A(f'v_lshrrev_b32 {v(T)}, 5, {v(GV_L)}'); A(f'v_lshlrev_b32 {v(T)}, 3, {v(T)}'); A(f'v_add_u32 {v(T)}, {s(G_T0)}, {v(T)}')
    c0 = -2.0 * math.log2(math.e) * math.sqrt(2.0 / math.pi)
    A(f's_mov_b32 {s(G_C0)}, 0x{f2u(c0):08x}'); A(f's_mov_b32 {s(G_C1)}, 0x{f2u(c0*0.044715):08x}')
    A(f'v_mov_b32 {v(T+1)}, {s(G_C0)}')
    B = E_AUX
    k = 0
    for tn in range(4):
        for q in range(4): A(f'global_load_dwordx2 {v(B+16+2*q,2)}, {v(T)}, {s(G_P2,2)} offset:{64*tn+16*q}')
        A('s_waitcnt vmcnt(0)')
        for q in range(4):
            for d in range(2):
                A(f'v_lshlrev_b32 {v(B+4*q+2*d)}, 16, {v(B+16+2*q+d)}')
                A(f'v_and_b32 {v(B+4*q+2*d+1)}, 0xffff0000, {v(B+16+2*q+d)}')
        for tm in range(4):
            pk = E_PK if k % 2 == 0 else E_PK + 60; k += 1
            acc_read(A, tn, tm)
            for r in range(0, 16, 2):
                A(f'v_cvt_pk_bf16_f32 {v(T+2)}, {v(E_SRC+r)}, {v(E_SRC+r+1)}')
                A(f'v_lshlrev_b32 {v(E_SRC+r)}, 16, {v(T+2)}'); A(f'v_and_b32 {v(E_SRC+r+1)}, 0xffff0000, {v(T+2)}')
            for r in range(16): A(f'v_add_f32 {v(E_SRC+r)}, {v(E_SRC+r)}, {v(B+r)}')
            for r in range(0, 16, 2):
                A(f'v_cvt_pk_bf16_f32 {v(T+2)}, {v(E_SRC+r)}, {v(E_SRC+r+1)}')
                A(f'v_lshlrev_b32 {v(E_SRC+r)}, 16, {v(T+2)}'); A(f'v_and_b32 {v(E_SRC+r+1)}, 0xffff0000, {v(T+2)}')
            U = B + 24
            for r in range(16): A(f'v_mul_f32 {v(U+r)}, {v(E_SRC+r)}, {v(E_SRC+r)}')
            for r in range(16): A(f'v_fma_f32 {v(U+r)}, {v(U+r)}, {s(G_C1)}, {v(T+1)}')
            for r in range(16): A(f'v_mul_f32 {v(U+r)}, {v(U+r)}, {v(E_SRC+r)}')
            for r in range(16): A(f'v_exp_f32 {v(U+r)}, {v(U+r)}')
            for r in range(16): A(f'v_add_f32 {v(U+r)}, 1.0, {v(U+r)}')
            for r in range(16): A(f'v_rcp_f32 {v(U+r)}, {v(U+r)}')
            for r in range(16): A(f'v_mul_f32 {v(E_SRC+r)}, {v(E_SRC+r)}, {v(U+r)}')
            pack16(A, E_SRC, pk)
            store16(A, 'N', tn, tm, pk)

def epi_mlp2(A):
    epi_offsets(A, 'M')
    T = GV_T
    A(f's_and_b32 {s(G_T0)}, {s(G_WV)}, 1'); A(f's_lshl_b32 {s(G_T0)}, {s(G_T0)}, 8')
    A(f'v_and_b32 {v(T)}, 31, {v(GV_L)}'); A(f'v_lshlrev_b32 {v(T)}, 1, {v(T)}'); A(f'v_add_u32 {v(T)}, {s(G_T0)}, {v(T)}')
    B = E_AUX
    for tn in range(4): A(f'global_load_ushort {v(B+tn)}, {v(T)}, {s(G_P2,2)} offset:{64*tn}')
    A('s_waitcnt vmcnt(0)')
    for tn in range(4): A(f'v_lshlrev_b32 {v(B+tn)}, 16, {v(B+tn)}')
    A(f's_mov_b32 {s(G_C0)}, 0x{f2u(-math.log2(math.e)):08x}')
    U = B + 8
    k = 0
    for tn in range(4):
        for tm in range(4):
            pk = E_PK if k % 2 == 0 else E_PK + 60; k += 1
            acc_read(A, tn, tm)
            for r in range(0, 16, 2):
                A(f'v_cvt_pk_bf16_f32 {v(T+2)}, {v(E_SRC+r)}, {v(E_SRC+r+1)}')
                A(f'v_lshlrev_b32 {v(E_SRC+r)}, 16, {v(T+2)}'); A(f'v_and_b32 {v(E_SRC+r+1)}, 0xffff0000, {v(T+2)}')
            for r in range(16): A(f'v_add_f32 {v(E_SRC+r)}, {v(E_SRC+r)}, {v(B+tn)}')
            for r in range(0, 16, 2):
                A(f'v_cvt_pk_bf16_f32 {v(T+2)}, {v(E_SRC+r)}, {v(E_SRC+r+1)}')
                A(f'v_lshlrev_b32 {v(E_SRC+r)}, 16, {v(T+2)}'); A(f'v_and_b32 {v(E_SRC+r+1)}, 0xffff0000, {v(T+2)}')
            for r in range(16): A(f'v_mul_f32 {v(U+r)}, {s(G_C0)}, {v(E_SRC+r)}')
            for r in range(16): A(f'v_exp_f32 {v(U+r)}, {v(U+r)}')
            for r in range(16): A(f'v_add_f32 {v(U+r)}, 1.0, {v(U+r)}')
            for r in range(16): A(f'v_rcp_f32 {v(U+r)}, {v(U+r)}')
            for r in range(16): A(f'v_mul_f32 {v(E_SRC+r)}, {v(E_SRC+r)}, {v(U+r)}')
            pack16(A, E_SRC, pk)
            store16(A, 'M', tn, tm, pk)

def epi_final(A):
    epi_offsets(A, 'N')
    T = GV_T
    GX = E_AUX
    U = E_AUX + 16
    k = 0
    for tn in range(4):
        for tm in range(4):
            pk = E_PK if k % 2 == 0 else E_PK + 60; k += 1
            for h in range(2):
                A(f'global_load_dwordx4 {v(GX+4*h,4)}, {v(E_OFF+tm)}, {s(G_P2,2)} offset:{64*tn+32*h}')
                A(f'global_load_dwordx4 {v(GX+8+4*h,4)}, {v(E_OFF+tm)}, {s(G_P3,2)} offset:{64*tn+32*h}')
            acc_read(A, tn, tm)
            pack16(A, E_SRC, pk)
            A('s_waitcnt vmcnt(0)')
            for d in range(8):
                S_, Gd, Xd = pk + d, GX + d, GX + 8 + d
                A(f'v_lshlrev_b32 {v(U)}, 16, {v(S_)}'); A(f'v_and_b32 {v(U+1)}, 0xffff0000, {v(S_)}')
                A(f'v_lshlrev_b32 {v(U+2)}, 16, {v(Gd)}'); A(f'v_and_b32 {v(U+3)}, 0xffff0000, {v(Gd)}')
                A(f'v_mul_f32 {v(U)}, {v(U)}, {v(U+2)}'); A(f'v_mul_f32 {v(U+1)}, {v(U+1)}, {v(U+3)}')
                A(f'v_cvt_pk_bf16_f32 {v(U)}, {v(U)}, {v(U+1)}')
                A(f'v_and_b32 {v(U+1)}, 0xffff0000, {v(U)}'); A(f'v_lshlrev_b32 {v(U)}, 16, {v(U)}')
                A(f'v_lshlrev_b32 {v(U+2)}, 16, {v(Xd)}'); A(f'v_and_b32 {v(U+3)}, 0xffff0000, {v(Xd)}')
                A(f'v_add_f32 {v(U)}, {v(U)}, {v(U+2)}'); A(f'v_add_f32 {v(U+1)}, {v(U+1)}, {v(U+3)}')
                A(f'v_cvt_pk_bf16_f32 {v(S_)}, {v(U)}, {v(U+1)}')
            store16(A, 'N', tn, tm, pk)
```

```python
XN   = 0x0000000
HT   = 0x0400000
QB   = 0x1000000
KB   = 0x2000000
VT   = 0x3000000
UB   = 0x4000000
GB   = 0x4800000
OB   = 0x5000000
KM   = 0x6000000
VM   = 0x6400000
MEMX = 0x7000000
MEMX_XS = 0x110000
QKX  = 0x7800000
QKX_XS = 0x210000
OX   = 0x8400000
OX_XS = 0x110000
PART = 0x8C00000
KA = dict(x=0, mem0=8, Wq=16, Wk=24, Wv=32, Wo=40, seg=48, Bx=56, w1=64, b1=72, w2=80, b2=88, out=96, dbg=104, ws=112)
NAME = 'recurrent_scan__memory_aug_recurrent_mem_tr__mixer_token_mlp__prompt'
HEADER = open('cdna_kernels/%s.s.ref' % NAME).read().split('; Override launch')[0]
```

```python
from asmlib import *
from layout import *
from gemm import f2u

def wave_allreduce_add(A, r, t):
    for m in ('row_ror:1', 'row_ror:2', 'row_ror:4', 'row_ror:8'):
        A(f'v_add_f32_dpp {v(r)}, {v(r)}, {v(r)} {m} row_mask:0xf bank_mask:0xf')
    for sw in ('v_permlane16_swap_b32', 'v_permlane32_swap_b32'):
        A(f'v_mov_b32 {v(t)}, {v(r)}')
        A(f'{sw} {v(r)}, {v(t)}')
        A(f'v_add_f32 {v(r)}, {v(r)}, {v(t)}')

def rbf(A, r, t):
    A(f'v_cvt_pk_bf16_f32 {v(t)}, {v(r)}, {v(r)}')
    A(f'v_lshlrev_b32 {v(r)}, 16, {v(t)}')

def ln_row(A, X, T, PK):
    A(f'v_add_f32 {v(T)}, {v(X)}, {v(X+1)}')
    for i in range(2, 16): A(f'v_add_f32 {v(T)}, {v(T)}, {v(X+i)}')
    wave_allreduce_add(A, T, T + 1)
    A(f'v_mul_f32 {v(T)}, 0x{f2u(1/1024):08x}, {v(T)}')
    A(f'v_sub_f32 {v(T+2)}, {v(X)}, {v(T)}'); A(f'v_mul_f32 {v(T+1)}, {v(T+2)}, {v(T+2)}')
    for i in range(1, 16):
        A(f'v_sub_f32 {v(T+2)}, {v(X+i)}, {v(T)}'); A(f'v_fmac_f32 {v(T+1)}, {v(T+2)}, {v(T+2)}')
    wave_allreduce_add(A, T + 1, T + 2)
    A(f'v_mul_f32 {v(T+1)}, 0x{f2u(1/1024):08x}, {v(T+1)}')
    rbf(A, T, T + 2); rbf(A, T + 1, T + 2)
    A(f'v_add_f32 {v(T+1)}, 0x{f2u(1e-5):08x}, {v(T+1)}'); rbf(A, T + 1, T + 2)
    A(f'v_sqrt_f32 {v(T+1)}, {v(T+1)}'); rbf(A, T + 1, T + 2)
    A(f'v_rcp_f32 {v(T+1)}, {v(T+1)}')
    for i in range(0, 16, 2):
        A(f'v_sub_f32 {v(X+i)}, {v(X+i)}, {v(T)}'); A(f'v_sub_f32 {v(X+i+1)}, {v(X+i+1)}, {v(T)}')
        A(f'v_cvt_pk_bf16_f32 {v(T+2)}, {v(X+i)}, {v(X+i+1)}')
        A(f'v_lshlrev_b32 {v(X+i)}, 16, {v(T+2)}'); A(f'v_and_b32 {v(X+i+1)}, 0xffff0000, {v(T+2)}')
        A(f'v_mul_f32 {v(X+i)}, {v(X+i)}, {v(T+1)}'); A(f'v_mul_f32 {v(X+i+1)}, {v(X+i+1)}, {v(T+1)}')
        A(f'v_cvt_pk_bf16_f32 {v(PK+i//2)}, {v(X+i)}, {v(X+i+1)}')
        A(f'v_lshlrev_b32 {v(X+i)}, 16, {v(PK+i//2)}'); A(f'v_and_b32 {v(X+i+1)}, 0xffff0000, {v(PK+i//2)}')

def ln_rows(A, srow, nrows, SX, SWS, flags=''):
    R, X, T, PK, O = 8, 24, 40, 44, 2
    A(f'v_and_b32 v1, 63, v0')
    A(f'v_lshlrev_b32 v1, 4, v1')
    A(f's_lshl_b32 s30, {s(srow)}, 11')
    A(f'v_add_u32 {v(O)}, s30, v1')
    for r in range(nrows):
        A(f'global_load_dwordx4 {v(R+8*(r%2),4)}, {v(O)}, {s(SX,2)} offset:{0}')
        A(f'global_load_dwordx4 {v(R+8*(r%2)+4,4)}, {v(O)}, {s(SX,2)} offset:1024')
        A('s_waitcnt vmcnt(0)')
        for d in range(8):
            A(f'v_lshlrev_b32 {v(X+2*d)}, 16, {v(R+8*(r%2)+d)}'); A(f'v_and_b32 {v(X+2*d+1)}, 0xffff0000, {v(R+8*(r%2)+d)}')
        ln_row(A, X, T, PK)
        A(f'global_store_dwordx4 {v(O)}, {v(PK,4)}, {s(SWS,2)} offset:0{flags}')
        A(f'global_store_dwordx4 {v(O)}, {v(PK+4,4)}, {s(SWS,2)} offset:1024{flags}')
        ln_row(A, X, T, PK + 8)
        A(f'v_add_u32 {v(O+1)}, {HT}, {v(O)}')
        A(f'global_store_dwordx4 {v(O+1)}, {v(PK+8,4)}, {s(SWS,2)} offset:0{flags}')
        A(f'global_store_dwordx4 {v(O+1)}, {v(PK+12,4)}, {s(SWS,2)} offset:1024{flags}')
        if r + 1 < nrows: A(f'v_add_u32 {v(O)}, 2048, {v(O)}')
```

```python
import sys
from asmlib import *
from layout import *
import chain, gemm, ln, att
from gemm import *
from chain import kernel_head, kernel_footer

def load_ptrs(A, pairs):
    for r, k in pairs: A(f's_load_dwordx2 {s(r,2)}, s[0:1], {KA[k]}')
    A('s_waitcnt lgkmcnt(0)')

def add64c(A, dst, src, imm):
    A(f's_add_u32 {s(dst)}, {s(src)}, {imm}'); A(f's_addc_u32 {s(dst+1)}, {s(src+1)}, 0')
def add64r(A, dst, src, r):
    A(f's_add_u32 {s(dst)}, {s(src)}, {s(r)}'); A(f's_addc_u32 {s(dst+1)}, {s(src+1)}, 0')

def k_prep():
    A = Asm('P_')
    A('s_cmp_ge_u32 s2, 256'); A('s_cbranch_scc1 P_end')
    load_ptrs(A, [(4, 'x'), (6, 'ws')])
    A('v_lshrrev_b32 v2, 6, v0'); A('s_nop 0'); A('v_readfirstlane_b32 s8, v2')
    A('s_lshl_b32 s9, s2, 3'); A('s_lshl_b32 s8, s8, 1'); A('s_add_u32 s9, s9, s8')
    ln.ln_rows(A, 9, 2, 4, 6)
    A.label('P_end'); A('s_endpgm')
    A.fix_hazards()
    return kernel_head('prep_kernel') + A.text(), kernel_footer('prep_kernel', 64, 40, 64)

WS, PA, PB, PC, PD = 40, 42, 44, 46, 48
def k_g1():
    A = Asm('G1_')
    A('s_cmp_ge_u32 s2, 440'); A('s_cbranch_scc1 G1_end')
    load_ptrs(A, [(WS, 'ws'), (PA, 'Wq'), (PB, 'Wk'), (PC, 'Wv'), (PD, 'w1'), (50, 'b1')])
    wave_id(A)
    A('s_cmp_ge_u32 s2, 384'); A('s_cbranch_scc1 G1_mlp')
    A('s_lshr_b32 s52, s2, 7'); A('s_and_b32 s53, s2, 127')
    A('s_and_b32 s54, s53, 7'); A('s_lshl_b32 s54, s54, 1'); A('s_bfe_u32 s55, s53, 0x10003'); A('s_add_u32 s54, s54, s55')
    A('s_lshr_b32 s55, s53, 4')
    A(f's_cmp_eq_u32 s52, 1'); A(f's_cselect_b32 {s(PA)}, {s(PB)}, {s(PA)}'); A(f's_cselect_b32 {s(PA+1)}, {s(PB+1)}, {s(PA+1)}')
    A(f's_cmp_eq_u32 s52, 2'); A(f's_cselect_b32 {s(PA)}, {s(PC)}, {s(PA)}'); A(f's_cselect_b32 {s(PA+1)}, {s(PC+1)}, {s(PA+1)}')
    A('s_lshl_b32 s56, s54, 9'); add64r(A, G_W, PA, 56)
    A('s_lshl_b32 s56, s55, 19'); A(f's_add_u32 s56, s56, {XN}'); add64r(A, G_X, WS, 56)
    A(f's_mov_b32 {s(G_LDX)}, 2048'); A(f's_mov_b32 {s(G_LDW)}, 8192'); A(f's_mov_b32 {s(G_NST)}, 16')
    A('s_cmp_eq_u32 s52, 2'); A('s_cbranch_scc1 G1_v')
    gemm_setup(A, False)
    gemm_mainloop(A, 'N', False)
    A('s_lshl_b32 s56, s55, 21'); A('s_lshl_b32 s57, s54, 9'); A('s_add_u32 s56, s56, s57')
    A(f's_mul_i32 s57, s52, {KB-QB}'); A('s_add_u32 s56, s56, s57'); A(f's_add_u32 s56, s56, {QB}')
    add64r(A, G_OUT, WS, 56); A(f's_mov_b32 {s(G_LDO)}, 8192')
    epi_plain(A, 'N')
    A('s_endpgm')
    A.label('G1_v')
    gemm_setup(A, False)
    gemm_mainloop(A, 'M', False)
    A('s_lshl_b32 s56, s54, 20'); A('s_lshl_b32 s57, s55, 9'); A('s_add_u32 s56, s56, s57'); A(f's_add_u32 s56, s56, {VT}')
    add64r(A, G_OUT, WS, 56); A(f's_mov_b32 {s(G_LDO)}, 4096')
    epi_plain(A, 'M')
    A('s_endpgm')
    A.label('G1_mlp')
    A('s_sub_u32 s53, s2, 384'); A('s_and_b32 s55, s53, 3'); A('s_lshr_b32 s54, s53, 2')
    A('s_lshl_b32 s56, s55, 9'); A(f's_add_u32 s56, s56, {HT}'); add64r(A, G_X, WS, 56)
    A('s_lshl_b32 s56, s54, 9'); add64r(A, G_W, PD, 56)
    A(f's_mov_b32 {s(G_LDX)}, 2048'); A(f's_mov_b32 {s(G_LDW)}, 7168'); A(f's_mov_b32 {s(G_NST)}, 32')
    gemm_setup(A, True)
    gemm_mainloop(A, 'N', True)
    A('s_mul_i32 s56, s55, 256*7168'); A('s_lshl_b32 s57, s54, 9'); A('s_add_u32 s56, s56, s57'); A(f's_add_u32 s56, s56, {UB}')
    add64r(A, G_OUT, WS, 56); A(f's_mov_b32 {s(G_LDO)}, 7168')
    add64r(A, G_P2, 50, 57)
    epi_mlp1(A)
    A.label('G1_end'); A('s_endpgm')
    A.fix_hazards()
    return kernel_head('g1_kernel') + A.text(), kernel_footer('g1_kernel')

def k_g2():
    A = Asm('G2_')
    A('s_cmp_ge_u32 s2, 32'); A('s_cbranch_scc1 G2_end')
    load_ptrs(A, [(WS, 'ws'), (PA, 'w2'), (PB, 'b2')])
    wave_id(A)
    A('s_and_b32 s55, s2, 3'); A('s_lshr_b32 s54, s2, 2')
    A('s_mul_i32 s56, s55, 256*7168'); A(f's_add_u32 s56, s56, {UB}'); add64r(A, G_X, WS, 56)
    A('s_lshl_b32 s56, s54, 9'); add64r(A, G_W, PA, 56); add64r(A, G_P2, PB, 56)
    A(f's_mov_b32 {s(G_LDX)}, 7168'); A(f's_mov_b32 {s(G_LDW)}, 4096'); A(f's_mov_b32 {s(G_NST)}, 56')
    gemm_setup(A, False)
    gemm_mainloop(A, 'M', False)
    A('s_lshl_b32 s56, s54, 19'); A('s_lshl_b32 s57, s55, 9'); A('s_add_u32 s56, s56, s57'); A(f's_add_u32 s56, s56, {GB}')
    add64r(A, G_OUT, WS, 56); A(f's_mov_b32 {s(G_LDO)}, 2048')
    epi_mlp2(A)
    A.label('G2_end'); A('s_endpgm')
    A.fix_hazards()
    return kernel_head('g2_kernel') + A.text(), kernel_footer('g2_kernel')

def k_att():
    A = Asm('AT_')
    A('s_cmp_ge_u32 s2, 512'); A('s_cbranch_scc1 AT_end')
    load_ptrs(A, [(4, 'ws')])
    A('v_lshrrev_b32 v2, 6, v0'); A('s_nop 0'); A('v_readfirstlane_b32 s8, v2')
    A('s_lshl_b32 s9, s2, 2'); A('s_add_u32 s9, s9, s8')
    A('s_lshr_b32 s10, s9, 5'); A('s_and_b32 s11, s9, 31')
    att.att_one(A, 10, 11, 4)
    A.label('AT_end'); A('s_endpgm')
    A.fix_hazards()
    return kernel_head('att_kernel') + A.text(), kernel_footer('att_kernel', 200, 64, 200)

def k_g3():
    A = Asm('G3_')
    A('s_cmp_ge_u32 s2, 32'); A('s_cbranch_scc1 G3_end')
    load_ptrs(A, [(WS, 'ws'), (PA, 'Wo'), (PB, 'x'), (PC, 'out')])
    wave_id(A)
    A('s_and_b32 s54, s2, 3'); A('s_lshr_b32 s55, s2, 2')
    A('s_lshl_b32 s56, s55, 21'); A(f's_add_u32 s56, s56, {OB}'); add64r(A, G_X, WS, 56)
    A('s_lshl_b32 s56, s54, 9'); add64r(A, G_W, PA, 56)
    A(f's_mov_b32 {s(G_LDX)}, 8192'); A(f's_mov_b32 {s(G_LDW)}, 2048'); A(f's_mov_b32 {s(G_NST)}, 64')
    gemm_setup(A, False)
    gemm_mainloop(A, 'N', False)
    A('s_lshl_b32 s56, s55, 19'); A('s_lshl_b32 s57, s54, 9'); A('s_add_u32 s56, s56, s57')
    add64r(A, G_OUT, PC, 56); add64r(A, G_P3, PB, 56)
    A(f's_add_u32 s56, s56, {GB}'); add64r(A, G_P2, WS, 56)
    A(f's_mov_b32 {s(G_LDO)}, 2048')
    epi_final(A)
    A.label('G3_end'); A('s_endpgm')
    A.fix_hazards()
    return kernel_head('g3_kernel') + A.text(), kernel_footer('g3_kernel')

def k_chain(timing=False):
    from chain import Asm as _A
    A = Asm('C_')
    import chain as c
    EXIT = 'C_exit'
    A('s_cmp_ge_u32 s2, 256'); A('s_cbranch_scc1 C_end')
    for r, k in ((c.S_WQ, 'Wq'), (c.S_WK, 'Wk'), (c.S_WV, 'Wv'), (c.S_WO, 'Wo'), (c.S_MEM0, 'mem0'), (c.S_DBG, 'dbg'), (c.S_WS, 'ws')):
        A(f's_load_dwordx2 {s(r,2)}, s[0:1], {KA[k]}')
    A('s_waitcnt lgkmcnt(0)')
    c.ticket(A)
    A(f's_cmp_ge_u32 {s(c.S_X)}, 4'); A('s_cbranch_scc1 C_end')
    A(f's_cmp_ge_u32 {s(c.S_I)}, 32'); A('s_cbranch_scc1 C_end')
    c.chain_main(A, EXIT, False, 128)
    A('s_branch C_end')
    A.label(EXIT)
    A('v_mov_b32 v2, 40'); A('v_mov_b32 v3, 1'); A('s_mov_b64 exec, 1')
    A(f'global_atomic_add v2, v3, {s(c.S_DBG,2)}')
    A.label('C_end'); A('s_endpgm')
    A.fix_hazards()
    return kernel_head('chain_kernel') + A.text(), kernel_footer('chain_kernel')

def build():
    ks = [('prep_kernel', 256, 0, k_prep), ('g1_kernel', 440, 131072, k_g1), ('chain_kernel', 256, 163840, k_chain),
          ('g2_kernel', 32, 131072, k_g2), ('att_kernel', 512, 0, k_att), ('g3_kernel', 32, 131072, k_g3)]
    head = HEADER
    for n, g, lds, _ in ks: head += f'; @launch kernel={n} grid=({g},1,1) block=(256,1,1) lds={lds}\n'
    head += '.amdgcn_target "amdgcn-amd-amdhsa--gfx950"\n'
    body, foot = '', ''
    for n, g, lds, f in ks:
        b, ft = f(); body += b; foot += ft
    return head + body + foot

if __name__ == '__main__':
    open(sys.argv[1], 'w').write(build())
```

```python
from asmlib import *
from layout import *
from gemm import f2u
import math

def att_one(A, SSEG, SH, SWS, t0=40, flags_ld='', flags_st=''):
    P_Q, P_K, P_V, P_KM, P_VM, P_O = t0, t0+2, t0+4, t0+6, t0+8, t0+10
    T0, T1, SC = t0+12, t0+13, t0+14
    HI, = (t0+16,)
    L, N, G, T = 1, 2, 3, 4
    VQ, VV, VKM, VVM, VO = 10, 12, 14, 15, 16
    QF, KF, KMF, VF, VMF, S, P, O, X = 20, 52, 84, 100, 132, 148, 168, 180, 188
    A(f'v_and_b32 {v(L)}, 63, v0'); A(f'v_and_b32 {v(N)}, 15, {v(L)}'); A(f'v_lshrrev_b32 {v(G)}, 4, {v(L)}')
    def ptr(dst, base, expr_s):
        A(f's_add_u32 {s(T1)}, {expr_s}, {base}')
        A(f's_add_u32 {s(dst)}, {s(SWS)}, {s(T1)}'); A(f's_addc_u32 {s(dst+1)}, {s(SWS+1)}, 0')
    A(f's_lshl_b32 {s(T0)}, {s(SSEG)}, 18'); A(f's_lshl_b32 {s(T1)}, {s(SH)}, 13'); A(f's_add_u32 {s(T0)}, {s(T0)}, {s(T1)}')
    ptr(P_Q, QB, s(T0)); ptr(P_K, KB, s(T0)); ptr(P_V, VT, s(T0))
    A(f's_lshl_b32 {s(T0)}, {s(SH)}, 19'); A(f's_lshl_b32 {s(T1)}, {s(SSEG)}, 11'); A(f's_add_u32 {s(T0)}, {s(T0)}, {s(T1)}')
    ptr(P_O, OB, s(T0))
    A(f's_lshl_b32 {s(T0)}, {s(SSEG)}, 16'); A(f's_lshl_b32 {s(T1)}, {s(SH)}, 11'); A(f's_add_u32 {s(T0)}, {s(T0)}, {s(T1)}')
    ptr(P_KM, KM, s(T0)); ptr(P_VM, VM, s(T0))
    A(f's_mov_b32 {s(SC)}, 0x{f2u(128 ** -0.5 * math.log2(math.e)):08x}')
    A(f's_mov_b32 {s(HI)}, 0'); A(f's_mov_b32 {s(HI+1)}, -1')
    A(f'v_lshlrev_b32 {v(VQ)}, 4, {v(L)}'); A(f'v_add_u32 {v(VQ+1)}, 4096, {v(VQ)}')
    A(f'v_and_b32 {v(T)}, 7, {v(L)}'); A(f'v_lshlrev_b32 {v(T)}, 4, {v(T)}'); A(f'v_lshl_add_u32 {v(VKM)}, {v(G)}, 7, {v(T)}')
    A(f'v_and_b32 {v(T)}, 31, {v(L)}'); A(f'v_lshlrev_b32 {v(VVM)}, 3, {v(T)}')
    A(f'v_lshrrev_b32 {v(T)}, 2, {v(N)}'); A(f'v_lshrrev_b32 {v(T+1)}, 1, {v(T)}')
    A(f'v_xor_b32 {v(T)}, {v(T)}, {v(T+1)}'); A(f'v_and_b32 {v(T)}, 1, {v(T)}'); A(f'v_lshl_add_u32 {v(T+1)}, {v(T)}, 1, {v(T+1)}')
    A(f'v_and_b32 {v(T)}, 1, {v(G)}'); A(f'v_lshlrev_b32 {v(T)}, 1, {v(T)}'); A(f'v_lshrrev_b32 {v(T+2)}, 1, {v(G)}'); A(f'v_add_u32 {v(T)}, {v(T)}, {v(T+2)}')
    A(f'v_xor_b32 {v(T)}, {v(T)}, {v(T+1)}'); A(f'v_lshlrev_b32 {v(T)}, 4, {v(T)}')
    A(f'v_lshl_add_u32 {v(VO)}, {v(N)}, 6, {v(T)}')
    for t in range(2):
        for c in range(4):
            A(f'global_load_dwordx4 {v(QF+16*t+4*c,4)}, {v(VQ+t)}, {s(P_Q,2)} offset:{1024*c}{flags_ld}')
            A(f'global_load_dwordx4 {v(KF+16*t+4*c,4)}, {v(VQ+t)}, {s(P_K,2)} offset:{1024*c}{flags_ld}')
    for c in range(4): A(f'global_load_dwordx4 {v(KMF+4*c,4)}, {v(VKM)}, {s(P_KM,2)} offset:{512*c}{flags_ld}')
    for et in range(8):
        A(f'global_load_dwordx4 {v(VF+4*et,4)}, {v(VQ+et//4)}, {s(P_V,2)} offset:{1024*(et%4)}{flags_ld}')
        A(f'global_load_dwordx2 {v(VMF+2*et,2)}, {v(VVM)}, {s(P_VM,2)} offset:{256*et}{flags_ld}')
    A('s_waitcnt vmcnt(16)')
    tiles = [(0, KF, 0), (0, KMF, 1), (1, KF, 2), (1, KF + 16, 3), (1, KMF, 4)]
    for qt, kb, si in tiles:
        for c in range(4):
            C = '0' if c == 0 else v(S + 4*si, 4)
            A(f'v_mfma_f32_16x16x32_bf16 {v(S+4*si,4)}, {v(kb+4*c,4)}, {v(QF+16*qt+4*c,4)}, {C}')
    A(f'v_mov_b32 {v(X)}, 0xff800000')
    A(f'v_lshlrev_b32 {v(X+1)}, 2, {v(G)}')
    for i in range(4):
        A(f'v_add_u32 {v(X+2)}, {i}, {v(X+1)}')
        A(f'v_cmp_gt_u32 vcc, {v(X+2)}, {v(N)}')
        A(f'v_cndmask_b32 {v(S+i)}, {v(S+i)}, {v(X)}, vcc')
        A(f'v_cndmask_b32 {v(S+12+i)}, {v(S+12+i)}, {v(X)}, vcc')
        A(f'v_cndmask_b32 {v(S+4+i)}, {v(S+4+i)}, {v(X)}, {s(HI,2)}')
        A(f'v_cndmask_b32 {v(S+16+i)}, {v(S+16+i)}, {v(X)}, {s(HI,2)}')
    A('s_waitcnt vmcnt(0)')
    for qt, regs in ((0, list(range(S, S + 8))), (1, list(range(S + 8, S + 20)))):
        M = X + 3
        A(f'v_max3_f32 {v(M)}, {v(regs[0])}, {v(regs[1])}, {v(regs[2])}')
        k = 3
        while k + 1 < len(regs): A(f'v_max3_f32 {v(M)}, {v(M)}, {v(regs[k])}, {v(regs[k+1])}'); k += 2
        if k < len(regs): A(f'v_max_f32 {v(M)}, {v(M)}, {v(regs[k])}')
        for sw in ('v_permlane16_swap_b32', 'v_permlane32_swap_b32'):
            A(f'v_mov_b32 {v(M+1)}, {v(M)}'); A(f'{sw} {v(M)}, {v(M+1)}'); A(f'v_max_f32 {v(M)}, {v(M)}, {v(M+1)}')
        A(f'v_mul_f32 {v(M)}, {s(SC)}, {v(M)}')
        for r in regs: A(f'v_fma_f32 {v(r)}, {v(r)}, {s(SC)}, -{v(M)}')
        for r in regs: A(f'v_exp_f32 {v(r)}, {v(r)}')
        Ls = X + 5 + qt
        A(f'v_add_f32 {v(Ls)}, {v(regs[0])}, {v(regs[1])}')
        for r in regs[2:]: A(f'v_add_f32 {v(Ls)}, {v(Ls)}, {v(r)}')
        for sw in ('v_permlane16_swap_b32', 'v_permlane32_swap_b32'):
            A(f'v_mov_b32 {v(M+1)}, {v(Ls)}'); A(f'{sw} {v(Ls)}, {v(M+1)}'); A(f'v_add_f32 {v(Ls)}, {v(Ls)}, {v(M+1)}')
        A(f'v_rcp_f32 {v(Ls)}, {v(Ls)}')
        for r in regs: A(f'v_mul_f32 {v(r)}, {v(r)}, {v(Ls)}')
        if qt == 0:
            A(f'v_cvt_pk_bf16_f32 {v(P)}, {v(regs[0])}, {v(regs[1])}'); A(f'v_cvt_pk_bf16_f32 {v(P+1)}, {v(regs[2])}, {v(regs[3])}')
            A(f'v_mov_b32 {v(P+2)}, 0'); A(f'v_mov_b32 {v(P+3)}, 0')
            A(f'v_cvt_pk_bf16_f32 {v(P+4)}, {v(regs[4])}, {v(regs[5])}'); A(f'v_cvt_pk_bf16_f32 {v(P+5)}, {v(regs[6])}, {v(regs[7])}')
        else:
            for i in range(6): A(f'v_cvt_pk_bf16_f32 {v(P+6+i)}, {v(regs[2*i])}, {v(regs[2*i+1])}')
    for qt in range(2):
        Pb = P + 6 * qt
        for ep in range(4):
            pk = X + 8 if ep % 2 == 0 else X + 12
            for k in range(2):
                et = 2 * ep + k
                o = O + 4 * k
                A(f'v_mfma_f32_16x16x16_bf16 {v(o,4)}, {v(VMF+2*et,2)}, {v(Pb+4,2)}, 0')
            for k in range(2):
                et = 2 * ep + k
                o = O + 4 * k
                A(f'v_mfma_f32_16x16x32_bf16 {v(o,4)}, {v(VF+4*et,4)}, {v(Pb,4)}, {v(o,4)}')
            for k in range(2):
                o = O + 4 * k
                A(f'v_cvt_pk_bf16_f32 {v(pk+2*k)}, {v(o)}, {v(o+1)}'); A(f'v_cvt_pk_bf16_f32 {v(pk+2*k+1)}, {v(o+2)}, {v(o+3)}')
            A(f'v_permlane16_swap_b32 {v(pk)}, {v(pk+2)}'); A(f'v_permlane16_swap_b32 {v(pk+1)}, {v(pk+3)}')
            A(f'v_add_u32 {v(T)}, {ep*131072 + qt*1024}, {v(VO)}')
            A(f'global_store_dwordx4 {v(T)}, {v(pk,4)}, {s(P_O,2)}{flags_st}')
```

```python
import sys
from asmlib import *
from layout import *
import chain as c1, chain5 as c5, gemm3, ln2, att2
from gemm3 import *
from chain import kernel_head, kernel_footer

def load_ptrs(A, pairs):
    for r, k in pairs: A(f's_load_dwordx2 {s(r,2)}, s[0:1], {KA[k]}')
    A('s_waitcnt lgkmcnt(0)')

def k_prep():
    A = Asm('P_')
    A('s_cmp_ge_u32 s2, 256'); A('s_cbranch_scc1 P_end')
    load_ptrs(A, [(4, 'x'), (6, 'ws')])
    A('v_lshrrev_b32 v2, 6, v0'); A('s_nop 0'); A('v_readfirstlane_b32 s8, v2')
    A('s_lshl_b32 s9, s2, 3'); A('s_lshl_b32 s8, s8, 1'); A('s_add_u32 s9, s9, s8')
    ln2.ln_rows(A, 9, 2, 4, 6)
    A.label('P_end'); A('s_endpgm')
    A.fix_hazards()
    return kernel_head('prep_kernel') + A.text(), kernel_footer('prep_kernel', 64, 40, 64)

WS, PA, PB, PC, PD, PE = 40, 42, 44, 46, 48, 50
def run_tile(A, cfg, orient, xmode):
    setup_dma(A, cfg, xmode)
    prologue_dma(A, cfg, xmode)
    setup_reads(A, cfg, xmode)
    mainloop(A, cfg, orient, xmode)

def task_qkv(A, which, tm, tn, cfg=BIG):
    A(f's_cmp_eq_u32 {s(which)}, 1'); A(f's_cselect_b32 s56, {s(PB)}, {s(PA)}'); A(f's_cselect_b32 s57, {s(PB+1)}, {s(PA+1)}')
    A(f's_cmp_eq_u32 {s(which)}, 2'); A(f's_cselect_b32 s56, {s(PC)}, s56'); A(f's_cselect_b32 s57, {s(PC+1)}, s57')
    A(f's_lshl_b32 s58, {s(tn)}, 9'); add64r(A, G_W, 56, 58)
    A(f's_mul_i32 s58, {s(tm)}, {cfg.BM*64}'); A(f's_add_u32 s58, s58, {XN}'); add64r(A, G_X, WS, 58)
    A(f's_mov_b32 {s(G_DX)}, 131072'); A(f's_mov_b32 {s(G_LDW)}, 8192'); A(f's_mov_b32 {s(G_DW)}, {8192*32}'); A(f's_mov_b32 {s(G_NST)}, 32')
    A(f's_mul_i32 s58, {s(tm)}, {cfg.BM//32*262144}'); A(f's_lshl_b32 s59, {s(tn)}, 14'); A('s_add_u32 s58, s58, s59')
    A(f's_lshl_b32 s59, {s(which)}, 24'); A('s_add_u32 s58, s58, s59'); A(f's_add_u32 s58, s58, {QB}')
    add64r(A, G_OUT, WS, 58)

def k_g1(small=False):
    A = Asm('G1_')
    A('s_cmp_ge_u32 s2, 440'); A('s_cbranch_scc1 G1_end')
    load_ptrs(A, [(WS, 'ws'), (PA, 'Wq'), (PB, 'Wk'), (PC, 'Wv'), (PD, 'w1'), (PE, 'b1')])
    wave_id(A)
    A('s_cmp_ge_u32 s2, 384'); A('s_cbranch_scc1 G1_mlp')
    A('s_lshr_b32 s52, s2, 7'); A('s_and_b32 s53, s2, 127')
    A('s_and_b32 s54, s53, 7'); A('s_lshl_b32 s54, s54, 1'); A('s_bfe_u32 s55, s53, 0x10003'); A('s_add_u32 s54, s54, s55')
    A('s_lshr_b32 s55, s53, 4')
    task_qkv(A, 52, 55, 54)
    A('s_cmp_eq_u32 s52, 2'); A('s_cbranch_scc1 G1_v')
    run_tile(A, BIG, 'N', 'blk'); epi_qk(A, BIG)
    A('s_endpgm')
    A.label('G1_v')
    run_tile(A, BIG, 'M', 'blk'); epi_v(A, BIG)
    A('s_endpgm')
    A.label('G1_mlp')
    A('s_sub_u32 s53, s2, 384'); A('s_and_b32 s55, s53, 3'); A('s_lshr_b32 s54, s53, 2')
    A('s_lshl_b32 s56, s55, 9'); A(f's_add_u32 s56, s56, {HT}'); add64r(A, G_X, WS, 56)
    A('s_lshl_b32 s56, s54, 9'); add64r(A, G_W, PD, 56); add64r(A, G_P2, PE, 56)
    A(f's_mov_b32 {s(G_LDX)}, 2048'); A(f's_mov_b32 {s(G_DX)}, {2048*32}'); A(f's_mov_b32 {s(G_LDW)}, 7168'); A(f's_mov_b32 {s(G_DW)}, {7168*32}'); A(f's_mov_b32 {s(G_NST)}, 64')
    run_tile(A, BIG, 'N', 'tr')
    A('s_lshl_b32 s56, s54, 19'); A('s_lshl_b32 s57, s55, 14'); A('s_add_u32 s56, s56, s57'); A(f's_add_u32 s56, s56, {UB}')
    add64r(A, G_OUT, WS, 56)
    epi_mlp1(A, BIG)
    A.label('G1_end'); A('s_endpgm')
    A.fix_hazards()
    return kernel_head('g1_kernel') + A.text(), kernel_footer('g1_kernel')

def k_g2():
    A = Asm('G2_')
    A('s_cmp_ge_u32 s2, 32'); A('s_cbranch_scc1 G2_end')
    load_ptrs(A, [(WS, 'ws'), (PA, 'w2'), (PB, 'b2')])
    wave_id(A)
    A('s_and_b32 s55, s2, 3'); A('s_lshr_b32 s54, s2, 2')
    A('s_lshl_b32 s56, s55, 14'); A(f's_add_u32 s56, s56, {UB}'); add64r(A, G_X, WS, 56)
    A('s_lshl_b32 s56, s54, 9'); add64r(A, G_W, PA, 56); add64r(A, G_P2, PB, 56)
    A(f's_mov_b32 {s(G_DX)}, 65536'); A(f's_mov_b32 {s(G_LDW)}, 4096'); A(f's_mov_b32 {s(G_DW)}, {4096*32}'); A(f's_mov_b32 {s(G_NST)}, 112')
    run_tile(A, BIG, 'M', 'blk')
    A('s_lshl_b32 s56, s54, 19'); A('s_lshl_b32 s57, s55, 9'); A('s_add_u32 s56, s56, s57'); A(f's_add_u32 s56, s56, {GB}')
    add64r(A, G_OUT, WS, 56)
    epi_mlp2(A, BIG)
    A.label('G2_end'); A('s_endpgm')
    A.fix_hazards()
    return kernel_head('g2_kernel') + A.text(), kernel_footer('g2_kernel')

def k_att():
    A = Asm('AT_')
    A('s_cmp_ge_u32 s2, 512'); A('s_cbranch_scc1 AT_end')
    load_ptrs(A, [(4, 'ws')])
    A('v_lshrrev_b32 v2, 6, v0'); A('s_nop 0'); A('v_readfirstlane_b32 s8, v2')
    A('s_lshl_b32 s9, s2, 2'); A('s_add_u32 s9, s9, s8')
    A('s_lshr_b32 s10, s9, 5'); A('s_and_b32 s11, s9, 31')
    att2.att_one(A, 10, 11, 4)
    A.label('AT_end'); A('s_endpgm')
    A.fix_hazards()
    return kernel_head('att_kernel') + A.text(), kernel_footer('att_kernel', 208, 64, 208)

def k_g3():
    A = Asm('G3_')
    A('s_cmp_ge_u32 s2, 32'); A('s_cbranch_scc1 G3_end')
    load_ptrs(A, [(WS, 'ws'), (PA, 'Wo'), (PB, 'x'), (PC, 'out')])
    wave_id(A)
    A('s_and_b32 s54, s2, 3'); A('s_lshr_b32 s55, s2, 2')
    A('s_lshl_b32 s56, s55, 14'); A(f's_add_u32 s56, s56, {OB}'); add64r(A, G_X, WS, 56)
    A('s_lshl_b32 s56, s54, 9'); add64r(A, G_W, PA, 56)
    A(f's_mov_b32 {s(G_DX)}, 131072'); A(f's_mov_b32 {s(G_LDW)}, 2048'); A(f's_mov_b32 {s(G_DW)}, {2048*32}'); A(f's_mov_b32 {s(G_NST)}, 128')
    run_tile(A, BIG, 'N', 'blk')
    A('s_lshl_b32 s56, s55, 19'); A('s_lshl_b32 s57, s54, 9'); A('s_add_u32 s56, s56, s57')
    add64r(A, G_OUT, PC, 56); add64r(A, G_P3, PB, 56)
    A(f's_add_u32 s56, s56, {GB}'); add64r(A, G_P2, WS, 56)
    epi_final(A, BIG)
    A.label('G3_end'); A('s_endpgm')
    A.fix_hazards()
    return kernel_head('g3_kernel') + A.text(), kernel_footer('g3_kernel')

CH_KW = dict(sleep_a=1, sleep_c=1, gap=8, sd=6, rd=1)
def k_chain():
    A = Asm('C_')
    EXIT = 'C_exit'
    A('s_cmp_ge_u32 s2, 256'); A('s_cbranch_scc1 C_end')
    for r, k in ((c1.S_WQ, 'Wq'), (c1.S_WK, 'Wk'), (c1.S_WV, 'Wv'), (c1.S_WO, 'Wo'), (c1.S_MEM0, 'mem0'), (c1.S_DBG, 'dbg'), (c1.S_WS, 'ws')):
        A(f's_load_dwordx2 {s(r,2)}, s[0:1], {KA[k]}')
    A('s_waitcnt lgkmcnt(0)')
    c1.ticket(A)
    A(f's_cmp_ge_u32 {s(c1.S_X)}, 4'); A('s_cbranch_scc1 C_end')
    A(f's_cmp_ge_u32 {s(c1.S_I)}, 32'); A('s_cbranch_scc1 C_end')
    c5.chain_main(A, EXIT, False, 128, **CH_KW)
    A('s_branch C_end')
    A.label(EXIT)
    A('v_mov_b32 v2, 40'); A('v_mov_b32 v3, 1'); A('s_mov_b64 exec, 1')
    A(f'global_atomic_add v2, v3, {s(c1.S_DBG,2)}')
    A.label('C_end'); A('s_endpgm')
    A.fix_hazards()
    return kernel_head('chain_kernel') + A.text(), kernel_footer('chain_kernel')

def build(ks=None):
    ks = ks or [('prep_kernel', 256, 0, k_prep), ('g1_kernel', 440, 131072, k_g1), ('chain_kernel', 256, 163840, k_chain),
          ('g2_kernel', 32, 131072, k_g2), ('att_kernel', 512, 0, k_att), ('g3_kernel', 32, 131072, k_g3)]
    head = HEADER
    for n, g, lds, _ in ks: head += f'; @launch kernel={n} grid=({g},1,1) block=(256,1,1) lds={lds}\n'
    head += '.amdgcn_target "amdgcn-amd-amdhsa--gfx950"\n'
    body, foot = '', ''
    for n, g, lds, f in ks:
        b, ft = f(); body += b; foot += ft
    return head + body + foot

if __name__ == '__main__':
    open(sys.argv[1], 'w').write(build())
```

```python
from asmlib import *
from layout import *
import chain as c1
from chain import (poll, add64, add64s, S_WQ, S_WK, S_WV, S_WO, S_MEM0, S_DBG, S_WS, S_X, S_I, S_W, S_H, S_J, S_STEP,
                   P_MEM, P_QK, P_OX, P_PART, P_KX, P_VX, P_KM, P_VM, S_T0, S_T1, S_T2, S_T3, S_EVEN, S_SC, S_RETRY, S_LO16, S_HI32,
                   S_TM0, S_TM1, S_ACC, POLL_LIMIT, STEP_MEM, STEP_QK, STEP_OX, STEP_PART, STEP_KX, STEP_VX, STEP_KM,
                   kernel_head, kernel_footer, ticket, chain_barrier, set_ptrs, stamp)
import struct, math

V_L, V_N, V_G, V_L16, V_QKST, V_QLD, V_KX0, V_KX1, V_VX0, V_VX1, V_OST, V_MST, V_RQK, V_IDX, V_RWO = 1, 2, 3, 4, 5, 6, 7, 8, 9, 10, 11, 12, 13, 14, 15
V_ONES = 16
V_FMEM, V_FQK, V_FOX, V_FPART, V_VMST, V_VPLD, V_T = 20, 21, 22, 23, 24, 25, 26
V_WQ, V_PST, V_KKEEP = 32, 33, 34
V_RQ4 = 112
V_WL2, V_WL1 = 36, 37
V_POLL = 40
V_ACC = 56
V_R = 80
V_KXF, V_VXF, V_QF, V_KMF, V_S, V_P, V_VMF, V_O, V_X = 128, 160, 168, 184, 200, 212, 218, 222, 230
c1.V_T = V_T

B_MEM, B_QK, B_OX, B_PART = 56, 58, 96, 98
RING = 4
LDS_QK, LDS_VP, LDS_WOP = 0, 8192, 12288
A_QKV, A_WO = 0, 192

def load_weights(A):
    vG, vR, vT = V_T, V_T + 1, V_T + 2
    A(f'v_lshrrev_b32 {v(vT)}, 1, {v(V_L)}')
    A(f'v_and_b32 {v(vT+1)}, 1, {v(V_L)}')
    A(f'v_lshlrev_b32 {v(vT+1)}, 4, {v(vT+1)}')
    A(f'v_lshl_add_u32 {v(vG)}, {v(vT)}, 13, {v(vT+1)}')
    A(f'v_lshl_add_u32 {v(vT+2)}, {v(vT)}, 11, {v(vT+1)}')
    vGo = vT + 2
    A(f'v_lshrrev_b32 {v(vT)}, 2, {v(V_N)}')
    A(f'v_lshl_add_u32 {v(vT)}, {v(V_G)}, 3, {v(vT)}')
    A(f'v_lshlrev_b32 {v(vT)}, 5, {v(vT)}')
    A(f'v_and_b32 {v(vT+1)}, 3, {v(V_N)}')
    A(f'v_lshl_add_u32 {v(vR)}, {v(vT+1)}, 3, {v(vT)}')
    A(f's_lshl_b32 {s(S_T0)}, {s(S_W)}, 15')
    A(f'v_add_u32 {v(vR)}, {s(S_T0)}, {v(vR)}')
    PQ, PK, PV_, PO = P_MEM, P_QK, P_KM, P_OX
    A(f's_lshl_b32 {s(S_T0)}, {s(S_H)}, 8'); A(f's_lshl_b32 {s(S_T1)}, {s(S_J)}, 6'); A(f's_add_u32 {s(S_T0)}, {s(S_T0)}, {s(S_T1)}')
    A(f's_lshl_b32 {s(S_T1)}, {s(S_W)}, 21'); A(f's_add_u32 {s(S_T0)}, {s(S_T0)}, {s(S_T1)}')
    add64s(A, PQ, S_WQ, S_T0); add64s(A, PK, S_WK, S_T0); add64s(A, PV_, S_WV, S_T0)
    A(f's_lshl_b32 {s(S_T0)}, {s(S_X)}, 21'); A(f's_lshl_b32 {s(S_T1)}, {s(S_W)}, 19'); A(f's_add_u32 {s(S_T0)}, {s(S_T0)}, {s(S_T1)}')
    A(f's_lshl_b32 {s(S_T1)}, {s(S_I)}, 6'); A(f's_add_u32 {s(S_T0)}, {s(S_T0)}, {s(S_T1)}')
    add64s(A, PO, S_WO, S_T0)
    A(f's_lshl_b32 {s(S_T3)}, {s(S_W)}, 15')
    def dma_block(base, voff, rowstride, k0, coloff, slot):
        for half in range(2):
            add64(A, S_T0, base, (k0 + 32 * half) * rowstride + coloff)
            A(f's_add_u32 m0, {s(S_T3)}, {slot * 2048 + half * 1024}')
            A('s_nop 0')
            A(f'global_load_lds_dwordx4 {v(voff)}, {s(S_T0,2)}')
    def read_block(slot, areg):
        for q, off in enumerate((0, 128, 1024, 1152)):
            A(f'ds_read_b64_tr_b16 {a(areg + 2*q, 2)}, {v(vR)} offset:{slot * 2048 + off}')
    blocks = []
    for cch in range(4):
        for t in range(6):
            blocks.append(((PQ, PK, PV_)[t // 2], vG, 8192, 64 * cch, 32 * (t % 2), A_QKV + 8 * (6 * cch + t)))
    for cch in range(4):
        for t in range(2): blocks.append((PO, vGo, 2048, 64 * cch, 32 * t, A_WO + 8 * (2 * cch + t)))
    for rnd in range(2):
        bl = blocks[16 * rnd:16 * rnd + 16]
        for k, b in enumerate(bl): dma_block(b[0], b[1], b[2], b[3], b[4], k)
        A('s_waitcnt vmcnt(0)')
        for k, b in enumerate(bl): read_block(k, b[5])
        A('s_waitcnt lgkmcnt(0)')

def lane_setup(A):
    T = V_T
    A(f'v_and_b32 {v(V_L)}, 63, v0')
    A(f'v_lshrrev_b32 {v(T)}, 6, v0'); A('s_nop 0')
    A(f'v_readfirstlane_b32 {s(S_W)}, {v(T)}')
    A(f'v_and_b32 {v(V_N)}, 15, {v(V_L)}'); A(f'v_lshrrev_b32 {v(V_G)}, 4, {v(V_L)}'); A(f'v_lshlrev_b32 {v(V_L16)}, 4, {v(V_L)}')
    A(f's_lshr_b32 {s(S_T0)}, {s(S_I)}, 2'); A(f's_lshl_b32 {s(S_H)}, {s(S_X)}, 3'); A(f's_add_u32 {s(S_H)}, {s(S_H)}, {s(S_T0)}')
    A(f's_and_b32 {s(S_J)}, {s(S_I)}, 3')
    A(f's_mov_b32 {s(S_LO16)}, 0x00ff00ff'); A(f's_mov_b32 {s(S_LO16+1)}, 0x00ff00ff')
    A(f's_mov_b32 {s(S_HI32)}, 0'); A(f's_mov_b32 {s(S_HI32+1)}, -1')
    cc = 128 ** -0.5 * math.log2(math.e)
    A(f's_mov_b32 {s(S_SC)}, 0x{struct.unpack("<I", struct.pack("<f", cc))[0]:08x}')
    for k in range(4): A(f'v_mov_b32 {v(V_ONES+k)}, -1')
    A(f'v_mov_b32 {v(T)}, 0xeeee'); A(f'v_mov_b32 {v(T+1)}, 0x4444')
    A(f'v_cndmask_b32 {v(V_IDX)}, {v(T)}, {v(T+1)}, {s(S_LO16,2)}')
    A(f's_lshl_b32 {s(S_T0)}, {s(S_W)}, 12'); A(f'v_add_u32 {v(V_WQ)}, {s(S_T0)}, {v(V_L16)}')
    A(f's_lshl_b32 {s(S_T0)}, {s(S_W)}, 11'); A(f'v_add_u32 {v(V_WL2)}, {s(S_T0)}, {v(V_L16)}')
    A(f's_lshl_b32 {s(S_T0)}, {s(S_W)}, 10'); A(f'v_add_u32 {v(V_WL1)}, {s(S_T0)}, {v(V_L16)}')
    A(f'v_lshrrev_b32 {v(T)}, 3, {v(V_L)}'); A(f'v_and_b32 {v(T+1)}, 7, {v(V_L)}')
    A(f'v_lshrrev_b32 {v(T+2)}, 2, {v(T)}'); A(f'v_lshlrev_b32 {v(T+2)}, 8, {v(T+2)}')
    A(f'v_lshl_add_u32 {v(T+2)}, {v(T+1)}, 5, {v(T+2)}')
    A(f'v_and_b32 {v(T+3)}, 3, {v(T)}'); A(f'v_lshl_add_u32 {v(T+2)}, {v(T+3)}, 2, {v(T+2)}')
    A(f's_lshr_b32 {s(S_T0)}, {s(S_W)}, 1'); A(f's_lshl_b32 {s(S_T0)}, {s(S_T0)}, 10')
    A(f's_and_b32 {s(S_T1)}, {s(S_W)}, 1'); A(f's_lshl_b32 {s(S_T1)}, {s(S_T1)}, 9'); A(f's_add_u32 {s(S_T0)}, {s(S_T0)}, {s(S_T1)}')
    A(f'v_add_u32 {v(V_RQ4)}, {s(S_T0)}, {v(T+2)}')
    for k in range(1, 4): A(f'v_add_u32 {v(V_RQ4+k)}, 2048, {v(V_RQ4+k-1)}')
    A(f'v_lshrrev_b32 {v(T+2)}, 2, {v(T+1)}'); A(f'v_lshlrev_b32 {v(T+2)}, 7, {v(T+2)}')
    A(f'v_lshl_add_u32 {v(T+2)}, {v(T)}, 4, {v(T+2)}')
    A(f'v_and_b32 {v(T+3)}, 3, {v(T+1)}'); A(f'v_lshl_add_u32 {v(T+2)}, {v(T+3)}, 2, {v(T+2)}')
    A(f's_lshr_b32 {s(S_T0)}, {s(S_W)}, 1'); A(f's_lshl_b32 {s(S_T0)}, {s(S_T0)}, 11')
    A(f's_lshl_b32 {s(S_T1)}, {s(S_J)}, 9'); A(f's_add_u32 {s(S_T0)}, {s(S_T0)}, {s(S_T1)}')
    A(f's_and_b32 {s(S_T1)}, {s(S_W)}, 1'); A(f's_lshl_b32 {s(S_T1)}, {s(S_T1)}, 8'); A(f's_add_u32 {s(S_T0)}, {s(S_T0)}, {s(S_T1)}')
    A(f'v_add_u32 {v(V_QKST)}, {s(S_T0)}, {v(T+2)}')
    A(f'v_and_b32 {v(T)}, 7, {v(V_L)}'); A(f'v_lshlrev_b32 {v(T)}, 4, {v(T)}'); A(f'v_lshl_add_u32 {v(V_QLD)}, {v(V_G)}, 7, {v(T)}')
    A(f's_lshl_b32 {s(S_T0)}, {s(S_H)}, 13')
    A(f'v_add_u32 {v(V_KX0)}, {s(S_T0)}, {v(V_L16)}'); A(f'v_add_u32 {v(V_KX1)}, 4096, {v(V_KX0)}')
    A(f's_lshl_b32 {s(S_T1)}, {s(S_J)}, 11'); A(f's_add_u32 {s(S_T0)}, {s(S_T0)}, {s(S_T1)}')
    A(f'v_add_u32 {v(V_VX0)}, {s(S_T0)}, {v(V_L16)}')
    A(f'v_lshrrev_b32 {v(T)}, 3, {v(V_N)}'); A(f'v_lshlrev_b32 {v(T)}, 4, {v(T)}')
    A(f'v_and_b32 {v(T+1)}, 7, {v(V_N)}'); A(f'v_add_u32 {v(T)}, {v(T)}, {v(T+1)}')
    A(f'v_lshlrev_b32 {v(T)}, 4, {v(T)}'); A(f'v_lshl_add_u32 {v(T)}, {v(V_G)}, 2, {v(T)}')
    A(f's_lshl_b32 {s(S_T0)}, {s(S_I)}, 9')
    A(f'v_add_u32 {v(V_OST)}, {s(S_T0)}, {v(T)}')
    A(f'v_lshrrev_b32 {v(T)}, 5, {v(V_L)}'); A(f'v_lshlrev_b32 {v(T)}, 4, {v(T)}')
    A(f'v_bfe_u32 {v(T+1)}, {v(V_L)}, 3, 1'); A(f'v_lshl_add_u32 {v(T)}, {v(T+1)}, 2, {v(T)}')
    A(f'v_bfe_u32 {v(T+1)}, {v(V_L)}, 1, 2'); A(f'v_add_u32 {v(T)}, {v(T)}, {v(T+1)}')
    A(f'v_and_b32 {v(T+1)}, 1, {v(V_L)}'); A(f'v_lshl_add_u32 {v(T)}, {v(T+1)}, 3, {v(T)}')
    A(f'v_lshlrev_b32 {v(T)}, 4, {v(T)}')
    A(f'v_bfe_u32 {v(T+1)}, {v(V_L)}, 4, 1'); A(f'v_lshl_add_u32 {v(T)}, {v(T+1)}, 3, {v(T)}')
    A(f'v_add_u32 {v(V_MST)}, {s(S_T0)}, {v(T)}')
    A(f'v_and_b32 {v(T)}, 1, {v(V_L)}')
    A(f'v_bfe_u32 {v(T+1)}, {v(V_L)}, 1, 1'); A(f'v_lshl_add_u32 {v(T)}, {v(T+1)}, 2, {v(T)}')
    A(f'v_bfe_u32 {v(T+1)}, {v(V_L)}, 2, 1'); A(f'v_lshl_add_u32 {v(T)}, {v(T+1)}, 1, {v(T)}')
    A(f'v_lshrrev_b32 {v(T+1)}, 5, {v(V_L)}'); A(f'v_lshl_add_u32 {v(T)}, {v(T+1)}, 4, {v(T)}')
    A(f'v_lshlrev_b32 {v(T)}, 4, {v(T)}')
    A(f'v_bfe_u32 {v(T+1)}, {v(V_L)}, 3, 2'); A(f'v_lshl_add_u32 {v(T)}, {v(T+1)}, 2, {v(T)}')
    A(f's_lshr_b32 {s(S_T0)}, {s(S_W)}, 1'); A(f's_lshl_b32 {s(S_T0)}, {s(S_T0)}, 9')
    A(f's_and_b32 {s(S_T1)}, {s(S_W)}, 1'); A(f's_lshl_b32 {s(S_T1)}, {s(S_T1)}, 7'); A(f's_add_u32 {s(S_T0)}, {s(S_T0)}, {s(S_T1)}')
    A(f'v_add_u32 {v(V_RWO)}, {s(S_T0)}, {v(T)}')
    A(f's_lshl_b32 {s(S_T0)}, {s(S_X)}, 10'); A(f's_lshl_b32 {s(S_T1)}, {s(S_W)}, 8'); A(f's_add_u32 {s(S_T0)}, {s(S_T0)}, {s(S_T1)}')
    A(f'v_lshlrev_b32 {v(T)}, 2, {v(V_L)}'); A(f'v_add_u32 {v(V_PST)}, {s(S_T0)}, {v(T)}')
    A(f's_lshl_b32 {s(S_T0)}, {s(S_I)}, 9')
    A(f'v_add_u32 {v(V_FMEM)}, {s(S_T0)}, {v(V_L16)}'); A(f'v_mov_b32 {v(V_FOX)}, {v(V_FMEM)}')
    A(f'v_and_b32 {v(T)}, 31, {v(V_L)}'); A(f'v_lshlrev_b32 {v(T)}, 4, {v(T)}')
    A(f'v_lshrrev_b32 {v(T+1)}, 5, {v(V_L)}'); A(f'v_lshl_add_u32 {v(T)}, {v(T+1)}, 11, {v(T)}')
    A(f's_lshl_b32 {s(S_T1)}, {s(S_J)}, 9'); A(f'v_add_u32 {v(V_FQK)}, {s(S_T1)}, {v(T)}')
    A(f's_lshl_b32 {s(S_T1)}, {s(S_X)}, 10'); A(f'v_add_u32 {v(V_FPART)}, {s(S_T1)}, {v(V_L16)}')
    A(f'v_and_b32 {v(T)}, 31, {v(V_L)}'); A(f'v_lshlrev_b32 {v(T)}, 3, {v(T)}')
    A(f's_lshl_b32 {s(S_T1)}, {s(S_J)}, 9'); A(f'v_add_u32 {v(V_VMST)}, {s(S_T1)}, {v(T)}')
    A(f'v_and_b32 {v(T)}, 31, {v(V_L)}'); A(f'v_lshlrev_b32 {v(V_VPLD)}, 4, {v(T)}')

def slot_ptr(A, dst, base, ahead, size):
    A(f's_add_u32 {s(S_T2)}, {s(S_STEP)}, {ahead}'); A(f's_and_b32 {s(S_T2)}, {s(S_T2)}, {RING-1}')
    A(f's_mul_i32 {s(S_T2)}, {s(S_T2)}, {size}')
    add64s(A, dst, base, S_T2)

def fill_slots(A, ahead, touch=False):
    T = S_T0
    def st(vo, flags=''):
        A(f'global_store_dwordx4 {v(vo)}, {v(V_ONES,4)}, {s(T,2)}{flags}')
        if touch:
            A('s_waitcnt vmcnt(0)')
            A(f'global_load_dwordx4 {v(V_POLL,4)}, {v(vo)}, {s(T,2)} sc1')
            A('s_waitcnt vmcnt(0)')
    slot_ptr(A, T, B_QK, ahead, STEP_QK); st(V_FQK)
    slot_ptr(A, T, B_PART, ahead, STEP_PART); st(V_FPART, ' sc1')
    A('s_mov_b32 exec_hi, 0')
    slot_ptr(A, T, B_MEM, ahead + 1, STEP_MEM); st(V_FMEM)
    slot_ptr(A, T, B_OX, ahead, STEP_OX); st(V_FOX)
    A('s_mov_b64 exec, -1')

def cur_ptrs(A):
    A(f's_and_b32 {s(S_T3)}, {s(S_STEP)}, {RING-1}')
    for p, b, sz in ((P_MEM, B_MEM, STEP_MEM), (P_QK, B_QK, STEP_QK), (P_OX, B_OX, STEP_OX), (P_PART, B_PART, STEP_PART)):
        A(f's_mul_i32 {s(S_T2)}, {s(S_T3)}, {sz}'); add64s(A, p, b, S_T2)

def advance_ptrs(A):
    for p in (P_KM, P_VM): add64(A, p, p, STEP_KM)

def prefetch_kv(A):
    for t, vo in ((0, V_KX0), (1, V_KX1)):
        for cc in range(4):
            A(f'global_load_dwordx4 {v(V_KXF + 16*t + 4*cc, 4)}, {v(vo)}, {s(P_KX,2)} offset:{1024*cc} sc1')
    for et in range(2):
        A(f'global_load_dwordx4 {v(V_VXF + 4*et, 4)}, {v(V_VX0)}, {s(P_VX,2)} offset:{1024*et} sc1')

RS = dict(rs=0, rd=0, rq=0, sd=0, sq=0, gap=0)
def scalar_prefetch(A, which):
    L = A.newlabel('nsp')
    A(f's_cmp_ge_u32 {s(S_STEP)}, 62'); A(f's_cbranch_scc1 {L}')
    A(f's_add_u32 {s(S_T2)}, {s(S_STEP)}, 2'); A(f's_lshl_b32 {s(S_T2)}, {s(S_T2)}, 18')
    A(f's_lshl_b32 {s(S_T3)}, {s(S_H)}, 13'); A(f's_add_u32 {s(S_T2)}, {s(S_T2)}, {s(S_T3)}')
    A(f's_lshl_b32 {s(S_T3)}, {s(S_J)}, 11'); A(f's_add_u32 {s(S_T2)}, {s(S_T2)}, {s(S_T3)}')
    A(f's_add_u32 {s(S_T2)}, {s(S_T2)}, {KB if which == 0 else VT}')
    add64s(A, S_T0, S_WS, S_T2)
    for r in range(32): A(f's_load_dword s55, {s(S_T0,2)}, {r*64}')
    A.label(L)

def chunk_pipeline(A, ptr, mf, EXIT, extra_first=(), nochk=False):
    ld = lambda cc: f'global_load_dwordx4 {v(V_POLL+4*cc,4)}, {v(V_WQ)}, {s(ptr,2)} offset:{1024*cc} sc1'
    CK = V_T
    def chk_valu(cc):
        r = V_POLL + 4 * cc
        return [f'v_max3_u32 {v(CK)}, {v(r)}, {v(r+1)}, {v(r+2)}', f'v_max_u32 {v(CK)}, {v(CK)}, {v(r+3)}', f'v_cmp_eq_u32 vcc, -1, {v(CK)}']
    R = [A.newlabel('rt') for _ in range(4)]
    B = [A.newlabel('bd') for _ in range(4)]
    DONE = A.newlabel('cdone')
    A(f's_mov_b32 {s(S_RETRY)}, 0')
    ex = list(extra_first)
    gap = RS['gap']
    for cc in range(4):
        A(ld(cc))
        if cc < 3:
            n = 0
            while ex and n < gap: A(ex.pop(0)); n += 1
            while n < gap: A('v_nop'); n += 1
    for x in ex: A(x)
    A('s_waitcnt vmcnt(3)')
    for x in chk_valu(0): A(x)
    if not nochk: A(f's_cbranch_vccnz {R[0]}')
    for cc in range(4):
        A.label(B[cc])
        m = mf(cc)
        if cc < 3:
            A(m[0])
            A(f's_waitcnt vmcnt({2-cc})')
            ck = chk_valu(cc + 1)
            rest = m[1:]
            for k, x in enumerate(ck):
                A(x)
                if k < len(rest): A(rest[k])
            for x in rest[len(ck):]: A(x)
            if not nochk: A(f's_cbranch_vccnz {R[cc+1]}')
        else:
            for x in m: A(x)
    A(f's_branch {DONE}')
    for cc in range(4):
        A.label(R[cc])
        A(f's_add_u32 {s(S_RETRY)}, {s(S_RETRY)}, 1')
        A(f's_cmp_ge_u32 {s(S_RETRY)}, {POLL_LIMIT}'); A(f's_cbranch_scc1 {EXIT}')
        for k in range(cc, 4): A(ld(k))
        A(f's_waitcnt vmcnt({3-cc})')
        for x in chk_valu(cc): A(x)
        A(f's_cbranch_vccnz {R[cc]}')
        A(f's_branch {B[cc]}')
    A.label(DONE)

def poll2(A, loads, regs, tmp, exit_label, first_sleep, retry_sleep):
    L = A.newlabel('poll'); D = A.newlabel('polld')
    A(f's_mov_b32 {s(S_RETRY)}, 0')
    if first_sleep: A(f's_sleep {first_sleep}')
    A.label(L)
    for ld in loads: A(ld)
    A('s_waitcnt vmcnt(0)')
    r = list(regs)
    A(f'v_max3_u32 {v(tmp)}, {v(r[0])}, {v(r[1])}, {v(r[2])}')
    k = 3
    while k + 1 < len(r):
        A(f'v_max3_u32 {v(tmp)}, {v(tmp)}, {v(r[k])}, {v(r[k+1])}'); k += 2
    if k < len(r): A(f'v_max_u32 {v(tmp)}, {v(tmp)}, {v(r[k])}')
    A(f'v_cmp_eq_u32 vcc, -1, {v(tmp)}')
    A(f's_cbranch_vccz {D}')
    if retry_sleep: A(f's_sleep {retry_sleep}')
    A(f's_add_u32 {s(S_RETRY)}, {s(S_RETRY)}, 1')
    A(f's_cmp_lt_u32 {s(S_RETRY)}, {POLL_LIMIT}')
    A(f's_cbranch_scc1 {L}')
    A(f's_branch {exit_label}')
    A.label(D)

def step_body(A, EXIT, timing, sleep_a=0, sleep_c=0, rs=0, rd=0, rq=0, sd=0, sq=0, nopf=0, nofill=0, nokm=0, spf=0, gap=8, na=0, nc=0, nq=0, nd=0):
    RS.update(rs=rs, rd=rd, rq=rq, sd=sd, sq=sq, gap=gap)
    W_ATT = 3
    SM = 'v_smfmac_f32_16x16x64_bf16'
    zero = [f'v_mov_b32 {v(V_ACC+k)}, 0' for k in range(24)]
    if sleep_a: A(f's_sleep {sleep_a}')
    chunk_pipeline(A, P_MEM, lambda cc: [f'{SM} {v(V_ACC+4*t,4)}, {v(V_POLL+4*cc,4)}, {a(A_QKV+8*(6*cc+t),8)}, {v(V_IDX)}' for t in range(4)], EXIT, zero, na)
    stamp(A, 0, timing)
    vs = [f'{SM} {v(V_ACC+16+4*t,4)}, {v(V_POLL+4*cc,4)}, {a(A_QKV+8*(6*cc+4+t),8)}, {v(V_IDX)}' for cc in range(4) for t in range(2)]
    Q0 = V_ACC
    A(vs[0]); A(vs[1])
    for i in range(4): A(f'v_permlane32_swap_b32 {v(Q0+i)}, {v(Q0+4+i)}')
    A(vs[2])
    for i in (0, 2): A(f'v_pk_add_f32 {v(Q0+i,2)}, {v(Q0+i,2)}, {v(Q0+4+i,2)}')
    A(f'v_permlane32_swap_b32 {v(Q0+8)}, {v(Q0+12)}'); A(f'v_permlane32_swap_b32 {v(Q0+9)}, {v(Q0+13)}')
    A(f'ds_write_b128 {v(V_WL2)}, {v(Q0,4)} offset:{LDS_QK}')
    A(vs[3])
    A(f'v_permlane32_swap_b32 {v(Q0+10)}, {v(Q0+14)}'); A(f'v_permlane32_swap_b32 {v(Q0+11)}, {v(Q0+15)}')
    for i in (0, 2): A(f'v_pk_add_f32 {v(Q0+8+i,2)}, {v(Q0+8+i,2)}, {v(Q0+12+i,2)}')
    A(f'ds_write_b128 {v(V_WL2)}, {v(Q0+8,4)} offset:{LDS_QK + 1024}')
    A(vs[4])
    A('s_waitcnt lgkmcnt(0)')
    A('s_barrier')
    stamp(A, 8, timing)
    R = V_R
    for ws in range(4): A(f'ds_read2_b32 {v(R+2*ws,2)}, {v(V_RQ4+ws)} offset0:{LDS_QK//4} offset1:{LDS_QK//4+4}')
    A(vs[5]); A(vs[6]); A(vs[7])
    A('s_waitcnt lgkmcnt(0)')
    A(f'v_pk_add_f32 {v(R,2)}, {v(R,2)}, {v(R+2,2)}'); A(f'v_pk_add_f32 {v(R+4,2)}, {v(R+4,2)}, {v(R+6,2)}')
    A(f'v_pk_add_f32 {v(R,2)}, {v(R,2)}, {v(R+4,2)}')
    A(f'v_cvt_pk_bf16_f32 {v(V_KKEEP)}, {v(R)}, {v(R+1)}')
    A(f'global_store_dword {v(V_QKST)}, {v(V_KKEEP)}, {s(P_QK,2)}')
    stamp(A, 1, timing)
    for i in range(4): A(f'v_permlane32_swap_b32 {v(V_ACC+16+i)}, {v(V_ACC+20+i)}')
    for i in (0, 2): A(f'v_pk_add_f32 {v(V_ACC+16+i,2)}, {v(V_ACC+16+i,2)}, {v(V_ACC+20+i,2)}')
    A(f'ds_write_b128 {v(V_WL1)}, {v(V_ACC+16,4)} offset:{LDS_VP}')
    A('s_waitcnt lgkmcnt(0)')
    A('s_barrier')
    LB = A.newlabel('noatt')
    A(f's_cmp_lg_u32 {s(S_W)}, {W_ATT}'); A(f's_cbranch_scc1 {LB}')
    X = V_X
    loads = [f'global_load_dwordx4 {v(V_QF+4*cc,4)}, {v(V_QLD)}, {s(P_QK,2)} offset:{512*cc} sc1' for cc in range(4)]
    loads += [f'global_load_dwordx4 {v(V_KMF+4*cc,4)}, {v(V_QLD)}, {s(P_QK,2)} offset:{2048+512*cc} sc1' for cc in range(4)]
    for et in range(2):
        for ws in range(4):
            A(f'ds_read_b128 {v(R + 16*et + 4*ws, 4)}, {v(V_VPLD)} offset:{LDS_VP + ws*1024 + et*512}')
    A('s_waitcnt lgkmcnt(0)')
    if sq: A(f's_sleep {sq}')
    for ld in loads: A(ld)
    for et in range(2):
        b = R + 16 * et
        for i in (0, 2):
            A(f'v_pk_add_f32 {v(b+i,2)}, {v(b+i,2)}, {v(b+4+i,2)}'); A(f'v_pk_add_f32 {v(b+8+i,2)}, {v(b+8+i,2)}, {v(b+12+i,2)}')
        for i in (0, 2): A(f'v_pk_add_f32 {v(b+i,2)}, {v(b+i,2)}, {v(b+8+i,2)}')
        A(f'v_cvt_pk_bf16_f32 {v(V_VMF+2*et)}, {v(b)}, {v(b+1)}')
        A(f'v_cvt_pk_bf16_f32 {v(V_VMF+2*et+1)}, {v(b+2)}, {v(b+3)}')
    LQ, LQD = A.newlabel('qp'), A.newlabel('qpd')
    A(f's_mov_b32 {s(S_RETRY)}, 0')
    A.label(LQ)
    rr = list(range(V_QF, V_QF + 32))
    CH = X + 2
    chk = [f'v_max3_u32 {v(CH)}, {v(rr[0])}, {v(rr[1])}, {v(rr[2])}', f'v_max3_u32 {v(CH+1)}, {v(rr[3])}, {v(rr[4])}, {v(rr[5])}']
    k = 6
    while k + 3 < 16:
        chk += [f'v_max3_u32 {v(CH)}, {v(CH)}, {v(rr[k])}, {v(rr[k+1])}', f'v_max3_u32 {v(CH+1)}, {v(CH+1)}, {v(rr[k+2])}, {v(rr[k+3])}']; k += 4
    chk += [f'v_max3_u32 {v(CH)}, {v(CH)}, {v(rr[14])}, {v(rr[15])}']
    chk2 = []
    k = 16
    while k + 3 < 32:
        chk2 += [f'v_max3_u32 {v(CH)}, {v(CH)}, {v(rr[k])}, {v(rr[k+1])}', f'v_max3_u32 {v(CH+1)}, {v(CH+1)}, {v(rr[k+2])}, {v(rr[k+3])}']; k += 4
    chk2 += [f'v_max_u32 {v(CH)}, {v(CH)}, {v(CH+1)}', f'v_cmp_eq_u32 vcc, -1, {v(CH)}']
    A('s_waitcnt vmcnt(4)')
    mfl = []
    for t, base in ((0, V_KXF), (1, V_KXF + 16), (2, V_KMF)):
        for cc in range(4):
            C = '0' if cc == 0 else v(V_S + 4*t, 4)
            mfl.append(f'v_mfma_f32_16x16x32_bf16 {v(V_S+4*t,4)}, {v(base+4*cc,4)}, {v(V_QF+4*cc,4)}, {C}')
    fill = list(chk)
    for k in range(8):
        A(mfl[k])
        if fill: A(fill.pop(0))
    A('s_waitcnt vmcnt(0)')
    fill = fill + chk2
    extra = {9: [f'v_max3_f32 {v(X)}, {v(V_S)}, {v(V_S+1)}, {v(V_S+2)}'], 10: [f'v_mov_b32 {v(X+1)}, 0xff800000', f'v_max3_f32 {v(X)}, {v(X)}, {v(V_S+3)}, {v(V_S+4)}']}
    for k in range(8, 12):
        A(mfl[k])
        for _ in range(3):
            if fill: A(fill.pop(0))
        for x in extra.get(k, []): A(x)
    for x in fill: A(x)
    A(f's_cbranch_vccz {LQD}') if not nq else A(f's_branch {LQD}')
    A(f's_add_u32 {s(S_RETRY)}, {s(S_RETRY)}, 1')
    A(f's_cmp_ge_u32 {s(S_RETRY)}, {POLL_LIMIT}'); A(f's_cbranch_scc1 {EXIT}')
    for ld in loads: A(ld)
    A(f's_branch {LQ}')
    A.label(LQD)
    stamp(A, 2, timing)
    A(f'v_max3_f32 {v(X)}, {v(X)}, {v(V_S+5)}, {v(V_S+6)}')
    S = V_S
    A(f'v_max_f32 {v(X)}, {v(X)}, {v(S+7)}')
    for i in range(4): A(f'v_cndmask_b32 {v(S+8+i)}, {v(S+8+i)}, {v(X+1)}, {s(S_HI32,2)}')
    A(f'v_max3_f32 {v(X)}, {v(X)}, {v(S+8)}, {v(S+9)}')
    A(f'v_max3_f32 {v(X)}, {v(X)}, {v(S+10)}, {v(S+11)}')
    for sw in ('v_permlane16_swap_b32', 'v_permlane32_swap_b32'):
        A(f'v_mov_b32 {v(X+1)}, {v(X)}'); A(f'{sw} {v(X)}, {v(X+1)}'); A(f'v_max_f32 {v(X)}, {v(X)}, {v(X+1)}')
    A(f'v_mul_f32 {v(X)}, {s(S_SC)}, {v(X)}')
    for i in range(12): A(f'v_fma_f32 {v(S+i)}, {v(S+i)}, {s(S_SC)}, -{v(X)}')
    for i in range(12): A(f'v_exp_f32 {v(S+i)}, {v(S+i)}')
    for i in range(6): A(f'v_cvt_pk_bf16_f32 {v(V_P+i)}, {v(S+2*i)}, {v(S+2*i+1)}')
    sums = [f'v_add_f32 {v(S+i)}, {v(S+i)}, {v(S+6+i)}' for i in range(6)] + [f'v_add_f32 {v(S+i)}, {v(S+i)}, {v(S+3+i)}' for i in range(3)]
    sums += [f'v_add_f32 {v(S)}, {v(S)}, {v(S+1)}', f'v_add_f32 {v(X)}, {v(S)}, {v(S+2)}']
    A(f'v_mfma_f32_16x16x16_bf16 {v(V_O,4)}, {v(V_VMF,2)}, {v(V_P+4,2)}, 0')
    for x in sums[:3]: A(x)
    A(f'v_mfma_f32_16x16x16_bf16 {v(V_O+4,4)}, {v(V_VMF+2,2)}, {v(V_P+4,2)}, 0')
    for x in sums[3:9]: A(x)
    A(f'v_mfma_f32_16x16x32_bf16 {v(V_O,4)}, {v(V_VXF,4)}, {v(V_P,4)}, {v(V_O,4)}')
    for x in sums[9:]: A(x)
    A(f'v_mfma_f32_16x16x32_bf16 {v(V_O+4,4)}, {v(V_VXF+4,4)}, {v(V_P,4)}, {v(V_O+4,4)}')
    for sw in ('v_permlane16_swap_b32', 'v_permlane32_swap_b32'):
        A(f'v_mov_b32 {v(X+1)}, {v(X)}'); A(f'{sw} {v(X)}, {v(X+1)}'); A(f'v_add_f32 {v(X)}, {v(X)}, {v(X+1)}')
    A(f'v_rcp_f32 {v(X)}, {v(X)}')
    for i in range(4): A(f'v_cndmask_b32 {v(X+2+i)}, {v(V_O+4+i)}, {v(V_O+i)}, {s(S_LO16,2)}')
    for i in range(4): A(f'v_mul_f32 {v(X+2+i)}, {v(X+2+i)}, {v(X)}')
    A(f'v_cvt_pk_bf16_f32 {v(X+6)}, {v(X+2)}, {v(X+3)}'); A(f'v_cvt_pk_bf16_f32 {v(X+7)}, {v(X+4)}, {v(X+5)}')
    A(f'global_store_dword {v(V_OST)}, {v(X+6)}, {s(P_OX,2)}')
    A(f'global_store_dword {v(V_OST)}, {v(X+7)}, {s(P_OX,2)} offset:128')
    stamp(A, 3, timing)
    A.label(LB)
    A('s_barrier')
    if sleep_c: A(f's_sleep {sleep_c}')
    zero = [f'v_mov_b32 {v(V_ACC+k)}, 0' for k in range(8)]
    chunk_pipeline(A, P_OX, lambda cc: [f'{SM} {v(V_ACC+4*t,4)}, {v(V_POLL+4*cc,4)}, {a(A_WO+8*(2*cc+t),8)}, {v(V_IDX)}' for t in range(2)], EXIT, zero, nc)
    stamp(A, 4, timing)
    for i in range(4): A(f'v_permlane32_swap_b32 {v(V_ACC+i)}, {v(V_ACC+4+i)}')
    for i in (0, 2): A(f'v_pk_add_f32 {v(V_ACC+i,2)}, {v(V_ACC+i,2)}, {v(V_ACC+4+i,2)}')
    A(f'ds_write_b128 {v(V_WL1)}, {v(V_ACC,4)} offset:{LDS_WOP}')
    A('s_waitcnt lgkmcnt(0)')
    A('s_barrier')
    for ws in range(4): A(f'ds_read_b32 {v(R+ws)}, {v(V_RWO)} offset:{LDS_WOP + 1024*ws}')
    A('s_waitcnt lgkmcnt(0)')
    A(f'v_pk_add_f32 {v(R,2)}, {v(R,2)}, {v(R+2,2)}')
    A(f'v_add_f32 {v(R)}, {v(R)}, {v(R+1)}')
    A(f'global_store_dword {v(V_PST)}, {v(R)}, {s(P_PART,2)} sc1')
    stamp(A, 5, timing)
    LD, LE, LF, LG = A.newlabel('notw0'), A.newlabel('endD'), A.newlabel('notw1'), A.newlabel('notw3')
    A(f's_cmp_lg_u32 {s(S_W)}, 0'); A(f's_cbranch_scc1 {LD}')
    loads = [f'global_load_dwordx4 {v(V_POLL+4*k,4)}, {v(V_L16)}, {s(P_PART,2)} offset:{1024*k} sc1' for k in range(4)]
    if nd:
        if sd: A(f's_sleep {sd}')
        for ld in loads: A(ld)
        A('s_waitcnt vmcnt(0)')
    else:
        poll2(A, loads, range(V_POLL, V_POLL + 16), V_T, EXIT, sd, rd)
    stamp(A, 6, timing)
    Q = V_POLL
    for i in (0, 2):
        A(f'v_pk_add_f32 {v(Q+i,2)}, {v(Q+i,2)}, {v(Q+4+i,2)}'); A(f'v_pk_add_f32 {v(Q+8+i,2)}, {v(Q+8+i,2)}, {v(Q+12+i,2)}')
    for i in (0, 2): A(f'v_pk_add_f32 {v(Q+i,2)}, {v(Q+i,2)}, {v(Q+8+i,2)}')
    A(f'v_cvt_pk_bf16_f32 {v(R)}, {v(Q)}, {v(Q+1)}'); A(f'v_cvt_pk_bf16_f32 {v(R+1)}, {v(Q+2)}, {v(Q+3)}')
    slot_ptr(A, S_T0, B_MEM, 1, STEP_MEM)
    A(f'global_store_dwordx2 {v(V_MST)}, {v(R,2)}, {s(S_T0,2)}')
    stamp(A, 7, timing)
    A(f's_branch {LE}')
    A.label(LD)
    A('s_sleep 2')
    A(f's_cmp_lg_u32 {s(S_W)}, 1'); A(f's_cbranch_scc1 {LF}')
    fill_slots(A, 2)
    if spf: scalar_prefetch(A, 0)
    A(f's_branch {LE}')
    A.label(LF)
    if spf:
        L2_ = A.newlabel('nw2')
        A(f's_cmp_lg_u32 {s(S_W)}, 2'); A(f's_cbranch_scc1 {L2_}')
        scalar_prefetch(A, 1)
        A.label(L2_)
    if not nokm: A(f'global_store_dword {v(V_QKST)}, {v(V_KKEEP)}, {s(P_KM,2)} offset:-2048 sc1')
    A(f's_cmp_lg_u32 {s(S_W)}, {W_ATT}'); A(f's_cbranch_scc1 {LE}')
    A('s_mov_b32 exec_hi, 0')
    for et in range(2):
        if not nokm: A(f'global_store_dwordx2 {v(V_VMST)}, {v(V_VMF+2*et,2)}, {s(P_VM,2)} offset:{256*et} sc1')
    A('s_mov_b64 exec, -1')
    A(f's_cmp_ge_u32 {s(S_STEP)}, 63'); A(f's_cbranch_scc1 {LE}')
    add64(A, P_KX, P_KX, 262144); add64(A, P_VX, P_VX, 262144)
    if not nopf: prefetch_kv(A)
    A.label(LE)
    A('s_barrier')
    stamp(A, 9, timing)

def publish_mem0(A):
    T = V_R
    A(f'v_bfe_u32 {v(T)}, {v(V_L)}, 3, 1'); A(f'v_lshlrev_b32 {v(T)}, 2, {v(T)}')
    A(f'v_bfe_u32 {v(T+1)}, {v(V_L)}, 1, 2'); A(f'v_add_u32 {v(T)}, {v(T)}, {v(T+1)}')
    A(f'v_lshlrev_b32 {v(T)}, 11, {v(T)}')
    A(f'v_lshrrev_b32 {v(T+1)}, 5, {v(V_L)}'); A(f'v_lshl_add_u32 {v(T)}, {v(T+1)}, 5, {v(T)}')
    A(f'v_bfe_u32 {v(T+1)}, {v(V_L)}, 4, 1'); A(f'v_lshl_add_u32 {v(T)}, {v(T+1)}, 4, {v(T)}')
    A(f'v_and_b32 {v(T+1)}, 1, {v(V_L)}'); A(f'v_lshl_add_u32 {v(T)}, {v(T+1)}, 2, {v(T)}')
    A(f's_lshl_b32 {s(S_T0)}, {s(S_I)}, 6')
    A(f'v_add_u32 {v(T)}, {s(S_T0)}, {v(T)}')
    A(f'global_load_dword {v(T+2)}, {v(T)}, {s(S_MEM0,2)}')
    A(f'global_load_dword {v(T+3)}, {v(T)}, {s(S_MEM0,2)} offset:8')
    A('s_waitcnt vmcnt(0)')
    A(f'global_store_dwordx2 {v(V_MST)}, {v(T+2,2)}, {s(P_MEM,2)}')

def chain_main(A, EXIT, timing, nbar, **kw):
    lane_setup(A)
    load_weights(A)
    set_ptrs(A)
    for p, b in ((P_MEM, B_MEM), (P_QK, B_QK), (P_OX, B_OX), (P_PART, B_PART)): A(f's_mov_b64 {s(b,2)}, {s(p,2)}')
    A(f's_mov_b32 {s(S_STEP)}, 0')
    L0 = A.newlabel('nf')
    A(f's_cmp_lg_u32 {s(S_W)}, 1'); A(f's_cbranch_scc1 {L0}')
    for k in range(4): fill_slots(A, k, True)
    A.label(L0)
    chain_barrier(A, nbar, EXIT)
    L1, L2 = A.newlabel('nm0'), A.newlabel('npf')
    A(f's_cmp_lg_u32 {s(S_W)}, 0'); A(f's_cbranch_scc1 {L1}')
    publish_mem0(A)
    A.label(L1)
    A(f's_cmp_lg_u32 {s(S_W)}, 3'); A(f's_cbranch_scc1 {L2}')
    prefetch_kv(A)
    A.label(L2)
    A(f's_mov_b32 {s(S_STEP)}, 0')
    if timing:
        for k in range(20): A(f's_mov_b32 {s(S_ACC+k)}, 0')
    A(f's_memrealtime {s(S_TM0,2)}')
    A('s_memtime s[90:91]')
    A('s_waitcnt lgkmcnt(0)')
    A.label('C_step')
    step_body(A, EXIT, timing, **kw)
    advance_ptrs(A)
    A(f's_add_u32 {s(S_STEP)}, {s(S_STEP)}, 1')
    cur_ptrs(A)
    A(f's_cmp_lt_u32 {s(S_STEP)}, 64')
    A('s_cbranch_scc1 C_step')
    A(f's_memrealtime {s(S_TM1,2)}')
    A('s_memtime s[92:93]')
    A('s_waitcnt lgkmcnt(0)')

if __name__ == '__main__':
    import sys
    c1.chain_main = lambda A, EXIT, timing, nbar: chain_main(A, EXIT, timing, nbar, **KW)
    KW = {}
    for x in sys.argv[3:]:
        k, val = x.split('='); KW[k] = int(val)
    txt, n, nz = c1.gen_standalone(sys.argv[2] == 't')
    open(sys.argv[1], 'w').write(txt)
    print('instructions', n, 'nops', nz)
```

```python
from asmlib import *
from layout import *
import struct, math
def f2u(x): return struct.unpack('<I', struct.pack('<f', x))[0]

G_X, G_W = 4, 6
G_DX, G_DW = 8, 9
G_NST, G_CNT = 10, 11
G_OUT, G_P2, G_P3 = 12, 14, 16
G_LDO = 18
G_WV = 20
G_T0, G_T1, G_T2, G_T3 = 21, 22, 23, 24
G_MX, G_MW = 25, 26
G_C0, G_C1, G_C2 = 27, 28, 29
G_LDX, G_LDW = 30, 31
GV_L = 1
GV_XO, GV_WO = 2, 6
GV_XR = 10
GV_WR = 26
GV_T = 42
GV_E = 56
GV_F = 128

class Cfg:
    def __init__(self, TM, TN, WM, WN):
        self.TM, self.TN, self.WM, self.WN = TM, TN, WM, WN
        self.BM = 16 * TM * WM
        self.nxd = self.BM // 64
BIG = Cfg(8, 8, 2, 2)
SMALL = Cfg(4, 4, 1, 4)
MED = Cfg(4, 8, 2, 2)

def fswz(q): return [0, 2, 3, 1][q & 3]

def wave_id(A):
    A(f'v_and_b32 {v(GV_L)}, 63, v0')
    A(f'v_lshrrev_b32 {v(GV_T)}, 6, v0'); A('s_nop 0')
    A(f'v_readfirstlane_b32 {s(G_WV)}, {v(GV_T)}')
    A(f's_lshl_b32 {s(G_MX)}, {s(G_WV)}, 12')
    A(f's_add_u32 {s(G_MW)}, {s(G_MX)}, 16384')

def wsel(A, cfg, which, dst):
    if cfg.WM == 2:
        if which == 'wn': A(f's_and_b32 {s(dst)}, {s(G_WV)}, 1')
        else: A(f's_lshr_b32 {s(dst)}, {s(G_WV)}, 1')
    else:
        if which == 'wn': A(f's_mov_b32 {s(dst)}, {s(G_WV)}')
        else: A(f's_mov_b32 {s(dst)}, 0')

def tr_dma_offsets(A, ld, vdma):
    T = GV_T
    A(f'v_lshrrev_b32 {v(T)}, 5, {v(GV_L)}')
    A(f's_lshl_b32 {s(G_T0)}, {s(G_WV)}, 3')
    A(f'v_add_u32 {v(T+1)}, {s(G_T0)}, {v(T)}')
    A(f'v_mul_lo_u32 {v(T+1)}, {v(T+1)}, {s(ld)}')
    A(f'v_and_b32 {v(T+2)}, 31, {v(GV_L)}')
    A(f's_and_b32 {s(G_T0)}, {s(G_WV)}, 1'); A(f's_lshl_b32 {s(G_T0)}, {s(G_T0)}, 3')
    A(f'v_lshl_add_u32 {v(T)}, {v(T)}, 1, {s(G_T0)}')
    A(f'v_xor_b32 {v(T+3)}, {v(T+2)}, {v(T)}')
    A(f'v_xor_b32 {v(T+4)}, 4, {v(T+3)}')
    A(f'v_lshl_add_u32 {v(T+3)}, {v(T+3)}, 4, {v(T+1)}')
    A(f'v_lshl_add_u32 {v(T+4)}, {v(T+4)}, 4, {v(T+1)}')
    A(f's_lshl_b32 {s(G_T1)}, {s(ld)}, 1')
    A(f's_mov_b32 {s(G_T0)}, 0')
    for t in range(4):
        A(f'v_add_u32 {v(vdma+t)}, {s(G_T0)}, {v(T+3+(t%2))}')
        if t < 3: A(f's_add_u32 {s(G_T0)}, {s(G_T0)}, {s(G_T1)}')

def tr_read_addrs(A, vrd, ntile, selreg, sub):
    T = GV_T
    A(f'v_and_b32 {v(T)}, 15, {v(GV_L)}')
    A(f'v_lshrrev_b32 {v(T+1)}, 2, {v(T)}')
    A(f'v_lshrrev_b32 {v(T+2)}, 4, {v(GV_L)}')
    A(f'v_lshl_add_u32 {v(T+3)}, {v(T+2)}, 3, {v(T+1)}')
    A(f'v_lshlrev_b32 {v(T+3)}, 9, {v(T+3)}')
    A(f'v_and_b32 {v(T+4)}, 1, {v(T)}'); A(f'v_lshl_add_u32 {v(T+3)}, {v(T+4)}, 3, {v(T+3)}')
    A(f'v_bfe_u32 {v(T+4)}, {v(T)}, 1, 1'); A(f'v_lshl_add_u32 {v(T+3)}, {v(T+4)}, 4, {v(T+3)}')
    if sub: A(f'v_add_u32 {v(T+3)}, {sub}, {v(T+3)}')
    A(f'v_and_b32 {v(T+2)}, 1, {v(T+2)}'); A(f'v_lshl_add_u32 {v(T+1)}, {v(T+2)}, 2, {v(T+1)}')
    A(f's_mul_i32 {s(G_T1)}, {s(selreg)}, {ntile}')
    for t in range(ntile):
        A(f's_add_u32 {s(G_T2)}, {s(G_T1)}, {t}')
        A(f'v_xor_b32 {v(T+4)}, {s(G_T2)}, {v(T+1)}') if False else None
        A(f's_and_b32 {s(G_T3)}, {s(G_T2)}, 7'); A(f's_and_b32 {s(G_T2)}, {s(G_T2)}, 8')
        A(f'v_xor_b32 {v(T+4)}, {s(G_T3)}, {v(T+1)}')
        A(f'v_add_u32 {v(T+4)}, {s(G_T2)}, {v(T+4)}')
        A(f'v_lshl_add_u32 {v(vrd+t)}, {v(T+4)}, 5, {v(T+3)}')
        A(f'v_add_u32 {v(vrd+8+t)}, 0x10000, {v(vrd+t)}')

def setup_dma(A, cfg, xmode):
    T = GV_T
    if xmode == 'tr': tr_dma_offsets(A, G_LDX, GV_XO)
    else:
        A(f's_mul_i32 {s(G_T0)}, {s(G_WV)}, {cfg.BM * 16}')
        A(f'v_lshlrev_b32 {v(T)}, 4, {v(GV_L)}')
        A(f'v_add_u32 {v(GV_XO)}, {s(G_T0)}, {v(T)}')
        for t in range(1, cfg.nxd): A(f'v_add_u32 {v(GV_XO+t)}, 1024, {v(GV_XO+t-1)}')
    tr_dma_offsets(A, G_LDW, GV_WO)
    A(f's_mul_i32 {s(G_C2)}, {s(G_WV)}, {cfg.BM * 16}')

def setup_reads(A, cfg, xmode):
    T = GV_T
    if xmode == 'tr':
        wsel(A, cfg, 'wm', G_T0); tr_read_addrs(A, GV_XR, cfg.TM, G_T0, 0)
    else:
        wsel(A, cfg, 'wm', G_T0); A(f's_mul_i32 {s(G_T0)}, {s(G_T0)}, {cfg.TM * 1024}')
        A(f'v_and_b32 {v(T)}, 15, {v(GV_L)}'); A(f'v_lshlrev_b32 {v(T+1)}, 6, {v(T)}'); A(f'v_add_u32 {v(T+1)}, {s(G_T0)}, {v(T+1)}')
        A(f'v_lshrrev_b32 {v(T)}, 2, {v(T)}')
        A(f'v_lshrrev_b32 {v(T+2)}, 1, {v(T)}')
        A(f'v_xor_b32 {v(T+3)}, {v(T)}, {v(T+2)}'); A(f'v_and_b32 {v(T+3)}, 1, {v(T+3)}')
        A(f'v_lshl_add_u32 {v(T+2)}, {v(T+3)}, 1, {v(T+2)}')
        A(f'v_lshrrev_b32 {v(T+3)}, 4, {v(GV_L)}'); A(f'v_xor_b32 {v(T+2)}, {v(T+2)}, {v(T+3)}')
        A(f'v_lshl_add_u32 {v(GV_XR)}, {v(T+2)}, 4, {v(T+1)}')
        A(f'v_add_u32 {v(GV_XR+1)}, 0x10000, {v(GV_XR)}')
    wsel(A, cfg, 'wn', G_T0); tr_read_addrs(A, GV_WR, cfg.TN, G_T0, 16384)

def dma_x(cfg, xmode, slot):
    n = 4 if xmode == 'tr' else cfg.nxd
    if xmode == 'tr' or cfg.nxd == 4:
        return [[f's_add_u32 m0, {s(G_MX)}, {slot*32768 + t*1024}', f'global_load_lds_dwordx4 {v(GV_XO+t)}, {s(G_X,2)} sc1'] for t in range(n)]
    return [[f's_add_u32 m0, {s(G_C2)}, {slot*32768 + t*1024}', f'global_load_lds_dwordx4 {v(GV_XO+t)}, {s(G_X,2)} sc1'] for t in range(n)]
def dma_w(slot):
    return [[f's_add_u32 m0, {s(G_MW)}, {slot*32768 + t*1024}', f'global_load_lds_dwordx4 {v(GV_WO+t)}, {s(G_W,2)}'] for t in range(4)]
def adv_x(): return [f's_add_u32 {s(G_X)}, {s(G_X)}, {s(G_DX)}', f's_addc_u32 {s(G_X+1)}, {s(G_X+1)}, 0']
def adv_w(): return [f's_add_u32 {s(G_W)}, {s(G_W)}, {s(G_DW)}', f's_addc_u32 {s(G_W+1)}, {s(G_W+1)}, 0']

def frag_reads(cfg, xmode, slot, fset):
    X, W = GV_F + 64 * fset, GV_F + 64 * fset + 32
    hi, lo = slot // 2, (slot % 2) * 32768
    rw, rx = [], []
    for t in range(cfg.TN):
        rw.append(f'ds_read_b64_tr_b16 {v(W+4*t,2)}, {v(GV_WR+8*hi+t)} offset:{lo}')
        rw.append(f'ds_read_b64_tr_b16 {v(W+4*t+2,2)}, {v(GV_WR+8*hi+t)} offset:{lo+2048}')
    for t in range(cfg.TM):
        if xmode == 'tr':
            rx.append(f'ds_read_b64_tr_b16 {v(X+4*t,2)}, {v(GV_XR+8*hi+t)} offset:{lo}')
            rx.append(f'ds_read_b64_tr_b16 {v(X+4*t+2,2)}, {v(GV_XR+8*hi+t)} offset:{lo+2048}')
        else:
            rx.append(f'ds_read_b128 {v(X+4*t,4)}, {v(GV_XR+hi)} offset:{lo+1024*t}')
    out = rw[:2] + rx + rw[2:]
    return out

def mfmas(cfg, fset, orient, first=False):
    X, W = GV_F + 64 * fset, GV_F + 64 * fset + 32
    r = []
    for tn in range(cfg.TN):
        for tm in range(cfg.TM):
            acc = a(4 * (cfg.TM * tn + tm), 4)
            C = '0' if first else acc
            if orient == 'N': r.append(f'v_mfma_f32_16x16x32_bf16 {acc}, {v(W+4*tn,4)}, {v(X+4*tm,4)}, {C}')
            else: r.append(f'v_mfma_f32_16x16x32_bf16 {acc}, {v(X+4*tm,4)}, {v(W+4*tn,4)}, {C}')
    return r

def weave(A, mf, reads, dmas, tailops=()):
    n = len(mf)
    slots = [[] for _ in range(n)]
    step = max(1, (n - 4) // max(1, len(reads))) if reads else 1
    per = 1 if len(reads) <= n - 2 else 2
    k = 0
    for i in range(n):
        for _ in range(per):
            if k < len(reads): slots[i].append(reads[k]); k += 1
    if dmas:
        st = n // len(dmas)
        for j, g in enumerate(dmas):
            pos = j * st + (1 if st > 2 else 0)
            assert pos + 1 < n
            slots[pos] = [g[0]] + slots[pos]
            slots[pos + 1] = [g[1]] + slots[pos + 1]
    for i, m in enumerate(mf):
        A(m)
        for x in slots[i]: A(x)
    for x in tailops: A(x)

def prologue_dma(A, cfg, xmode):
    for b in range(4):
        for g in dma_x(cfg, xmode, b) + dma_w(b):
            A(g[0]); A('s_nop 0'); A(g[1])
        for x in adv_x() + adv_w(): A(x)

def mainloop(A, cfg, orient, xmode, nxt_xmode=None, switch=None):
    ndx = len(dma_x(cfg, xmode, 0))
    per_stage = ndx + 4
    A('s_waitcnt vmcnt(0)')
    A('s_barrier')
    for x in frag_reads(cfg, xmode, 0, 0): A(x)
    half = cfg.TM * cfg.TN // 2
    def one(n, pend_w, dma, vm, nxt, first=False, dcfg=cfg, dx=xmode):
        slot, fs = n % 4, n % 2
        mf = mfmas(cfg, fs, orient, first)
        A('s_waitcnt lgkmcnt(0)')
        weave(A, mf[:half], [], dma_w((slot - 1) % 4) if pend_w else [], adv_w() if pend_w else ())
        if nxt:
            if vm is not None: A(f's_waitcnt vmcnt({vm})')
            A('s_barrier')
            weave(A, mf[half:], frag_reads(cfg, xmode, (slot + 1) % 4, 1 - fs), dma_x(dcfg, dx, slot) if dma else [], adv_x() if dma else ())
        else:
            weave(A, mf[half:], [], dma_x(dcfg, dx, slot) if dma else [], adv_x() if dma else ())
    L = A.newlabel('gl'); LE = A.newlabel('gle')
    A(f's_lshr_b32 {s(G_CNT)}, {s(G_NST)}, 2'); A(f's_sub_u32 {s(G_CNT)}, {s(G_CNT)}, 1')
    vm = 2 * per_stage
    one(0, False, True, None, True, first=True)
    A.label(L)
    one(1, True, True, vm, True)
    one(2, True, True, vm, True)
    one(3, True, True, vm, True)
    A(f's_sub_u32 {s(G_CNT)}, {s(G_CNT)}, 1')
    A(f's_cmp_eq_u32 {s(G_CNT)}, 0'); A(f's_cbranch_scc1 {LE}')
    one(0, True, True, vm, True)
    A(f's_branch {L}')
    A.label(LE)
    one(0, True, False, vm, True)
    one(1, False, False, per_stage, True)
    one(2, False, False, 0, True)
    one(3, False, False, None, False)

E_LO, E_HI = GV_E, GV_E + 1
E_B = GV_E + 2
E_V = GV_E + 8
E_PK = GV_E + 24
E_U = GV_E + 32
def lane_parts(A):
    T = GV_T
    A(f'v_and_b32 {v(T)}, 15, {v(GV_L)}'); A(f'v_lshrrev_b32 {v(T+1)}, 4, {v(GV_L)}')
    A(f'v_and_b32 {v(T+2)}, 1, {v(T+1)}'); A(f'v_lshlrev_b32 {v(T+2)}, 1, {v(T+2)}')
    A(f'v_lshrrev_b32 {v(T+3)}, 1, {v(T+1)}'); A(f'v_add_u32 {v(T+2)}, {v(T+2)}, {v(T+3)}')

def acc_pair(A, cfg, orient, ta, tb, dst):
    for k, (tn, tm) in enumerate((ta, tb)):
        for r in range(4): A(f'v_accvgpr_read_b32 {v(dst+4*k+r)}, {a(4*(cfg.TM*tn+tm)+r)}')

def pack_pair(A, src, pk, swap=True):
    for k in range(4): A(f'v_cvt_pk_bf16_f32 {v(pk+k)}, {v(src+2*k)}, {v(src+2*k+1)}')
    if swap:
        A(f'v_permlane16_swap_b32 {v(pk)}, {v(pk+2)}')
        A(f'v_permlane16_swap_b32 {v(pk+1)}, {v(pk+3)}')

def add64c(A, dst, src, imm):
    A(f's_add_u32 {s(dst)}, {s(src)}, {imm}'); A(f's_addc_u32 {s(dst+1)}, {s(src+1)}, 0')
def add64r(A, dst, src, r):
    A(f's_add_u32 {s(dst)}, {s(src)}, {s(r)}'); A(f's_addc_u32 {s(dst+1)}, {s(src+1)}, 0')

def epi_qk(A, cfg, flags=' sc1'):
    T = GV_T
    lane_parts(A)
    A(f'v_lshl_add_u32 {v(T+3)}, {v(T+2)}, 4, {v(T)}'); A(f'v_lshlrev_b32 {v(T+3)}, 4, {v(T+3)}')
    wsel(A, cfg, 'wm', G_T0); wsel(A, cfg, 'wn', G_T1)
    A(f's_mul_i32 {s(G_T0)}, {s(G_T0)}, {cfg.TM // 2 * 262144}')
    if cfg.TN == 8: A(f's_lshl_b32 {s(G_T1)}, {s(G_T1)}, 13')
    else:
        A(f's_lshr_b32 {s(G_T2)}, {s(G_T1)}, 1'); A(f's_lshl_b32 {s(G_T2)}, {s(G_T2)}, 13')
        A(f's_and_b32 {s(G_T1)}, {s(G_T1)}, 1'); A(f's_lshl_b32 {s(G_T1)}, {s(G_T1)}, 11'); A(f's_add_u32 {s(G_T1)}, {s(G_T1)}, {s(G_T2)}')
    A(f's_add_u32 {s(G_T0)}, {s(G_T0)}, {s(G_T1)}')
    A(f'v_add_u32 {v(E_LO)}, {s(G_T0)}, {v(T+3)}'); A(f'v_add_u32 {v(E_HI)}, 4096, {v(E_LO)}')
    k = 0
    for tm in range(cfg.TM):
        if tm and tm % 2 == 0: add64c(A, G_OUT, G_OUT, 262144)
        for p in range(cfg.TN // 2):
            src, pk = E_V + 8 * (k % 2), E_PK + 4 * (k % 2); k += 1
            acc_pair(A, cfg, 'N', (2*p, tm), (2*p+1, tm), src)
            pack_pair(A, src, pk)
            A(f'global_store_dwordx4 {v(E_LO + tm % 2)}, {v(pk,4)}, {s(G_OUT,2)} offset:{1024*p}{flags}')

def epi_v(A, cfg, flags=' sc1'):
    T = GV_T
    wsel(A, cfg, 'wm', G_T0); wsel(A, cfg, 'wn', G_T1)
    A(f's_mul_i32 {s(G_T0)}, {s(G_T0)}, {cfg.TM // 2 * 262144}')
    if cfg.TN == 8: A(f's_lshl_b32 {s(G_T1)}, {s(G_T1)}, 13')
    else:
        A(f's_lshr_b32 {s(G_T2)}, {s(G_T1)}, 1'); A(f's_lshl_b32 {s(G_T2)}, {s(G_T2)}, 13')
        A(f's_and_b32 {s(G_T1)}, {s(G_T1)}, 1'); A(f's_lshl_b32 {s(G_T1)}, {s(G_T1)}, 12'); A(f's_add_u32 {s(G_T1)}, {s(G_T1)}, {s(G_T2)}')
    A(f's_add_u32 {s(G_T0)}, {s(G_T0)}, {s(G_T1)}')
    A(f'v_lshlrev_b32 {v(T)}, 4, {v(GV_L)}')
    A(f'v_add_u32 {v(E_LO)}, {s(G_T0)}, {v(T)}'); A(f'v_add_u32 {v(E_HI)}, 4096, {v(E_LO)}')
    k = 0
    for u in range(cfg.TM // 2):
        if u: add64c(A, G_OUT, G_OUT, 262144)
        for tn in range(cfg.TN):
            src, pk = E_V + 8 * (k % 2), E_PK + 4 * (k % 2); k += 1
            acc_pair(A, cfg, 'M', (tn, 2*u), (tn, 2*u+1), src)
            pack_pair(A, src, pk, swap=False)
            A(f'global_store_dwordx4 {v(E_LO + tn // 4)}, {v(pk,4)}, {s(G_OUT,2)} offset:{1024*(tn%4)}{flags}')

def fswz_lane(A, dst, n16, t):
    A(f'v_lshrrev_b32 {v(t)}, 2, {v(n16)}'); A(f'v_lshrrev_b32 {v(dst)}, 1, {v(t)}')
    A(f'v_xor_b32 {v(t)}, {v(t)}, {v(dst)}'); A(f'v_and_b32 {v(t)}, 1, {v(t)}')
    A(f'v_lshl_add_u32 {v(dst)}, {v(t)}, 1, {v(dst)}')

def epi_mlp1(A, cfg, flags=' sc1'):
    T = GV_T
    lane_parts(A)
    fswz_lane(A, T + 3, T, T + 4)
    A(f'v_xor_b32 {v(T+3)}, {v(T+3)}, {v(T+2)}')
    A(f'v_lshlrev_b32 {v(T+3)}, 4, {v(T+3)}'); A(f'v_lshl_add_u32 {v(T+3)}, {v(T)}, 6, {v(T+3)}')
    wsel(A, cfg, 'wm', G_T0); wsel(A, cfg, 'wn', G_T1)
    A(f's_lshl_b32 {s(G_T0)}, {s(G_T0)}, 13')
    A(f's_lshl_b32 {s(G_T2)}, {s(G_T1)}, 18')
    A(f's_add_u32 {s(G_T0)}, {s(G_T0)}, {s(G_T2)}')
    A(f'v_add_u32 {v(E_LO)}, {s(G_T0)}, {v(T+3)}'); A(f'v_add_u32 {v(E_HI)}, 4096, {v(E_LO)}')
    A(f's_lshl_b32 {s(G_T1)}, {s(G_T1)}, 8')
    A(f'v_lshlrev_b32 {v(E_B)}, 3, {v(T+1)}'); A(f'v_add_u32 {v(E_B)}, {s(G_T1)}, {v(E_B)}')
    BI = E_U + 16
    for tn in range(8): A(f'global_load_dwordx2 {v(E_U+2*tn,2)}, {v(E_B)}, {s(G_P2,2)} offset:{32*tn}')
    A('s_waitcnt vmcnt(0)')
    for tn in range(8):
        for d in range(2):
            A(f'v_lshlrev_b32 {v(BI+4*tn+2*d)}, 16, {v(E_U+2*tn+d)}'); A(f'v_and_b32 {v(BI+4*tn+2*d+1)}, 0xffff0000, {v(E_U+2*tn+d)}')
    c0 = -2.0 * math.log2(math.e) * math.sqrt(2.0 / math.pi)
    A(f's_mov_b32 s34, 0x{f2u(c0*0.044715):08x}'); A(f's_mov_b32 s35, 0x{f2u(c0*0.044715):08x}')
    A(f'v_mov_b32 {v(E_B+2)}, 0x{f2u(c0):08x}'); A(f'v_mov_b32 {v(E_B+3)}, 0x{f2u(c0):08x}')
    A(f'v_mov_b32 {v(E_B+4)}, 1.0'); A(f'v_mov_b32 {v(E_B+5)}, 1.0')
    W_ = E_U
    k = 0
    for p in range(4):
        if p: add64c(A, G_OUT, G_OUT, 65536)
        for tm in range(cfg.TM):
            src, pk = E_V + 8 * (k % 2), E_PK + 4 * (k % 2); k += 1
            acc_pair(A, cfg, 'N', (2*p, tm), (2*p+1, tm), src)
            for j in range(0, 8, 2):
                A(f'v_cvt_pk_bf16_f32 {v(W_+j)}, {v(src+j)}, {v(src+j+1)}')
            for j in range(0, 8, 2):
                A(f'v_lshlrev_b32 {v(src+j)}, 16, {v(W_+j)}'); A(f'v_and_b32 {v(src+j+1)}, 0xffff0000, {v(W_+j)}')
            for j in range(0, 8, 2): A(f'v_pk_add_f32 {v(src+j,2)}, {v(src+j,2)}, {v(BI+8*p+j,2)}')
            for j in range(0, 8, 2):
                A(f'v_cvt_pk_bf16_f32 {v(W_+j)}, {v(src+j)}, {v(src+j+1)}')
            for j in range(0, 8, 2):
                A(f'v_lshlrev_b32 {v(src+j)}, 16, {v(W_+j)}'); A(f'v_and_b32 {v(src+j+1)}, 0xffff0000, {v(W_+j)}')
            for j in range(0, 8, 2): A(f'v_pk_mul_f32 {v(W_+j,2)}, {v(src+j,2)}, {v(src+j,2)}')
            for j in range(0, 8, 2): A(f'v_pk_fma_f32 {v(W_+j,2)}, {v(W_+j,2)}, s[34:35], {v(E_B+2,2)}')
            for j in range(0, 8, 2): A(f'v_pk_mul_f32 {v(W_+j,2)}, {v(W_+j,2)}, {v(src+j,2)}')
            for j in range(8): A(f'v_exp_f32 {v(W_+j)}, {v(W_+j)}')
            for j in range(0, 8, 2): A(f'v_pk_add_f32 {v(W_+j,2)}, {v(W_+j,2)}, {v(E_B+4,2)}')
            for j in range(8): A(f'v_rcp_f32 {v(W_+j)}, {v(W_+j)}')
            for j in range(0, 8, 2): A(f'v_pk_mul_f32 {v(src+j,2)}, {v(src+j,2)}, {v(W_+j,2)}')
            pack_pair(A, src, pk)
            A(f'global_store_dwordx4 {v(E_LO + tm // 4)}, {v(pk,4)}, {s(G_OUT,2)} offset:{1024*(tm%4)}{flags}')

def rowmajor_offsets(A, cfg, rowsel, colsel, ld):
    T = GV_T
    lane_parts(A)
    wsel(A, cfg, rowsel, G_T0); wsel(A, cfg, colsel, G_T1)
    rows = 16 * (cfg.TM if rowsel == 'wm' else cfg.TN); cols = 16 * (cfg.TN if colsel == 'wn' else cfg.TM)
    A(f's_mul_i32 {s(G_T0)}, {s(G_T0)}, {rows * ld}'); A(f's_mul_i32 {s(G_T1)}, {s(G_T1)}, {cols * 2}'); A(f's_add_u32 {s(G_T0)}, {s(G_T0)}, {s(G_T1)}')
    A(f'v_mul_u32_u24 {v(T+3)}, {ld}, {v(T)}'); A(f'v_lshl_add_u32 {v(T+3)}, {v(T+2)}, 4, {v(T+3)}')
    A(f'v_add_u32 {v(E_LO)}, {s(G_T0)}, {v(T+3)}')

def epi_mlp2(A, cfg, flags=' sc1'):
    T = GV_T
    rowmajor_offsets(A, cfg, 'wn', 'wm', 2048)
    wsel(A, cfg, 'wn', G_T1); A(f's_lshl_b32 {s(G_T1)}, {s(G_T1)}, 8')
    A(f'v_lshlrev_b32 {v(E_B)}, 1, {v(T)}'); A(f'v_add_u32 {v(E_B)}, {s(G_T1)}, {v(E_B)}')
    BI = E_U + 16
    for tn in range(8): A(f'global_load_ushort {v(BI+tn)}, {v(E_B)}, {s(G_P2,2)} offset:{32*tn}')
    A('s_waitcnt vmcnt(0)')
    for tn in range(8): A(f'v_lshlrev_b32 {v(BI+tn)}, 16, {v(BI+tn)}')
    A(f's_mov_b32 s34, 0x{f2u(-math.log2(math.e)):08x}'); A(f's_mov_b32 s35, 0x{f2u(-math.log2(math.e)):08x}')
    A(f'v_mov_b32 {v(E_B+4)}, 1.0'); A(f'v_mov_b32 {v(E_B+5)}, 1.0')
    W_ = E_U
    k = 0
    for tn in range(8):
        if tn: add64c(A, G_OUT, G_OUT, 16 * 2048)
        for u in range(cfg.TM // 2):
            src, pk = E_V + 8 * (k % 2), E_PK + 4 * (k % 2); k += 1
            acc_pair(A, cfg, 'M', (tn, 2*u), (tn, 2*u+1), src)
            for j in range(0, 8, 2):
                A(f'v_cvt_pk_bf16_f32 {v(W_+j)}, {v(src+j)}, {v(src+j+1)}')
            for j in range(0, 8, 2):
                A(f'v_lshlrev_b32 {v(src+j)}, 16, {v(W_+j)}'); A(f'v_and_b32 {v(src+j+1)}, 0xffff0000, {v(W_+j)}')
            for j in range(8): A(f'v_add_f32 {v(src+j)}, {v(src+j)}, {v(BI+tn)}')
            for j in range(0, 8, 2):
                A(f'v_cvt_pk_bf16_f32 {v(W_+j)}, {v(src+j)}, {v(src+j+1)}')
            for j in range(0, 8, 2):
                A(f'v_lshlrev_b32 {v(src+j)}, 16, {v(W_+j)}'); A(f'v_and_b32 {v(src+j+1)}, 0xffff0000, {v(W_+j)}')
            for j in range(0, 8, 2): A(f'v_pk_mul_f32 {v(W_+j,2)}, {v(src+j,2)}, s[34:35]')
            for j in range(8): A(f'v_exp_f32 {v(W_+j)}, {v(W_+j)}')
            for j in range(0, 8, 2): A(f'v_pk_add_f32 {v(W_+j,2)}, {v(W_+j,2)}, {v(E_B+4,2)}')
            for j in range(8): A(f'v_rcp_f32 {v(W_+j)}, {v(W_+j)}')
            for j in range(0, 8, 2): A(f'v_pk_mul_f32 {v(src+j,2)}, {v(src+j,2)}, {v(W_+j,2)}')
            pack_pair(A, src, pk)
            A(f'global_store_dwordx4 {v(E_LO)}, {v(pk,4)}, {s(G_OUT,2)} offset:{64*u}{flags}')

def epi_final(A, cfg, gflags=''):
    rowmajor_offsets(A, cfg, 'wm', 'wn', 2048)
    GX = E_U
    U = E_U + 16
    jobs = [(tm, p) for tm in range(cfg.TM) for p in range(cfg.TN // 2)]
    def loads(k):
        tm, p = jobs[k]
        b = GX + 8 * (k % 2)
        if p == 0 and tm:
            add64c(A, G_P2, G_P2, 16 * 2048); add64c(A, G_P3, G_P3, 16 * 2048)
        A(f'global_load_dwordx4 {v(b,4)}, {v(E_LO)}, {s(G_P2,2)} offset:{64*p}{gflags}')
        A(f'global_load_dwordx4 {v(b+4,4)}, {v(E_LO)}, {s(G_P3,2)} offset:{64*p}')
    loads(0)
    for k, (tm, p) in enumerate(jobs):
        src, pk, b = E_V + 8 * (k % 2), E_PK + 4 * (k % 2), GX + 8 * (k % 2)
        if k + 1 < len(jobs): loads(k + 1)
        acc_pair(A, cfg, 'N', (2*p, tm), (2*p+1, tm), src)
        pack_pair(A, src, pk)
        A(f's_waitcnt vmcnt({(2 if k + 1 < len(jobs) else 0) + (1 if k else 0)})')
        for d in range(4):
            S_, Gd, Xd = pk + d, b + d, b + 4 + d
            A(f'v_lshlrev_b32 {v(U)}, 16, {v(S_)}'); A(f'v_and_b32 {v(U+1)}, 0xffff0000, {v(S_)}')
            A(f'v_lshlrev_b32 {v(U+2)}, 16, {v(Gd)}'); A(f'v_and_b32 {v(U+3)}, 0xffff0000, {v(Gd)}')
            A(f'v_pk_mul_f32 {v(U,2)}, {v(U,2)}, {v(U+2,2)}')
            A(f'v_cvt_pk_bf16_f32 {v(U)}, {v(U)}, {v(U+1)}')
            A(f'v_and_b32 {v(U+1)}, 0xffff0000, {v(U)}'); A(f'v_lshlrev_b32 {v(U)}, 16, {v(U)}')
            A(f'v_lshlrev_b32 {v(U+2)}, 16, {v(Xd)}'); A(f'v_and_b32 {v(U+3)}, 0xffff0000, {v(Xd)}')
            A(f'v_pk_add_f32 {v(U,2)}, {v(U,2)}, {v(U+2,2)}')
            A(f'v_cvt_pk_bf16_f32 {v(S_)}, {v(U)}, {v(U+1)}')
        if p == 0 and tm: add64c(A, G_OUT, G_OUT, 16 * 2048)
        A(f'global_store_dwordx4 {v(E_LO)}, {v(pk,4)}, {s(G_OUT,2)} offset:{64*p}')
```

```python
from asmlib import *
from layout import *
from ln import ln_row

def ln_rows(A, srow, nrows, SX, SWS, flags=' sc1', st=30):
    R, X, T, PK, O = 8, 24, 40, 44, 2
    A('v_and_b32 v1, 63, v0')
    A('v_lshlrev_b32 v4, 4, v1')
    A(f's_lshl_b32 {s(st)}, {s(srow)}, 11')
    A(f'v_add_u32 {v(O)}, {s(st)}, v4')
    A('v_lshrrev_b32 v5, 2, v1'); A('v_lshlrev_b32 v5, 17, v5')
    A('v_and_b32 v6, 3, v1')
    for r in range(nrows):
        A(f'global_load_dwordx4 {v(R,4)}, {v(O)}, {s(SX,2)}')
        A(f'global_load_dwordx4 {v(R+4,4)}, {v(O)}, {s(SX,2)} offset:1024')
        A(f's_add_u32 {s(st)}, {s(srow)}, {r}')
        A(f's_bfe_u32 {s(st+1)}, {s(st)}, 0x20002'); A(f's_lshr_b32 {s(st+2)}, {s(st+1)}, 1')
        A(f's_xor_b32 {s(st+1)}, {s(st+1)}, {s(st+2)}'); A(f's_and_b32 {s(st+1)}, {s(st+1)}, 1'); A(f's_lshl_b32 {s(st+1)}, {s(st+1)}, 1')
        A(f's_add_u32 {s(st+1)}, {s(st+1)}, {s(st+2)}')
        A(f'v_xor_b32 v7, {s(st+1)}, v6'); A('v_lshl_add_u32 v7, v7, 4, v5')
        A(f's_lshl_b32 {s(st)}, {s(st)}, 6'); A(f's_add_u32 {s(st)}, {s(st)}, {XN}')
        A(f'v_add_u32 v7, {s(st)}, v7')
        A('s_waitcnt vmcnt(0)')
        for d in range(8):
            A(f'v_lshlrev_b32 {v(X+2*d)}, 16, {v(R+d)}'); A(f'v_and_b32 {v(X+2*d+1)}, 0xffff0000, {v(R+d)}')
        ln_row(A, X, T, PK)
        A(f'global_store_dwordx4 v7, {v(PK,4)}, {s(SWS,2)}{flags}')
        A('v_add_u32 v7, 0x200000, v7')
        A(f'global_store_dwordx4 v7, {v(PK+4,4)}, {s(SWS,2)}{flags}')
        ln_row(A, X, T, PK + 8)
        A(f'v_add_u32 {v(O+1)}, {HT}, {v(O)}')
        A(f'global_store_dwordx4 {v(O+1)}, {v(PK+8,4)}, {s(SWS,2)}{flags}')
        A(f'global_store_dwordx4 {v(O+1)}, {v(PK+12,4)}, {s(SWS,2)} offset:1024{flags}')
        if r + 1 < nrows: A(f'v_add_u32 {v(O)}, 2048, {v(O)}')
```

```python
import sys
from asmlib import *
from layout import *
import chain as c1, chain5 as c5, gemm3, ln2, att2
from gemm3 import *
from chain import kernel_head, kernel_footer

D_TICKET, D_CBAR, D_ERR, D_QUEUE, D_LN, D_KV, D_M1, D_LNALL = 0, 8, 10, 12, 16, 24, 32, 36
POLL = 2000000

WS, PWQ, PWK, PWV, PW1, PB1, PW2, PB2, DBG = 40, 42, 44, 46, 48, 50, 52, 54, 56
S_Y, S_TASK, S_TY, S_TM, S_TN, S_NEXT = 58, 59, 60, 61, 62, 63
T0, T1, T2, T3 = 64, 65, 66, 67
TAB = 68

TY_K, TY_V, TY_Q, TY_M1, TY_M2 = 0, 1, 2, 3, 4

def task_list():
    kv = lambda r: [(TY_K, r, j) for j in range(4)] + [(TY_V, r, j) for j in range(4)]
    m1 = [(TY_M1, 0, j) for j in range(14)]
    m2 = [(TY_M2, j % 4, j // 4) for j in range(8)]
    q = [(TY_Q, r, j) for r in range(8) for j in range(4)]
    L = kv(0) + kv(1) + m1 + kv(2) + kv(3) + kv(4)[:2]
    L += m2 + kv(4)[2:] + kv(5) + kv(6) + kv(7) + q
    return L

def wait_counter(A, dword, target, EXIT, sreg_index=None, sleep=4):
    L, D = A.newlabel('wc'), A.newlabel('wcd')
    if sreg_index is not None:
        A(f's_lshl_b32 {s(T0)}, {s(sreg_index)}, 2'); A(f's_add_u32 {s(T0)}, {s(T0)}, {4*dword}')
        A(f'v_mov_b32 {v(GV_T)}, {s(T0)}')
    else:
        A(f'v_mov_b32 {v(GV_T)}, {4*dword}')
    A(f's_mov_b32 {s(T1)}, 0')
    A.label(L)
    A(f'global_load_dword {v(GV_T+1)}, {v(GV_T)}, {s(DBG,2)} sc1')
    A('s_waitcnt vmcnt(0)')
    A(f'v_readfirstlane_b32 {s(T0)}, {v(GV_T+1)}')
    A(f's_cmp_ge_u32 {s(T0)}, {target}'); A(f's_cbranch_scc1 {D}')
    A(f's_sleep {sleep}')
    A(f's_add_u32 {s(T1)}, {s(T1)}, 1'); A(f's_cmp_lt_u32 {s(T1)}, {POLL}'); A(f's_cbranch_scc1 {L}')
    A(f's_branch {EXIT}')
    A.label(D)

def signal(A, dword, sreg_index=None, second=None):
    L = A.newlabel('sg')
    A('s_waitcnt vmcnt(0)')
    A('s_barrier')
    A(f's_cmp_lg_u32 {s(G_WV)}, 0'); A(f's_cbranch_scc1 {L}')
    if sreg_index is not None:
        A(f's_lshl_b32 {s(T0)}, {s(sreg_index)}, 2'); A(f's_add_u32 {s(T0)}, {s(T0)}, {4*dword}')
        A(f'v_mov_b32 {v(GV_T)}, {s(T0)}')
    else:
        A(f'v_mov_b32 {v(GV_T)}, {4*dword}')
    A(f'v_mov_b32 {v(GV_T+1)}, 1')
    A('s_mov_b64 exec, 1')
    A(f'global_atomic_add {v(GV_T)}, {v(GV_T+1)}, {s(DBG,2)}')
    if second is not None:
        A(f'v_mov_b32 {v(GV_T)}, {4*second}')
        A(f'global_atomic_add {v(GV_T)}, {v(GV_T+1)}, {s(DBG,2)}')
    A('s_mov_b64 exec, -1')
    A.label(L)

LDS_Q = 163832
def next_task(A):
    L = A.newlabel('nt')
    A(f'v_mov_b32 {v(GV_T+2)}, {LDS_Q}')
    A(f's_cmp_lg_u32 {s(G_WV)}, 0'); A(f's_cbranch_scc1 {L}')
    A(f's_lshl_b32 {s(T0)}, {s(S_Y)}, 2'); A(f's_add_u32 {s(T0)}, {s(T0)}, {4*D_QUEUE}')
    A(f'v_mov_b32 {v(GV_T)}, {s(T0)}'); A(f'v_mov_b32 {v(GV_T+1)}, 1')
    A('s_mov_b64 exec, 1')
    A(f'global_atomic_add {v(GV_T+3)}, {v(GV_T)}, {v(GV_T+1)}, {s(DBG,2)} sc0')
    A('s_waitcnt vmcnt(0)')
    A(f'ds_write_b32 {v(GV_T+2)}, {v(GV_T+3)}')
    A('s_waitcnt lgkmcnt(0)')
    A('s_mov_b64 exec, -1')
    A.label(L)
    A('s_barrier')
    A(f'ds_read_b32 {v(GV_T+3)}, {v(GV_T+2)}')
    A('s_waitcnt lgkmcnt(0)')
    A(f'v_readfirstlane_b32 {s(S_TASK)}, {v(GV_T+3)}')
    A('s_barrier')

def run_tile(A, cfg, orient, xmode):
    setup_dma(A, cfg, xmode)
    prologue_dma(A, cfg, xmode)
    setup_reads(A, cfg, xmode)
    mainloop(A, cfg, orient, xmode)

def worker(A, EXIT):
    tasks = task_list()
    NT = len(tasks)
    wave_id(A)
    A(f's_lshl_b32 {s(T0)}, {s(S_Y)}, 5'); A(f's_add_u32 {s(T0)}, {s(T0)}, {s(c1.S_I)}')
    A(f's_lshr_b32 {s(S_TM)}, {s(T0)}, 4')
    A(f's_lshl_b32 {s(T0)}, {s(T0)}, 4'); A(f's_lshl_b32 {s(T1)}, {s(G_WV)}, 2'); A(f's_add_u32 {s(T2)}, {s(T0)}, {s(T1)}')
    A(f's_load_dwordx2 s[4:5], s[0:1], {KA["x"]}'); A('s_waitcnt lgkmcnt(0)')
    ln2.ln_rows(A, T2, 4, 4, WS, st=32)
    signal(A, D_LN, S_TM, second=D_LNALL)
    wave_id(A)
    A.label('W_loop')
    next_task(A)
    A(f's_cmp_ge_u32 {s(S_TASK)}, {NT}'); A('s_cbranch_scc1 M_end')
    A(f's_lshl_b32 {s(T0)}, {s(S_TASK)}, 2')
    A(f's_load_dword {s(T1)}, {s(TAB,2)}, {s(T0)}'); A('s_waitcnt lgkmcnt(0)')
    A(f's_and_b32 {s(S_TY)}, {s(T1)}, 0xff'); A(f's_bfe_u32 {s(S_TM)}, {s(T1)}, 0x80008'); A(f's_bfe_u32 {s(S_TN)}, {s(T1)}, 0x80010')
    A(f's_cmp_ge_u32 {s(S_TY)}, {TY_M1}'); A('s_cbranch_scc1 W_mlp')
    A(f's_lshl_b32 {s(S_TN)}, {s(S_TN)}, 2'); A(f's_add_u32 {s(S_TN)}, {s(S_TN)}, {s(S_Y)}')
    wait_counter(A, D_LN, 16, EXIT, S_TM)
    A(f's_cmp_eq_u32 {s(S_TY)}, {TY_K}'); A(f's_cselect_b32 {s(T2)}, {s(PWK)}, {s(PWQ)}'); A(f's_cselect_b32 {s(T3)}, {s(PWK+1)}, {s(PWQ+1)}')
    A(f's_cmp_eq_u32 {s(S_TY)}, {TY_V}'); A(f's_cselect_b32 {s(T2)}, {s(PWV)}, {s(T2)}'); A(f's_cselect_b32 {s(T3)}, {s(PWV+1)}, {s(T3)}')
    A(f's_lshl_b32 {s(T0)}, {s(S_TN)}, 9'); add64r(A, G_W, T2, T0)
    A(f's_lshl_b32 {s(T0)}, {s(S_TM)}, 14'); A(f's_add_u32 {s(T0)}, {s(T0)}, {XN}'); add64r(A, G_X, WS, T0)
    A(f's_mov_b32 {s(G_DX)}, 131072'); A(f's_mov_b32 {s(G_LDW)}, 8192'); A(f's_mov_b32 {s(G_DW)}, {8192*32}'); A(f's_mov_b32 {s(G_NST)}, 32')
    A(f's_lshl_b32 {s(T0)}, {s(S_TM)}, 21'); A(f's_lshl_b32 {s(T1)}, {s(S_TN)}, 14'); A(f's_add_u32 {s(T0)}, {s(T0)}, {s(T1)}')
    A(f's_mov_b32 {s(T1)}, {QB}')
    A(f's_cmp_eq_u32 {s(S_TY)}, {TY_K}'); A(f's_cselect_b32 {s(T1)}, {KB}, {s(T1)}')
    A(f's_cmp_eq_u32 {s(S_TY)}, {TY_V}'); A(f's_cselect_b32 {s(T1)}, {VT}, {s(T1)}')
    A(f's_add_u32 {s(T0)}, {s(T0)}, {s(T1)}'); add64r(A, G_OUT, WS, T0)
    A(f's_cmp_eq_u32 {s(S_TY)}, {TY_V}'); A('s_cbranch_scc1 W_v')
    run_tile(A, BIG, 'N', 'blk'); epi_qk(A, BIG)
    A(f's_cmp_eq_u32 {s(S_TY)}, {TY_Q}'); A('s_cbranch_scc1 W_qdone')
    signal(A, D_KV, S_TM)
    A('s_branch W_loop')
    A.label('W_qdone')
    A('s_waitcnt vmcnt(0)'); A('s_barrier')
    A('s_branch W_loop')
    A.label('W_v')
    run_tile(A, BIG, 'M', 'blk'); epi_v(A, BIG)
    signal(A, D_KV, S_TM)
    A('s_branch W_loop')
    A.label('W_mlp')
    A(f's_cmp_eq_u32 {s(S_TY)}, {TY_M2}'); A('s_cbranch_scc1 W_m2')
    A(f's_mul_i32 {s(T0)}, {s(S_Y)}, 14'); A(f's_add_u32 {s(T0)}, {s(T0)}, {s(S_TN)}')
    A(f's_and_b32 {s(S_TM)}, {s(T0)}, 3'); A(f's_lshr_b32 {s(S_TN)}, {s(T0)}, 2')
    wait_counter(A, D_LNALL, 128, EXIT)
    A(f's_lshl_b32 {s(T0)}, {s(S_TM)}, 9'); A(f's_add_u32 {s(T0)}, {s(T0)}, {HT}'); add64r(A, G_X, WS, T0)
    A(f's_lshl_b32 {s(T0)}, {s(S_TN)}, 9'); add64r(A, G_W, PW1, T0); add64r(A, G_P2, PB1, T0)
    A(f's_mov_b32 {s(G_LDX)}, 2048'); A(f's_mov_b32 {s(G_DX)}, {2048*32}'); A(f's_mov_b32 {s(G_LDW)}, 7168'); A(f's_mov_b32 {s(G_DW)}, {7168*32}'); A(f's_mov_b32 {s(G_NST)}, 64')
    A(f's_lshl_b32 {s(T0)}, {s(S_TN)}, 19'); A(f's_lshl_b32 {s(T1)}, {s(S_TM)}, 14'); A(f's_add_u32 {s(T0)}, {s(T0)}, {s(T1)}'); A(f's_add_u32 {s(T0)}, {s(T0)}, {UB}')
    add64r(A, G_OUT, WS, T0)
    run_tile(A, BIG, 'N', 'tr'); epi_mlp1(A, BIG)
    signal(A, D_M1, S_TM)
    A('s_branch W_loop')
    A.label('W_m2')
    A(f's_lshl_b32 {s(T0)}, {s(S_Y)}, 1'); A(f's_add_u32 {s(S_TN)}, {s(S_TN)}, {s(T0)}')
    wait_counter(A, D_M1, 14, EXIT, S_TM)
    A(f's_lshl_b32 {s(T0)}, {s(S_TM)}, 14'); A(f's_add_u32 {s(T0)}, {s(T0)}, {UB}'); add64r(A, G_X, WS, T0)
    A(f's_lshl_b32 {s(T0)}, {s(S_TN)}, 9'); add64r(A, G_W, PW2, T0); add64r(A, G_P2, PB2, T0)
    A(f's_mov_b32 {s(G_DX)}, 65536'); A(f's_mov_b32 {s(G_LDW)}, 4096'); A(f's_mov_b32 {s(G_DW)}, {4096*32}'); A(f's_mov_b32 {s(G_NST)}, 112')
    A(f's_lshl_b32 {s(T0)}, {s(S_TN)}, 19'); A(f's_lshl_b32 {s(T1)}, {s(S_TM)}, 9'); A(f's_add_u32 {s(T0)}, {s(T0)}, {s(T1)}'); A(f's_add_u32 {s(T0)}, {s(T0)}, {GB}')
    add64r(A, G_OUT, WS, T0)
    run_tile(A, BIG, 'M', 'blk'); epi_mlp2(A, BIG)
    A('s_waitcnt vmcnt(0)'); A('s_barrier')
    A('s_branch W_loop')
    return tasks

def kv_wait_hook(A, EXIT):
    L, P, D = A.newlabel('kvw'), A.newlabel('kvp'), A.newlabel('kvd')
    S = c1
    A(f's_add_u32 {s(S.S_T2)}, {s(S.S_STEP)}, 1'); A(f's_and_b32 {s(S.S_T3)}, {s(S.S_T2)}, 7')
    A(f's_cmp_lg_u32 {s(S.S_T3)}, 0'); A(f's_cbranch_scc1 {L}')
    kv_wait_block(A, S.S_T2, EXIT)
    A.label(L)

def kv_wait_block(A, sseg, EXIT):
    S = c1
    P, D = A.newlabel('kvp'), A.newlabel('kvd')
    T = c5.V_T
    A(f's_lshr_b32 {s(S.S_T3)}, {s(sseg)}, 3'); A(f's_lshl_b32 {s(S.S_T3)}, {s(S.S_T3)}, 2'); A(f's_add_u32 {s(S.S_T3)}, {s(S.S_T3)}, {4*D_KV}')
    A(f'v_mov_b32 {v(T)}, {s(S.S_T3)}')
    A(f's_mov_b32 {s(S.S_RETRY)}, 0')
    A.label(P)
    A(f'global_load_dword {v(T+1)}, {v(T)}, {s(S.S_DBG,2)} sc1')
    A('s_waitcnt vmcnt(0)')
    A(f'v_readfirstlane_b32 {s(S.S_T3)}, {v(T+1)}')
    A(f's_cmp_ge_u32 {s(S.S_T3)}, 32'); A(f's_cbranch_scc1 {D}')
    A('s_sleep 8')
    A(f's_add_u32 {s(S.S_RETRY)}, {s(S.S_RETRY)}, 1'); A(f's_cmp_lt_u32 {s(S.S_RETRY)}, {POLL}'); A(f's_cbranch_scc1 {P}')
    A(f's_branch {EXIT}')
    A.label(D)

CH_KW = dict(sleep_a=1, sleep_c=1, gap=8, sd=6, rd=1)
def k_mega():
    A = Asm('M_')
    EXIT = 'M_exit'
    A('s_cmp_ge_u32 s2, 256'); A('s_cbranch_scc1 M_end')
    for r, k in ((c1.S_WQ, 'Wq'), (c1.S_WK, 'Wk'), (c1.S_WV, 'Wv'), (c1.S_WO, 'Wo'), (c1.S_MEM0, 'mem0'), (c1.S_DBG, 'dbg'), (c1.S_WS, 'ws')):
        A(f's_load_dwordx2 {s(r,2)}, s[0:1], {KA[k]}')
    A('s_waitcnt lgkmcnt(0)')
    c1.ticket(A)
    A(f's_cmp_ge_u32 {s(c1.S_I)}, 32'); A(f's_cbranch_scc1 {EXIT}')
    A(f's_cmp_ge_u32 {s(c1.S_X)}, 4'); A('s_cbranch_scc1 M_worker')
    orig_pf = c5.prefetch_kv
    first = [True]
    def pf(A_):
        if first[0]:
            first[0] = False
            A_(f's_mov_b32 {s(c1.S_T2)}, 0'); kv_wait_block(A_, c1.S_T2, EXIT)
        else:
            kv_wait_hook(A_, EXIT)
        orig_pf(A_)
    c5.prefetch_kv = pf
    c5.chain_main(A, EXIT, False, 128, **CH_KW)
    c5.prefetch_kv = orig_pf
    A(f's_or_b32 {s(c1.S_T0)}, {s(c1.S_X)}, {s(c1.S_I)}'); A(f's_or_b32 {s(c1.S_T0)}, {s(c1.S_T0)}, {s(c1.S_W)}')
    A(f's_cmp_lg_u32 {s(c1.S_T0)}, 0'); A('s_cbranch_scc1 M_end')
    A(f's_sub_u32 {s(c1.S_T0)}, {s(c1.S_TM1)}, {s(c1.S_TM0)}')
    A('v_mov_b32 v2, 192'); A(f'v_mov_b32 v3, {s(c1.S_T0)}'); A('s_mov_b64 exec, 1')
    A(f'global_store_dword v2, v3, {s(c1.S_DBG,2)}')
    A(f'v_mov_b32 v3, {s(c1.S_TM0)}'); A(f'global_store_dword v2, v3, {s(c1.S_DBG,2)} offset:4')
    A(f'v_mov_b32 v3, {s(c1.S_TM1)}'); A(f'global_store_dword v2, v3, {s(c1.S_DBG,2)} offset:8')
    A('s_branch M_end')
    A.label('M_worker')
    for r, k in ((WS, 'ws'), (PWQ, 'Wq'), (PWK, 'Wk'), (PWV, 'Wv'), (PW1, 'w1'), (PB1, 'b1'), (PW2, 'w2'), (PB2, 'b2'), (DBG, 'dbg')):
        A(f's_load_dwordx2 {s(r,2)}, s[0:1], {KA[k]}')
    A('s_waitcnt lgkmcnt(0)')
    A(f's_sub_u32 {s(S_Y)}, {s(c1.S_X)}, 4')
    A(f's_getpc_b64 {s(TAB,2)}')
    A.label('M_pc')
    A(f's_add_u32 {s(TAB)}, {s(TAB)}, M_tab-M_pc'); A(f's_addc_u32 {s(TAB+1)}, {s(TAB+1)}, 0')
    tasks = worker(A, EXIT)
    A.label(EXIT)
    A(f's_load_dwordx2 s[4:5], s[0:1], {KA["dbg"]}'); A('s_waitcnt lgkmcnt(0)')
    A(f'v_mov_b32 v2, {4*D_ERR}'); A('v_mov_b32 v3, 1'); A('s_mov_b64 exec, 1')
    A('global_atomic_add v2, v3, s[4:5]')
    A.label('M_end'); A('s_endpgm')
    A.fix_hazards()
    tab = '.p2align 2\nM_tab:\n' + ''.join(f'.long {t | (m << 8) | (j << 16)}\n' for t, m, j in tasks)
    return kernel_head('mega_kernel') + A.text() + tab, kernel_footer('mega_kernel', 512, 102, 256)

def k_g3s():
    A = Asm('G3_')
    import build_v3 as b
    A('s_cmp_ge_u32 s2, 128'); A('s_cbranch_scc1 G3_end')
    b.load_ptrs(A, [(40, 'ws'), (42, 'Wo'), (44, 'x'), (46, 'out')])
    wave_id(A)
    A('s_and_b32 s54, s2, 3'); A('s_lshr_b32 s55, s2, 2')
    A('s_lshl_b32 s56, s55, 12'); A(f's_add_u32 s56, s56, {OB}'); add64r(A, G_X, 40, 56)
    A('s_lshl_b32 s56, s54, 9'); add64r(A, G_W, 42, 56)
    A(f's_mov_b32 {s(G_DX)}, 131072'); A(f's_mov_b32 {s(G_LDW)}, 2048'); A(f's_mov_b32 {s(G_DW)}, {2048*32}'); A(f's_mov_b32 {s(G_NST)}, 128')
    run_tile(A, SMALL, 'N', 'blk')
    A('s_lshl_b32 s56, s55, 17'); A('s_lshl_b32 s57, s54, 9'); A('s_add_u32 s56, s56, s57')
    add64r(A, G_OUT, 46, 56); add64r(A, G_P3, 44, 56)
    A(f's_add_u32 s56, s56, {GB}'); add64r(A, G_P2, 40, 56)
    epi_final(A, SMALL)
    A.label('G3_end'); A('s_endpgm')
    A.fix_hazards()
    return kernel_head('g3_kernel') + A.text(), kernel_footer('g3_kernel')

if __name__ == '__main__':
    import build_v3 as b
    ks = [('mega_kernel', 256, 163840, k_mega), ('att_kernel', 512, 0, b.k_att), ('g3_kernel', 128, 131072, k_g3s)]
    open(sys.argv[1], 'w').write(b.build(ks))
```

```python
from asmlib import *
from layout import *
from gemm3 import f2u
import math

A_IMG, A_M, A_O = 4, 6, 8
A_SC, A_HI, A_T0, A_T1 = 16, 18, 21, 22
L, N, G, T = 1, 2, 3, 4
VQ, VK, VV, VKM, VVM, VO = 8, 10, 12, 14, 15, 16
S, P, O, X = 20, 40, 52, 60
QF, KF, KMF, VF, VMF = 0, 32, 64, 80, 112

def att_setup(A):
    A(f'v_and_b32 {v(L)}, 63, v0'); A(f'v_and_b32 {v(N)}, 15, {v(L)}'); A(f'v_lshrrev_b32 {v(G)}, 4, {v(L)}')
    A(f's_mov_b32 {s(A_SC)}, 0x{f2u(128 ** -0.5 * math.log2(math.e)):08x}')
    A(f's_mov_b32 {s(A_HI)}, 0'); A(f's_mov_b32 {s(A_HI+1)}, -1')
    A(f'v_lshlrev_b32 {v(T)}, 4, {v(L)}')
    for r, base in ((VQ, QB), (VK, KB), (VV, VT)):
        A(f'v_add_u32 {v(r)}, {base}, {v(T)}'); A(f'v_add_u32 {v(r+1)}, 4096, {v(r)}')
    A(f'v_and_b32 {v(T)}, 7, {v(L)}'); A(f'v_lshlrev_b32 {v(T)}, 4, {v(T)}'); A(f'v_lshl_add_u32 {v(VKM)}, {v(G)}, 7, {v(T)}')
    A(f'v_add_u32 {v(VKM)}, {KM}, {v(VKM)}')
    A(f'v_and_b32 {v(T)}, 31, {v(L)}'); A(f'v_lshlrev_b32 {v(VVM)}, 3, {v(T)}'); A(f'v_add_u32 {v(VVM)}, {VM}, {v(VVM)}')
    A(f'v_lshrrev_b32 {v(T)}, 2, {v(N)}'); A(f'v_lshrrev_b32 {v(T+1)}, 1, {v(T)}')
    A(f'v_xor_b32 {v(T)}, {v(T)}, {v(T+1)}'); A(f'v_and_b32 {v(T)}, 1, {v(T)}'); A(f'v_lshl_add_u32 {v(T+1)}, {v(T)}, 1, {v(T+1)}')
    A(f'v_and_b32 {v(T)}, 1, {v(G)}'); A(f'v_lshlrev_b32 {v(T)}, 1, {v(T)}'); A(f'v_lshrrev_b32 {v(T+2)}, 1, {v(G)}'); A(f'v_add_u32 {v(T)}, {v(T)}, {v(T+2)}')
    A(f'v_xor_b32 {v(T)}, {v(T)}, {v(T+1)}'); A(f'v_lshlrev_b32 {v(T)}, 4, {v(T)}')
    A(f'v_lshl_add_u32 {v(VO)}, {v(N)}, 6, {v(T)}'); A(f'v_add_u32 {v(VO)}, {OB}, {v(VO)}')

def att_ptrs(A, st, SSEG, SH, SWS):
    b = 6 * st
    def p(dst):
        A(f's_add_u32 {s(dst)}, {s(SWS)}, {s(A_T0)}'); A(f's_addc_u32 {s(dst+1)}, {s(SWS+1)}, 0')
    A(f's_lshl_b32 {s(A_T0)}, {s(SSEG)}, 18'); A(f's_lshl_b32 {s(A_T1)}, {s(SH)}, 13'); A(f's_add_u32 {s(A_T0)}, {s(A_T0)}, {s(A_T1)}'); p(A_IMG + b)
    A(f's_lshl_b32 {s(A_T0)}, {s(SSEG)}, 16'); A(f's_lshl_b32 {s(A_T1)}, {s(SH)}, 11'); A(f's_add_u32 {s(A_T0)}, {s(A_T0)}, {s(A_T1)}'); p(A_M + b)
    A(f's_lshl_b32 {s(A_T0)}, {s(SH)}, 19'); A(f's_lshl_b32 {s(A_T1)}, {s(SSEG)}, 11'); A(f's_add_u32 {s(A_T0)}, {s(A_T0)}, {s(A_T1)}'); p(A_O + b)

NLOADS = 36
def att_loads(A, st, fl=' sc1'):
    b, r = 6 * st, 128 * st
    for t in range(2):
        for c in range(4):
            A(f'global_load_dwordx4 {a(r+QF+16*t+4*c,4)}, {v(VQ+t)}, {s(A_IMG+b,2)} offset:{1024*c}{fl}')
            A(f'global_load_dwordx4 {a(r+KF+16*t+4*c,4)}, {v(VK+t)}, {s(A_IMG+b,2)} offset:{1024*c}{fl}')
    for c in range(4): A(f'global_load_dwordx4 {a(r+KMF+4*c,4)}, {v(VKM)}, {s(A_M+b,2)} offset:{512*c}{fl}')
    for et in range(8):
        A(f'global_load_dwordx4 {a(r+VF+4*et,4)}, {v(VV+et//4)}, {s(A_IMG+b,2)} offset:{1024*(et%4)}{fl}')
        A(f'global_load_dwordx2 {a(r+VMF+2*et,2)}, {v(VVM)}, {s(A_M+b,2)} offset:{256*et}{fl}')

NSTORES = 8
def att_compute(A, st, fl=' sc1'):
    b, r = 6 * st, 128 * st
    tiles = [(0, KF, 0), (0, KMF, 1), (1, KF, 2), (1, KF + 16, 3), (1, KMF, 4)]
    for qt, kb, si in tiles:
        for c in range(4):
            C = '0' if c == 0 else v(S + 4*si, 4)
            A(f'v_mfma_f32_16x16x32_bf16 {v(S+4*si,4)}, {a(r+kb+4*c,4)}, {a(r+QF+16*qt+4*c,4)}, {C}')
    A(f'v_mov_b32 {v(X)}, 0xff800000')
    A(f'v_lshlrev_b32 {v(X+1)}, 2, {v(G)}')
    for i in range(4):
        A(f'v_add_u32 {v(X+2)}, {i}, {v(X+1)}')
        A(f'v_cmp_gt_u32 vcc, {v(X+2)}, {v(N)}')
        A(f'v_cndmask_b32 {v(S+i)}, {v(S+i)}, {v(X)}, vcc')
        A(f'v_cndmask_b32 {v(S+12+i)}, {v(S+12+i)}, {v(X)}, vcc')
        A(f'v_cndmask_b32 {v(S+4+i)}, {v(S+4+i)}, {v(X)}, {s(A_HI,2)}')
        A(f'v_cndmask_b32 {v(S+16+i)}, {v(S+16+i)}, {v(X)}, {s(A_HI,2)}')
    for qt, regs in ((0, list(range(S, S + 8))), (1, list(range(S + 8, S + 20)))):
        M = X + 3
        A(f'v_max3_f32 {v(M)}, {v(regs[0])}, {v(regs[1])}, {v(regs[2])}')
        k = 3
        while k + 1 < len(regs): A(f'v_max3_f32 {v(M)}, {v(M)}, {v(regs[k])}, {v(regs[k+1])}'); k += 2
        if k < len(regs): A(f'v_max_f32 {v(M)}, {v(M)}, {v(regs[k])}')
        for sw in ('v_permlane16_swap_b32', 'v_permlane32_swap_b32'):
            A(f'v_mov_b32 {v(M+1)}, {v(M)}'); A(f'{sw} {v(M)}, {v(M+1)}'); A(f'v_max_f32 {v(M)}, {v(M)}, {v(M+1)}')
        A(f'v_mul_f32 {v(M)}, {s(A_SC)}, {v(M)}')
        for q in regs: A(f'v_fma_f32 {v(q)}, {v(q)}, {s(A_SC)}, -{v(M)}')
        for q in regs: A(f'v_exp_f32 {v(q)}, {v(q)}')
        Ls = X + 5 + qt
        A(f'v_add_f32 {v(Ls)}, {v(regs[0])}, {v(regs[1])}')
        for q in regs[2:]: A(f'v_add_f32 {v(Ls)}, {v(Ls)}, {v(q)}')
        for sw in ('v_permlane16_swap_b32', 'v_permlane32_swap_b32'):
            A(f'v_mov_b32 {v(M+1)}, {v(Ls)}'); A(f'{sw} {v(Ls)}, {v(M+1)}'); A(f'v_add_f32 {v(Ls)}, {v(Ls)}, {v(M+1)}')
        A(f'v_rcp_f32 {v(Ls)}, {v(Ls)}')
        for q in regs: A(f'v_mul_f32 {v(q)}, {v(q)}, {v(Ls)}')
        if qt == 0:
            A(f'v_cvt_pk_bf16_f32 {v(P)}, {v(regs[0])}, {v(regs[1])}'); A(f'v_cvt_pk_bf16_f32 {v(P+1)}, {v(regs[2])}, {v(regs[3])}')
            A(f'v_mov_b32 {v(P+2)}, 0'); A(f'v_mov_b32 {v(P+3)}, 0')
            A(f'v_cvt_pk_bf16_f32 {v(P+4)}, {v(regs[4])}, {v(regs[5])}'); A(f'v_cvt_pk_bf16_f32 {v(P+5)}, {v(regs[6])}, {v(regs[7])}')
        else:
            for i in range(6): A(f'v_cvt_pk_bf16_f32 {v(P+6+i)}, {v(regs[2*i])}, {v(regs[2*i+1])}')
    for qt in range(2):
        Pb = P + 6 * qt
        for ep in range(4):
            pk = X + 8 if ep % 2 == 0 else X + 12
            for k in range(2):
                A(f'v_mfma_f32_16x16x16_bf16 {v(O+4*k,4)}, {a(r+VMF+2*(2*ep+k),2)}, {v(Pb+4,2)}, 0')
            for k in range(2):
                A(f'v_mfma_f32_16x16x32_bf16 {v(O+4*k,4)}, {a(r+VF+4*(2*ep+k),4)}, {v(Pb,4)}, {v(O+4*k,4)}')
            for k in range(2):
                o = O + 4 * k
                A(f'v_cvt_pk_bf16_f32 {v(pk+2*k)}, {v(o)}, {v(o+1)}'); A(f'v_cvt_pk_bf16_f32 {v(pk+2*k+1)}, {v(o+2)}, {v(o+3)}')
            A(f'v_permlane16_swap_b32 {v(pk)}, {v(pk+2)}'); A(f'v_permlane16_swap_b32 {v(pk+1)}, {v(pk+3)}')
            A(f'v_add_u32 {v(T)}, {ep*131072 + qt*1024}, {v(VO)}')
            A(f'global_store_dwordx4 {v(T)}, {v(pk,4)}, {s(A_O+b,2)}{fl}')

def att_task(A, SSEG0, SH0, SWS, pairs, tseg, th):
    att_setup(A)
    def ptrs(k):
        ds, dh = pairs[k]
        A(f's_add_u32 {s(tseg)}, {s(SSEG0)}, {ds}'); A(f's_add_u32 {s(th)}, {s(SH0)}, {dh}')
        att_ptrs(A, k % 2, tseg, th, SWS)
    ptrs(0); att_loads(A, 0)
    n = len(pairs)
    for k in range(n):
        if k + 1 < n:
            ptrs(k + 1); att_loads(A, (k + 1) % 2)
        younger = (NLOADS if k + 1 < n else 0) + (NSTORES if k else 0)
        A(f's_waitcnt vmcnt({younger})')
        att_compute(A, k % 2)
```

```python
from asmlib import *
from layout import *

POLL_LIMIT = 300000

S_WQ, S_WK, S_WV, S_WO, S_MEM0, S_DBG, S_WS = 4, 6, 8, 10, 12, 14, 16
S_X, S_I, S_W, S_H, S_J, S_STEP = 18, 19, 20, 21, 22, 23
P_MEM, P_QK, P_OX, P_PART, P_KX, P_VX, P_KM, P_VM = 24, 26, 28, 30, 32, 34, 36, 38
S_T0, S_T1, S_T2, S_T3 = 40, 41, 42, 43
S_EVEN, S_SC, S_RETRY, S_LO16, S_HI32 = 44, 46, 47, 48, 50
S_TM0, S_TM1 = 52, 54
S_ST = 56
S_ACC = 64

V_L, V_N, V_G, V_L16, V_QKST, V_QLD, V_KX0, V_KX1, V_VX0, V_VX1, V_OST, V_MST, V_IDX = 1, 2, 3, 4, 5, 6, 7, 8, 9, 10, 11, 12, 14
V_ONES = 16
V_FMEM, V_FQK, V_FOX, V_FPART, V_VMST, V_VPLD, V_T = 20, 21, 22, 23, 24, 25, 26
V_POLL = 32
V_ACC = 48
V_TMP = 56
V_AF = 64
V_KXF, V_VXF, V_QF, V_KMF, V_S, V_P, V_VMF, V_O, V_X = 128, 160, 168, 184, 200, 212, 218, 222, 230

LDS_AF, LDS_VP, LDS_WOP = 0, 16384, 20480
A_MAIN, A_V, A_WO = 0, 128, 192

def poll(A, loads, regs, tmp, exit_label):
    L = A.newlabel('poll'); D = A.newlabel('polld')
    A(f's_mov_b32 {s(S_RETRY)}, 0')
    A.label(L)
    for ld in loads: A(ld)
    A('s_waitcnt vmcnt(0)')
    r = list(regs)
    A(f'v_max3_u32 {v(tmp)}, {v(r[0])}, {v(r[1])}, {v(r[2])}')
    k = 3
    while k + 1 < len(r):
        A(f'v_max3_u32 {v(tmp)}, {v(tmp)}, {v(r[k])}, {v(r[k+1])}'); k += 2
    if k < len(r): A(f'v_max_u32 {v(tmp)}, {v(tmp)}, {v(r[k])}')
    A(f'v_cmp_eq_u32 vcc, -1, {v(tmp)}')
    A(f's_cbranch_vccz {D}')
    A(f's_add_u32 {s(S_RETRY)}, {s(S_RETRY)}, 1')
    A(f's_cmp_lt_u32 {s(S_RETRY)}, {POLL_LIMIT}')
    A(f's_cbranch_scc1 {L}')
    A(f's_branch {exit_label}')
    A.label(D)

def add64(A, dst, src, imm):
    A(f's_add_u32 {s(dst)}, {s(src)}, {imm & 0xffffffff}')
    A(f's_addc_u32 {s(dst+1)}, {s(src+1)}, 0')

def add64s(A, dst, src, sreg):
    A(f's_add_u32 {s(dst)}, {s(src)}, {s(sreg)}')
    A(f's_addc_u32 {s(dst+1)}, {s(src+1)}, 0')

LOGSTEP = 40
def stamp(A, k, timing):
    if not timing: return
    L = A.newlabel('st')
    A(f's_cmp_lg_u32 {s(S_STEP)}, {LOGSTEP}'); A(f's_cbranch_scc1 {L}')
    A(f's_memrealtime {s(S_ACC+2*k,2)}')
    A.label(L)

def load_weights(A):
    vG, vR, vT = V_T, V_T + 1, V_T + 2
    jobs = []
    A(f'v_lshrrev_b32 {v(vT)}, 1, {v(V_L)}')
    A(f'v_and_b32 {v(vT+1)}, 1, {v(V_L)}')
    A(f'v_lshlrev_b32 {v(vT+1)}, 4, {v(vT+1)}')
    A(f'v_lshl_add_u32 {v(vG)}, {v(vT)}, 13, {v(vT+1)}')
    A(f'v_lshl_add_u32 {v(vT+2)}, {v(vT)}, 11, {v(vT+1)}')
    vGo = vT + 2
    A(f'v_lshrrev_b32 {v(vT)}, 2, {v(V_N)}')
    A(f'v_lshl_add_u32 {v(vT)}, {v(V_G)}, 3, {v(vT)}')
    A(f'v_lshlrev_b32 {v(vT)}, 5, {v(vT)}')
    A(f'v_and_b32 {v(vT+1)}, 3, {v(V_N)}')
    A(f'v_lshl_add_u32 {v(vR)}, {v(vT+1)}, 3, {v(vT)}')
    A(f's_lshl_b32 {s(S_T0)}, {s(S_W)}, 15')
    A(f'v_add_u32 {v(vR)}, {s(S_T0)}, {v(vR)}')
    PM, PV_, PO = P_MEM, P_QK, P_OX
    A(f's_cmp_lt_u32 {s(S_W)}, 2')
    A(f's_cselect_b32 {s(PM)}, {s(S_WQ)}, {s(S_WK)}')
    A(f's_cselect_b32 {s(PM+1)}, {s(S_WQ+1)}, {s(S_WK+1)}')
    A(f's_lshl_b32 {s(S_T0)}, {s(S_H)}, 8')
    A(f's_lshl_b32 {s(S_T1)}, {s(S_J)}, 6')
    A(f's_add_u32 {s(S_T0)}, {s(S_T0)}, {s(S_T1)}')
    A(f's_and_b32 {s(S_T1)}, {s(S_W)}, 1')
    A(f's_lshl_b32 {s(S_T2)}, {s(S_T1)}, 5')
    A(f's_add_u32 {s(S_T2)}, {s(S_T2)}, {s(S_T0)}')
    add64s(A, PM, PM, S_T2)
    A(f's_lshl_b32 {s(S_T1)}, {s(S_T1)}, 22')
    A(f's_add_u32 {s(S_T0)}, {s(S_T0)}, {s(S_T1)}')
    A(f's_lshr_b32 {s(S_T1)}, {s(S_W)}, 1')
    A(f's_lshl_b32 {s(S_T1)}, {s(S_T1)}, 5')
    A(f's_add_u32 {s(S_T0)}, {s(S_T0)}, {s(S_T1)}')
    add64s(A, PV_, S_WV, S_T0)
    A(f's_lshl_b32 {s(S_T0)}, {s(S_X)}, 21')
    A(f's_lshl_b32 {s(S_T1)}, {s(S_W)}, 19')
    A(f's_add_u32 {s(S_T0)}, {s(S_T0)}, {s(S_T1)}')
    A(f's_lshl_b32 {s(S_T1)}, {s(S_I)}, 6')
    A(f's_add_u32 {s(S_T0)}, {s(S_T0)}, {s(S_T1)}')
    add64s(A, PO, S_WO, S_T0)
    A(f's_lshl_b32 {s(S_T3)}, {s(S_W)}, 15')
    def dma_block(base, voff, rowstride, k0, coloff, slot):
        for half in range(2):
            add64(A, S_T0, base, (k0 + 32 * half) * rowstride + coloff)
            A(f's_add_u32 m0, {s(S_T3)}, {slot * 2048 + half * 1024}')
            A('s_nop 0')
            A(f'global_load_lds_dwordx4 {v(voff)}, {s(S_T0,2)}')
    def read_block(slot, areg):
        for q, off in enumerate((0, 128, 1024, 1152)):
            A(f'ds_read_b64_tr_b16 {a(areg + 2*q, 2)}, {v(vR)} offset:{slot * 2048 + off}')
    for c in range(16): dma_block(PM, vG, 8192, 64 * c, 0, c)
    A('s_waitcnt vmcnt(0)')
    for c in range(16): read_block(c, A_MAIN + 8 * c)
    A('s_waitcnt lgkmcnt(0)')
    for c in range(8): dma_block(PV_, vG, 8192, 64 * c, 0, c)
    for c in range(4):
        for t in range(2): dma_block(PO, vGo, 2048, 64 * c, 32 * t, 8 + c * 2 + t)
    A('s_waitcnt vmcnt(0)')
    for c in range(8): read_block(c, A_V + 8 * c)
    for c in range(8): read_block(8 + c, A_WO + 8 * c)
    A('s_waitcnt lgkmcnt(0)')

def lane_setup(A):
    T = V_T
    A(f'v_and_b32 {v(V_L)}, 63, v0')
    A(f'v_lshrrev_b32 {v(T)}, 6, v0')
    A('s_nop 0')
    A(f'v_readfirstlane_b32 {s(S_W)}, {v(T)}')
    A(f'v_and_b32 {v(V_N)}, 15, {v(V_L)}')
    A(f'v_lshrrev_b32 {v(V_G)}, 4, {v(V_L)}')
    A(f'v_lshlrev_b32 {v(V_L16)}, 4, {v(V_L)}')
    A(f's_lshr_b32 {s(S_T0)}, {s(S_I)}, 2')
    A(f's_lshl_b32 {s(S_H)}, {s(S_X)}, 3')
    A(f's_add_u32 {s(S_H)}, {s(S_H)}, {s(S_T0)}')
    A(f's_and_b32 {s(S_J)}, {s(S_I)}, 3')
    A(f's_mov_b32 {s(S_EVEN)}, 0x55555555'); A(f's_mov_b32 {s(S_EVEN+1)}, 0x55555555')
    A(f's_mov_b32 {s(S_LO16)}, 0x00ff00ff'); A(f's_mov_b32 {s(S_LO16+1)}, 0x00ff00ff')
    A(f's_mov_b32 {s(S_HI32)}, 0'); A(f's_mov_b32 {s(S_HI32+1)}, -1')
    A(f's_mov_b32 {s(S_SC)}, 0x3e0293ee')
    import struct, math
    c = 128 ** -0.5 * math.log2(math.e)
    A(f's_mov_b32 {s(S_SC)}, 0x{struct.unpack("<I", struct.pack("<f", c))[0]:08x}')
    for k in range(4): A(f'v_mov_b32 {v(V_ONES+k)}, -1')
    A(f'v_mov_b32 {v(T)}, 0xeeee'); A(f'v_mov_b32 {v(T+1)}, 0x4444')
    A(f'v_cndmask_b32 {v(V_IDX)}, {v(T)}, {v(T+1)}, {s(S_LO16,2)}')
    A(f'v_and_b32 {v(T)}, 1, {v(V_G)}'); A(f'v_lshlrev_b32 {v(T)}, 2, {v(T)}')
    A(f'v_lshrrev_b32 {v(T+1)}, 1, {v(V_G)}'); A(f'v_add_u32 {v(T)}, {v(T)}, {v(T+1)}')
    A(f'v_and_b32 {v(T+1)}, 1, {v(V_N)}'); A(f'v_lshl_add_u32 {v(T)}, {v(T+1)}, 1, {v(T)}')
    A(f'v_lshlrev_b32 {v(T)}, 4, {v(T)}')
    A(f'v_lshrrev_b32 {v(T+1)}, 3, {v(V_N)}'); A(f'v_lshl_add_u32 {v(T)}, {v(T+1)}, 7, {v(T)}')
    A(f'v_bfe_u32 {v(T+1)}, {v(V_N)}, 1, 2'); A(f'v_lshl_add_u32 {v(T)}, {v(T+1)}, 2, {v(T)}')
    A(f's_lshr_b32 {s(S_T0)}, {s(S_W)}, 1'); A(f's_lshl_b32 {s(S_T0)}, {s(S_T0)}, 11')
    A(f's_lshl_b32 {s(S_T1)}, {s(S_J)}, 9'); A(f's_add_u32 {s(S_T0)}, {s(S_T0)}, {s(S_T1)}')
    A(f's_and_b32 {s(S_T1)}, {s(S_W)}, 1'); A(f's_lshl_b32 {s(S_T1)}, {s(S_T1)}, 8'); A(f's_add_u32 {s(S_T0)}, {s(S_T0)}, {s(S_T1)}')
    A(f'v_add_u32 {v(V_QKST)}, {s(S_T0)}, {v(T)}')
    A(f'v_and_b32 {v(T)}, 7, {v(V_L)}'); A(f'v_lshlrev_b32 {v(T)}, 4, {v(T)}')
    A(f'v_lshl_add_u32 {v(V_QLD)}, {v(V_G)}, 7, {v(T)}')
    A(f'v_lshlrev_b32 {v(T)}, 13, {v(V_N)}'); A(f'v_lshl_add_u32 {v(T)}, {v(V_G)}, 4, {v(T)}')
    A(f's_lshl_b32 {s(S_T0)}, {s(S_H)}, 8')
    A(f'v_add_u32 {v(V_KX0)}, {s(S_T0)}, {v(T)}')
    A(f'v_add_u32 {v(V_KX1)}, 0x20000, {v(V_KX0)}')
    A(f's_lshl_b32 {s(S_T0)}, {s(S_H)}, 7'); A(f's_lshl_b32 {s(S_T1)}, {s(S_J)}, 5'); A(f's_add_u32 {s(S_T0)}, {s(S_T0)}, {s(S_T1)}')
    A(f'v_add_u32 {v(T)}, {s(S_T0)}, {v(V_N)}'); A(f'v_lshlrev_b32 {v(T)}, 12, {v(T)}')
    A(f'v_lshl_add_u32 {v(V_VX0)}, {v(V_G)}, 3, {v(T)}')
    A(f'v_add_u32 {v(V_VX1)}, 0x10000, {v(V_VX0)}')
    A(f'v_lshrrev_b32 {v(T)}, 3, {v(V_N)}'); A(f'v_lshlrev_b32 {v(T)}, 4, {v(T)}')
    A(f'v_and_b32 {v(T+1)}, 7, {v(V_N)}'); A(f'v_add_u32 {v(T)}, {v(T)}, {v(T+1)}')
    A(f'v_lshlrev_b32 {v(T)}, 4, {v(T)}'); A(f'v_lshl_add_u32 {v(T)}, {v(V_G)}, 2, {v(T)}')
    A(f's_lshl_b32 {s(S_T0)}, {s(S_I)}, 9')
    A(f'v_add_u32 {v(V_OST)}, {s(S_T0)}, {v(T)}')
    A(f'v_lshrrev_b32 {v(T)}, 1, {v(V_G)}'); A(f'v_lshlrev_b32 {v(T)}, 4, {v(T)}')
    A(f'v_and_b32 {v(T+1)}, 1, {v(V_G)}'); A(f'v_lshl_add_u32 {v(T)}, {v(T+1)}, 2, {v(T)}')
    A(f'v_and_b32 {v(T+1)}, 1, {v(V_N)}'); A(f'v_lshl_add_u32 {v(T)}, {v(T+1)}, 1, {v(T)}')
    A(f'v_bfe_u32 {v(T+1)}, {v(V_N)}, 1, 1'); A(f'v_lshl_add_u32 {v(T)}, {v(T+1)}, 3, {v(T)}')
    A(f'v_lshlrev_b32 {v(T)}, 4, {v(T)}')
    A(f'v_lshrrev_b32 {v(T+1)}, 2, {v(V_N)}'); A(f'v_lshl_add_u32 {v(T)}, {v(T+1)}, 2, {v(T)}')
    A(f'v_add_u32 {v(V_MST)}, {s(S_T0)}, {v(T)}')
    A(f'v_add_u32 {v(V_FMEM)}, {s(S_T0)}, {v(V_L16)}')
    A(f'v_mov_b32 {v(V_FOX)}, {v(V_FMEM)}')
    A(f'v_and_b32 {v(T)}, 31, {v(V_L)}'); A(f'v_lshlrev_b32 {v(T)}, 4, {v(T)}')
    A(f'v_lshrrev_b32 {v(T+1)}, 5, {v(V_L)}'); A(f'v_lshl_add_u32 {v(T)}, {v(T+1)}, 11, {v(T)}')
    A(f's_lshl_b32 {s(S_T1)}, {s(S_J)}, 9')
    A(f'v_add_u32 {v(V_FQK)}, {s(S_T1)}, {v(T)}')
    A(f's_lshl_b32 {s(S_T1)}, {s(S_X)}, 10')
    A(f'v_add_u32 {v(V_FPART)}, {s(S_T1)}, {v(V_L16)}')
    A(f'v_and_b32 {v(T)}, 31, {v(V_L)}'); A(f'v_lshlrev_b32 {v(T)}, 3, {v(T)}')
    A(f's_lshl_b32 {s(S_T1)}, {s(S_J)}, 9')
    A(f'v_add_u32 {v(V_VMST)}, {s(S_T1)}, {v(T)}')
    A(f'v_and_b32 {v(T)}, 31, {v(V_L)}'); A(f'v_lshlrev_b32 {v(V_VPLD)}, 4, {v(T)}')

def set_ptrs(A):
    A(f's_mul_i32 {s(S_T0)}, {s(S_X)}, {MEMX_XS}'); A(f's_add_u32 {s(S_T0)}, {s(S_T0)}, {MEMX}'); add64s(A, P_MEM, S_WS, S_T0)
    A(f's_mul_i32 {s(S_T0)}, {s(S_X)}, {QKX_XS}'); A(f's_add_u32 {s(S_T0)}, {s(S_T0)}, {QKX}')
    A(f's_lshr_b32 {s(S_T1)}, {s(S_I)}, 2'); A(f's_lshl_b32 {s(S_T1)}, {s(S_T1)}, 12'); A(f's_add_u32 {s(S_T0)}, {s(S_T0)}, {s(S_T1)}')
    add64s(A, P_QK, S_WS, S_T0)
    A(f's_mul_i32 {s(S_T0)}, {s(S_X)}, {OX_XS}'); A(f's_add_u32 {s(S_T0)}, {s(S_T0)}, {OX}'); add64s(A, P_OX, S_WS, S_T0)
    A(f's_lshl_b32 {s(S_T0)}, {s(S_I)}, 12'); A(f's_add_u32 {s(S_T0)}, {s(S_T0)}, {PART}'); add64s(A, P_PART, S_WS, S_T0)
    add64(A, P_KX, S_WS, KB); add64(A, P_VX, S_WS, VT)
    A(f's_lshl_b32 {s(S_T0)}, {s(S_H)}, 11'); A(f's_add_u32 {s(S_T1)}, {s(S_T0)}, {KM}'); add64s(A, P_KM, S_WS, S_T1)
    A(f's_add_u32 {s(S_T1)}, {s(S_T0)}, {VM}'); add64s(A, P_VM, S_WS, S_T1)

STEP_MEM, STEP_QK, STEP_OX, STEP_PART, STEP_KX, STEP_VX, STEP_KM = 16384, 32768, 16384, 131072, 32 * 8192, 64, 65536

def advance_ptrs(A):
    for p, d in ((P_MEM, STEP_MEM), (P_QK, STEP_QK), (P_OX, STEP_OX), (P_PART, STEP_PART), (P_KM, STEP_KM), (P_VM, STEP_KM)):
        add64(A, p, p, d)

def fill_slots(A, ahead):
    T = S_T0
    add64(A, T, P_QK, ahead * STEP_QK)
    A(f'global_store_dwordx4 {v(V_FQK)}, {v(V_ONES,4)}, {s(T,2)}')
    add64(A, T, P_PART, ahead * STEP_PART)
    A(f'global_store_dwordx4 {v(V_FPART)}, {v(V_ONES,4)}, {s(T,2)} sc1')
    A('s_mov_b32 exec_hi, 0')
    add64(A, T, P_MEM, (ahead + 1) * STEP_MEM)
    A(f'global_store_dwordx4 {v(V_FMEM)}, {v(V_ONES,4)}, {s(T,2)}')
    add64(A, T, P_OX, ahead * STEP_OX)
    A(f'global_store_dwordx4 {v(V_FOX)}, {v(V_ONES,4)}, {s(T,2)}')
    A(f's_mov_b64 exec, -1')

def prefetch_kv(A):
    for t, vo in ((0, V_KX0), (1, V_KX1)):
        for c in range(4):
            A(f'global_load_dwordx4 {v(V_KXF + 16*t + 4*c, 4)}, {v(vo)}, {s(P_KX,2)} offset:{64*c} sc1')
    for et, vo in ((0, V_VX0), (1, V_VX1)):
        A(f'global_load_dwordx2 {v(V_VXF + 4*et, 2)}, {v(vo)}, {s(P_VX,2)} sc1')
        A(f'global_load_dwordx2 {v(V_VXF + 4*et + 2, 2)}, {v(vo)}, {s(P_VX,2)} offset:32 sc1')

def pack_pairs(A, x0, x1, x2, x3, d0, d1, t):
    dp = 'quad_perm:[1,0,3,2] row_mask:0xf bank_mask:0xf'
    for k, x in enumerate((x0, x1, x2, x3)): A(f'v_mov_b32_dpp {v(t+k)}, {v(x)} {dp}')
    E = s(S_EVEN, 2)
    A(f'v_cndmask_b32 {v(t+4)}, {v(t+2)}, {v(x0)}, {E}')
    A(f'v_cndmask_b32 {v(t+5)}, {v(x2)}, {v(t+0)}, {E}')
    A(f'v_cvt_pk_bf16_f32 {v(d0)}, {v(t+4)}, {v(t+5)}')
    A(f'v_cndmask_b32 {v(t+4)}, {v(t+3)}, {v(x1)}, {E}')
    A(f'v_cndmask_b32 {v(t+5)}, {v(x3)}, {v(t+1)}, {E}')
    A(f'v_cvt_pk_bf16_f32 {v(d1)}, {v(t+4)}, {v(t+5)}')

def step_body(A, EXIT, timing, last_label):
    W_ATT = 3
    loads = [f'global_load_dwordx4 {v(V_POLL+4*c,4)}, {v(V_TMP)}, {s(P_MEM,2)} offset:{1024*c} sc1' for c in range(4)]
    A(f's_lshl_b32 {s(S_T0)}, {s(S_W)}, 12')
    A(f'v_add_u32 {v(V_TMP)}, {s(S_T0)}, {v(V_L16)}')
    poll(A, loads, range(V_POLL, V_POLL + 16), V_TMP + 1, EXIT)
    stamp(A, 0, timing)
    for c in range(4): A(f'ds_write_b128 {v(V_TMP)}, {v(V_POLL+4*c,4)} offset:{LDS_AF + 1024*c}')
    A('s_waitcnt lgkmcnt(0)')
    A('s_barrier')
    stamp(A, 8, timing)
    for c in range(16): A(f'ds_read_b128 {v(V_AF+4*c,4)}, {v(V_L16)} offset:{LDS_AF + 1024*c}')
    for k in range(4): A(f'v_mov_b32 {v(V_ACC+k)}, 0'); A(f'v_mov_b32 {v(V_ACC+4+k)}, 0')
    for c in range(16):
        A(f's_waitcnt lgkmcnt({min(15 - c, 15)})')
        A(f'v_smfmac_f32_16x16x64_bf16 {v(V_ACC,4)}, {v(V_AF+4*c,4)}, {a(A_MAIN+8*c,8)}, {v(V_IDX)}')
    LV1, LV2 = A.newlabel('vh1'), A.newlabel('vhd')
    T = V_TMP
    A(f's_bitcmp1_b32 {s(S_W)}, 0')
    A(f's_cbranch_scc1 {LV1}')
    def vpart(base):
        seq = [f'v_smfmac_f32_16x16x64_bf16 {v(V_ACC+4,4)}, {v(V_AF+4*(base+c),4)}, {a(A_V+8*c,8)}, {v(V_IDX)}' for c in range(8)]
        A(seq[0]); A(seq[1])
        r = V_ACC
        A(f'v_permlane32_swap_b32 {v(r)}, {v(r+1)}')
        A(f'v_permlane32_swap_b32 {v(r+2)}, {v(r+3)}')
        A(seq[2])
        A(f'v_add_f32 {v(T+2)}, {v(r)}, {v(r+1)}')
        A(f'v_add_f32 {v(T+3)}, {v(r+2)}, {v(r+3)}')
        A(seq[3])
        dp = 'quad_perm:[1,0,3,2] row_mask:0xf bank_mask:0xf'
        A(f'v_mov_b32_dpp {v(T+4)}, {v(T+2)} {dp}')
        A(f'v_mov_b32_dpp {v(T+5)}, {v(T+3)} {dp}')
        E = s(S_EVEN, 2)
        A(f'v_cndmask_b32 {v(T+6)}, {v(T+5)}, {v(T+2)}, {E}')
        A(f'v_cndmask_b32 {v(T+7)}, {v(T+3)}, {v(T+4)}, {E}')
        A(f'v_cvt_pk_bf16_f32 {v(T+6)}, {v(T+6)}, {v(T+7)}')
        A(f'global_store_dword {v(V_QKST)}, {v(T+6)}, {s(P_QK,2)}')
        for x in seq[4:]: A(x)
    vpart(0)
    A(f's_branch {LV2}')
    A.label(LV1)
    vpart(8)
    A.label(LV2)
    stamp(A, 1, timing)
    LK = A.newlabel('nok')
    A(f's_cmp_lt_u32 {s(S_W)}, 2'); A(f's_cbranch_scc1 {LK}')
    A(f'global_store_dword {v(V_QKST)}, {v(T+6)}, {s(P_KM,2)} offset:-2048 sc1')
    A.label(LK)
    A(f's_lshl_b32 {s(S_T0)}, {s(S_W)}, 10')
    A(f'v_add_u32 {v(T)}, {s(S_T0)}, {v(V_L16)}')
    A(f'ds_write_b128 {v(T)}, {v(V_ACC+4,4)} offset:{LDS_VP}')
    A('s_waitcnt lgkmcnt(0)')
    A('s_barrier')
    LB = A.newlabel('noatt')
    A(f's_cmp_lg_u32 {s(S_W)}, {W_ATT}'); A(f's_cbranch_scc1 {LB}')
    X = V_X
    for et in range(2):
        for k, (wv, hf) in enumerate(((0, 0), (0, 1), (1, 0), (1, 1))):
            A(f'ds_read_b128 {v(V_AF + 16*et + 4*k, 4)}, {v(V_VPLD)} offset:{LDS_VP + (2*et + wv)*1024 + hf*512}')
    A('s_waitcnt lgkmcnt(0)')
    for et in range(2):
        b = V_AF + 16 * et
        for i in range(4):
            A(f'v_add_f32 {v(b+i)}, {v(b+i)}, {v(b+4+i)}'); A(f'v_add_f32 {v(b+8+i)}, {v(b+8+i)}, {v(b+12+i)}')
        for i in range(4): A(f'v_add_f32 {v(b+i)}, {v(b+i)}, {v(b+8+i)}')
        A(f'v_cvt_pk_bf16_f32 {v(V_VMF+2*et)}, {v(b)}, {v(b+1)}')
        A(f'v_cvt_pk_bf16_f32 {v(V_VMF+2*et+1)}, {v(b+2)}, {v(b+3)}')
    loads = [f'global_load_dwordx4 {v(V_QF+4*c,4)}, {v(V_QLD)}, {s(P_QK,2)} offset:{512*c} sc1' for c in range(4)]
    loads += [f'global_load_dwordx4 {v(V_KMF+4*c,4)}, {v(V_QLD)}, {s(P_QK,2)} offset:{2048+512*c} sc1' for c in range(4)]
    poll(A, loads, range(V_QF, V_QF + 32), X, EXIT)
    stamp(A, 2, timing)
    for t, base in ((0, V_KXF), (1, V_KXF + 16), (2, V_KMF)):
        for c in range(4):
            C = '0' if c == 0 else v(V_S + 4*t, 4)
            A(f'v_mfma_f32_16x16x32_bf16 {v(V_S+4*t,4)}, {v(base+4*c,4)}, {v(V_QF+4*c,4)}, {C}')
    S = V_S
    A(f'v_max3_f32 {v(X)}, {v(S)}, {v(S+1)}, {v(S+2)}')
    A(f'v_max3_f32 {v(X)}, {v(X)}, {v(S+3)}, {v(S+4)}')
    A(f'v_max3_f32 {v(X)}, {v(X)}, {v(S+5)}, {v(S+6)}')
    A(f'v_max_f32 {v(X)}, {v(X)}, {v(S+7)}')
    A(f'v_mov_b32 {v(X+1)}, 0xff800000')
    for i in range(4): A(f'v_cndmask_b32 {v(S+8+i)}, {v(S+8+i)}, {v(X+1)}, {s(S_HI32,2)}')
    A(f'v_max3_f32 {v(X)}, {v(X)}, {v(S+8)}, {v(S+9)}')
    A(f'v_max3_f32 {v(X)}, {v(X)}, {v(S+10)}, {v(S+11)}')
    for sw in ('v_permlane16_swap_b32', 'v_permlane32_swap_b32'):
        A(f'v_mov_b32 {v(X+1)}, {v(X)}')
        A(f'{sw} {v(X)}, {v(X+1)}')
        A(f'v_max_f32 {v(X)}, {v(X)}, {v(X+1)}')
    A(f'v_mul_f32 {v(X)}, {s(S_SC)}, {v(X)}')
    for i in range(12): A(f'v_fma_f32 {v(S+i)}, {v(S+i)}, {s(S_SC)}, -{v(X)}')
    for i in range(12): A(f'v_exp_f32 {v(S+i)}, {v(S+i)}')
    for i in range(6): A(f'v_cvt_pk_bf16_f32 {v(V_P+i)}, {v(S+2*i)}, {v(S+2*i+1)}')
    for et in range(2):
        A(f'v_mfma_f32_16x16x32_bf16 {v(V_O+4*et,4)}, {v(V_VXF+4*et,4)}, {v(V_P,4)}, 0')
    for et in range(2):
        A(f'v_mfma_f32_16x16x16_bf16 {v(V_O+4*et,4)}, {v(V_VMF+2*et,2)}, {v(V_P+4,2)}, {v(V_O+4*et,4)}')
    for i in range(6): A(f'v_add_f32 {v(S+i)}, {v(S+i)}, {v(S+6+i)}')
    for i in range(3): A(f'v_add_f32 {v(S+i)}, {v(S+i)}, {v(S+3+i)}')
    A(f'v_add_f32 {v(S)}, {v(S)}, {v(S+1)}'); A(f'v_add_f32 {v(X)}, {v(S)}, {v(S+2)}')
    for sw in ('v_permlane16_swap_b32', 'v_permlane32_swap_b32'):
        A(f'v_mov_b32 {v(X+1)}, {v(X)}')
        A(f'{sw} {v(X)}, {v(X+1)}')
        A(f'v_add_f32 {v(X)}, {v(X)}, {v(X+1)}')
    A(f'v_rcp_f32 {v(X)}, {v(X)}')
    for i in range(4): A(f'v_cndmask_b32 {v(X+2+i)}, {v(V_O+4+i)}, {v(V_O+i)}, {s(S_LO16,2)}')
    for i in range(4): A(f'v_mul_f32 {v(X+2+i)}, {v(X+2+i)}, {v(X)}')
    A(f'v_cvt_pk_bf16_f32 {v(X+6)}, {v(X+2)}, {v(X+3)}')
    A(f'v_cvt_pk_bf16_f32 {v(X+7)}, {v(X+4)}, {v(X+5)}')
    A(f'global_store_dword {v(V_OST)}, {v(X+6)}, {s(P_OX,2)}')
    A(f'global_store_dword {v(V_OST)}, {v(X+7)}, {s(P_OX,2)} offset:128')
    stamp(A, 3, timing)
    A.label(LB)
    A('s_barrier')
    A(f's_lshl_b32 {s(S_T0)}, {s(S_W)}, 12')
    A(f'v_add_u32 {v(V_TMP)}, {s(S_T0)}, {v(V_L16)}')
    loads = [f'global_load_dwordx4 {v(V_POLL+4*c,4)}, {v(V_TMP)}, {s(P_OX,2)} offset:{1024*c} sc1' for c in range(4)]
    poll(A, loads, range(V_POLL, V_POLL + 16), V_TMP + 1, EXIT)
    stamp(A, 4, timing)
    for k in range(8): A(f'v_mov_b32 {v(V_ACC+k)}, 0')
    for c in range(4):
        for t in range(2):
            A(f'v_smfmac_f32_16x16x64_bf16 {v(V_ACC+4*t,4)}, {v(V_POLL+4*c,4)}, {a(A_WO+8*(2*c+t),8)}, {v(V_IDX)}')
    for i in range(4): A(f'v_permlane32_swap_b32 {v(V_ACC+i)}, {v(V_ACC+4+i)}')
    for i in range(4): A(f'v_add_f32 {v(V_ACC+i)}, {v(V_ACC+i)}, {v(V_ACC+4+i)}')
    A(f's_lshl_b32 {s(S_T0)}, {s(S_W)}, 10')
    A(f'v_add_u32 {v(V_TMP)}, {s(S_T0)}, {v(V_L16)}')
    A(f'ds_write_b128 {v(V_TMP)}, {v(V_ACC,4)} offset:{LDS_WOP}')
    A('s_waitcnt lgkmcnt(0)')
    A('s_barrier')
    LD, LE, LF = A.newlabel('notw0'), A.newlabel('endD'), A.newlabel('notw1')
    A(f's_cmp_lg_u32 {s(S_W)}, 0'); A(f's_cbranch_scc1 {LD}')
    for k in range(4): A(f'ds_read_b128 {v(V_POLL+4*k,4)}, {v(V_L16)} offset:{LDS_WOP + 1024*k}')
    A('s_waitcnt lgkmcnt(0)')
    P = V_POLL
    for i in range(4):
        A(f'v_add_f32 {v(P+i)}, {v(P+i)}, {v(P+4+i)}'); A(f'v_add_f32 {v(P+8+i)}, {v(P+8+i)}, {v(P+12+i)}')
    for i in range(4): A(f'v_add_f32 {v(P+i)}, {v(P+i)}, {v(P+8+i)}')
    A(f'global_store_dwordx4 {v(V_FPART)}, {v(P,4)}, {s(P_PART,2)} sc1')
    stamp(A, 5, timing)
    loads = [f'global_load_dwordx4 {v(V_AF+4*k,4)}, {v(V_L16)}, {s(P_PART,2)} offset:{1024*k} sc1' for k in range(4)]
    poll(A, loads, range(V_AF, V_AF + 16), V_TMP + 1, EXIT)
    stamp(A, 6, timing)
    Q = V_AF
    for i in range(4):
        A(f'v_add_f32 {v(Q+i)}, {v(Q+i)}, {v(Q+4+i)}'); A(f'v_add_f32 {v(Q+8+i)}, {v(Q+8+i)}, {v(Q+12+i)}')
    for i in range(4): A(f'v_add_f32 {v(Q+i)}, {v(Q+i)}, {v(Q+8+i)}')
    pack_pairs(A, Q, Q + 1, Q + 2, Q + 3, V_TMP + 6, V_TMP + 7, V_TMP)
    add64(A, S_T0, P_MEM, STEP_MEM)
    A(f'global_store_dword {v(V_MST)}, {v(V_TMP+6)}, {s(S_T0,2)}')
    A(f'global_store_dword {v(V_MST)}, {v(V_TMP+7)}, {s(S_T0,2)} offset:16')
    stamp(A, 7, timing)
    A(f's_branch {LE}')
    A.label(LD)
    A(f's_cmp_lg_u32 {s(S_W)}, 1'); A(f's_cbranch_scc1 {LF}')
    fill_slots(A, 2)
    A(f's_branch {LE}')
    A.label(LF)
    A(f's_cmp_lg_u32 {s(S_W)}, {W_ATT}'); A(f's_cbranch_scc1 {LE}')
    A('s_mov_b32 exec_hi, 0')
    for et in range(2):
        A(f'global_store_dwordx2 {v(V_VMST)}, {v(V_VMF+2*et,2)}, {s(P_VM,2)} offset:{256*et} sc1')
    A(f's_mov_b64 exec, -1')
    LN = A.newlabel('nopf')
    A(f's_cmp_ge_u32 {s(S_STEP)}, 63'); A(f's_cbranch_scc1 {LN}')
    add64(A, P_KX, P_KX, STEP_KX); add64(A, P_VX, P_VX, STEP_VX)
    prefetch_kv(A)
    A.label(LN)
    A.label(LE)
    A('s_barrier')
    stamp(A, 9, timing)

def kernel_footer(K, nv=512, ns=100, acc=256):
    return f"""
.section .rodata,"a"
.p2align 6
.amdhsa_kernel {K}
  .amdhsa_next_free_vgpr {nv}
  .amdhsa_next_free_sgpr {ns}
  .amdhsa_accum_offset {acc}
  .amdhsa_group_segment_fixed_size 0
  .amdhsa_kernarg_size 120
  .amdhsa_user_sgpr_count 2
  .amdhsa_user_sgpr_kernarg_segment_ptr 1
  .amdhsa_system_sgpr_workgroup_id_x 1
.end_amdhsa_kernel
"""

def kernel_head(K):
    return f""".text
.globl {K}
.p2align 8
.type {K},@function
{K}:
"""

LDS_TK = 163836
def ticket(A):
    A(f's_getreg_b32 {s(S_X)}, hwreg(HW_REG_XCC_ID, 0, 4)')
    A(f'v_lshrrev_b32 v2, 6, v0'); A('s_nop 0'); A(f'v_readfirstlane_b32 {s(S_W)}, v2')
    A(f'v_mov_b32 v6, {LDS_TK}')
    A(f's_cmp_lg_u32 {s(S_W)}, 0'); A('s_cbranch_scc1 C_tk')
    A(f's_lshl_b32 {s(S_T0)}, {s(S_X)}, 2')
    A(f'v_mov_b32 v3, {s(S_T0)}'); A('v_mov_b32 v4, 1')
    A('s_mov_b64 exec, 1')
    A(f'global_atomic_add v5, v3, v4, {s(S_DBG,2)} sc0')
    A('s_waitcnt vmcnt(0)')
    A('ds_write_b32 v6, v5')
    A('s_waitcnt lgkmcnt(0)')
    A('s_mov_b64 exec, -1')
    A.label('C_tk')
    A('s_barrier')
    A('ds_read_b32 v5, v6')
    A('s_waitcnt lgkmcnt(0)')
    A(f'v_readfirstlane_b32 {s(S_I)}, v5')
    A('s_barrier')

def chain_barrier(A, count, EXIT):
    L, D, W = A.newlabel('cb'), A.newlabel('cbd'), A.newlabel('cbw')
    A('s_waitcnt vmcnt(0)')
    A('s_barrier')
    A(f'v_mov_b32 {v(V_T)}, 32'); A(f'v_mov_b32 {v(V_T+1)}, 1')
    A(f's_cmp_lg_u32 {s(S_W)}, 0'); A(f's_cbranch_scc1 {W}')
    A('s_mov_b64 exec, 1')
    A(f'global_atomic_add {v(V_T)}, {v(V_T+1)}, {s(S_DBG,2)}')
    A(f's_mov_b32 {s(S_RETRY)}, 0')
    A.label(L)
    A(f'global_load_dword {v(V_T+2)}, {v(V_T)}, {s(S_DBG,2)} sc1')
    A('s_waitcnt vmcnt(0)')
    A(f'v_readfirstlane_b32 {s(S_T0)}, {v(V_T+2)}')
    A(f's_cmp_ge_u32 {s(S_T0)}, {count}'); A(f's_cbranch_scc1 {D}')
    A('s_sleep 16')
    A(f's_add_u32 {s(S_RETRY)}, {s(S_RETRY)}, 1')
    A(f's_cmp_lt_u32 {s(S_RETRY)}, {POLL_LIMIT}')
    A(f's_cbranch_scc1 {L}')
    A('s_mov_b64 exec, -1')
    A(f's_branch {EXIT}')
    A.label(D)
    A('s_mov_b64 exec, -1')
    A.label(W)
    A('s_barrier')

def publish_mem0(A):
    T = V_TMP
    A(f'v_and_b32 {v(T)}, 1, {v(V_G)}'); A(f'v_lshlrev_b32 {v(T)}, 2, {v(T)}')
    A(f'v_and_b32 {v(T+1)}, 1, {v(V_N)}'); A(f'v_lshl_add_u32 {v(T)}, {v(T+1)}, 1, {v(T)}')
    A(f'v_lshlrev_b32 {v(T)}, 11, {v(T)}')
    A(f'v_lshrrev_b32 {v(T+1)}, 1, {v(V_G)}'); A(f'v_lshlrev_b32 {v(T+1)}, 4, {v(T+1)}')
    A(f'v_and_b32 {v(T+2)}, 14, {v(V_N)}'); A(f'v_add_u32 {v(T+1)}, {v(T+1)}, {v(T+2)}')
    A(f'v_lshl_add_u32 {v(T)}, {v(T+1)}, 1, {v(T)}')
    A(f's_lshl_b32 {s(S_T0)}, {s(S_I)}, 6')
    A(f'v_add_u32 {v(T)}, {s(S_T0)}, {v(T)}')
    A(f'global_load_dword {v(T+1)}, {v(T)}, {s(S_MEM0,2)}')
    A(f'global_load_dword {v(T+2)}, {v(T)}, {s(S_MEM0,2)} offset:2048')
    A('s_waitcnt vmcnt(0)')
    A(f'global_store_dword {v(V_MST)}, {v(T+1)}, {s(P_MEM,2)}')
    A(f'global_store_dword {v(V_MST)}, {v(T+2)}, {s(P_MEM,2)} offset:16')

def chain_main(A, EXIT, timing, nbar):
    lane_setup(A)
    load_weights(A)
    set_ptrs(A)
    L0 = A.newlabel('nf')
    A(f's_cmp_lg_u32 {s(S_W)}, 1'); A(f's_cbranch_scc1 {L0}')
    fill_slots(A, 0); fill_slots(A, 1)
    A('s_mov_b32 exec_hi, 0')
    A(f'global_store_dwordx4 {v(V_FMEM)}, {v(V_ONES,4)}, {s(P_MEM,2)}')
    A(f's_mov_b64 exec, -1')
    A.label(L0)
    chain_barrier(A, nbar, EXIT)
    L1, L2 = A.newlabel('nm0'), A.newlabel('npf')
    A(f's_cmp_lg_u32 {s(S_W)}, 0'); A(f's_cbranch_scc1 {L1}')
    publish_mem0(A)
    A.label(L1)
    A(f's_cmp_lg_u32 {s(S_W)}, 3'); A(f's_cbranch_scc1 {L2}')
    prefetch_kv(A)
    A.label(L2)
    A(f's_mov_b32 {s(S_STEP)}, 0')
    if timing:
        for k in range(20): A(f's_mov_b32 {s(S_ACC+k)}, 0')
    A(f's_memrealtime {s(S_TM0,2)}')
    A('s_waitcnt lgkmcnt(0)')
    A.label('C_step')
    step_body(A, EXIT, timing, None)
    advance_ptrs(A)
    A(f's_add_u32 {s(S_STEP)}, {s(S_STEP)}, 1')
    A(f's_cmp_lt_u32 {s(S_STEP)}, 64')
    A('s_cbranch_scc1 C_step')
    A(f's_memrealtime {s(S_TM1,2)}')
    A('s_waitcnt lgkmcnt(0)')

def gen_standalone(timing=False):
    A = Asm()
    K = NAME + '_kernel'
    EXIT = 'L_exit'
    A('s_cmp_ge_u32 s2, 256'); A('s_cbranch_scc1 L_end')
    for r, k in ((S_WQ, 'Wq'), (S_WK, 'Wk'), (S_WV, 'Wv'), (S_WO, 'Wo'), (S_MEM0, 'mem0'), (S_DBG, 'dbg'), (S_WS, 'ws')):
        A(f's_load_dwordx2 {s(r,2)}, s[0:1], {KA[k]}')
    A('s_waitcnt lgkmcnt(0)')
    ticket(A)
    A(f's_cmp_ge_u32 {s(S_X)}, 4'); A('s_cbranch_scc1 L_end')
    A(f's_cmp_ge_u32 {s(S_I)}, 32'); A('s_cbranch_scc1 L_end')
    chain_main(A, EXIT, timing, 128)
    if timing:
        A(f's_lshl_b32 {s(S_T0)}, {s(S_X)}, 5'); A(f's_add_u32 {s(S_T0)}, {s(S_T0)}, {s(S_I)}')
        A(f's_lshl_b32 {s(S_T0)}, {s(S_T0)}, 2'); A(f's_add_u32 {s(S_T0)}, {s(S_T0)}, {s(S_W)}')
        A(f's_lshl_b32 {s(S_T0)}, {s(S_T0)}, 6'); A(f's_add_u32 {s(S_T0)}, {s(S_T0)}, {0xA000000}')
        A(f'v_mov_b32 v2, {s(S_T0)}')
        A('s_mov_b64 exec, 1')
        for k in range(10):
            A(f'v_mov_b32 v3, {s(S_ACC+2*k)}')
            A(f'global_store_dword v2, v3, {s(S_WS,2)} offset:{4*k}')
    A(f's_or_b32 {s(S_T0)}, {s(S_X)}, {s(S_I)}'); A(f's_cmp_lg_u32 {s(S_T0)}, 0'); A('s_cbranch_scc1 L_end')
    A(f's_sub_u32 {s(S_T0)}, {s(S_TM1)}, {s(S_TM0)}')
    A(f's_lshl_b32 {s(S_T1)}, {s(S_W)}, 5')
    A(f's_add_u32 {s(S_T1)}, {s(S_T1)}, 64')
    A(f'v_mov_b32 v2, {s(S_T1)}')
    A('s_mov_b64 exec, 1')
    A(f'v_mov_b32 v3, {s(S_T0)}')
    A(f'global_store_dword v2, v3, {s(S_DBG,2)}')
    A('s_sub_u32 s90, s92, s90')
    A('v_mov_b32 v3, s90')
    A(f'global_store_dword v2, v3, {s(S_DBG,2)} offset:4')
    A('s_branch L_end')
    A.label(EXIT)
    A('v_mov_b32 v2, 40'); A('v_mov_b32 v3, 1')
    A('s_mov_b64 exec, 1')
    A(f'global_atomic_add v2, v3, {s(S_DBG,2)}')
    A.label('L_end')
    A('s_endpgm')
    n = A.fix_hazards()
    txt = HEADER + '; @launch grid=(256,1,1) block=(256,1,1) lds=163840\n.amdgcn_target "amdgcn-amd-amdhsa--gfx950"\n' + kernel_head(K) + A.text() + kernel_footer(K)
    return txt, A.count(), n

if __name__ == '__main__':
    import sys
    timing = len(sys.argv) > 2 and sys.argv[2] == 't'
    txt, n, nz = gen_standalone(timing)
    open(sys.argv[1], 'w').write(txt)
    print('instructions', n, 'nops', nz)
```

```python
from asmlib import *
from layout import *
import chain as c1
from chain import (poll, add64, add64s, S_WQ, S_WK, S_WV, S_WO, S_MEM0, S_DBG, S_WS, S_X, S_I, S_W, S_H, S_J, S_STEP,
                   P_MEM, P_QK, P_OX, P_PART, P_KX, P_VX, P_KM, P_VM, S_T0, S_T1, S_T2, S_T3, S_EVEN, S_SC, S_RETRY, S_LO16, S_HI32,
                   S_TM0, S_TM1, S_ACC, POLL_LIMIT, STEP_MEM, STEP_QK, STEP_OX, STEP_PART, STEP_KX, STEP_VX, STEP_KM,
                   kernel_head, kernel_footer, ticket, chain_barrier, set_ptrs, stamp)
import struct, math

V_L, V_N, V_G, V_L16, V_QKST, V_QLD, V_KX0, V_KX1, V_VX0, V_VX1, V_OST, V_MST, V_RQK, V_IDX, V_RWO = 1, 2, 3, 4, 5, 6, 7, 8, 9, 10, 11, 12, 13, 14, 15
V_ONES = 16
V_FMEM, V_FQK, V_FOX, V_FPART, V_VMST, V_VPLD, V_T = 20, 21, 22, 23, 24, 25, 26
V_WQ, V_PST, V_KKEEP = 32, 33, 34
V_RQ4 = 112
V_WL2, V_WL1 = 36, 37
V_POLL = 40
V_ACC = 56
V_R = 80
V_KXF, V_VXF, V_QF, V_KMF, V_S, V_P, V_VMF, V_O, V_X = 128, 160, 168, 184, 200, 212, 218, 222, 230
c1.V_T = V_T

B_MEM, B_QK, B_OX, B_PART = 56, 58, 96, 98
RING = 4
LDS_QK, LDS_VP, LDS_WOP = 0, 8192, 12288
A_QKV, A_WO = 0, 192

def load_weights(A):
    vG, vR, vT = V_T, V_T + 1, V_T + 2
    A(f'v_lshrrev_b32 {v(vT)}, 2, {v(V_L)}')
    A(f'v_and_b32 {v(vT+1)}, 3, {v(V_L)}')
    A(f'v_lshlrev_b32 {v(vT+1)}, 4, {v(vT+1)}')
    A(f'v_lshl_add_u32 {v(vG)}, {v(vT)}, 13, {v(vT+1)}')
    A(f'v_lshl_add_u32 {v(vT+2)}, {v(vT)}, 11, {v(vT+1)}')
    vGo = vT + 2
    A(f'v_lshrrev_b32 {v(vT)}, 2, {v(V_N)}')
    A(f'v_lshl_add_u32 {v(vT)}, {v(V_G)}, 3, {v(vT)}')
    A(f'v_lshlrev_b32 {v(vT)}, 6, {v(vT)}')
    A(f'v_and_b32 {v(vT+1)}, 3, {v(V_N)}')
    A(f'v_lshl_add_u32 {v(vR)}, {v(vT+1)}, 3, {v(vT)}')
    A(f's_lshl_b32 {s(S_T0)}, {s(S_W)}, 15')
    A(f'v_add_u32 {v(vR)}, {s(S_T0)}, {v(vR)}')
    PQ, PK, PV_, PO = P_MEM, P_QK, P_KM, P_OX
    A(f's_lshl_b32 {s(S_T0)}, {s(S_H)}, 8'); A(f's_lshl_b32 {s(S_T1)}, {s(S_J)}, 6'); A(f's_add_u32 {s(S_T0)}, {s(S_T0)}, {s(S_T1)}')
    A(f's_lshl_b32 {s(S_T1)}, {s(S_W)}, 21'); A(f's_add_u32 {s(S_T0)}, {s(S_T0)}, {s(S_T1)}')
    add64s(A, PQ, S_WQ, S_T0); add64s(A, PK, S_WK, S_T0); add64s(A, PV_, S_WV, S_T0)
    A(f's_lshl_b32 {s(S_T0)}, {s(S_X)}, 21'); A(f's_lshl_b32 {s(S_T1)}, {s(S_W)}, 19'); A(f's_add_u32 {s(S_T0)}, {s(S_T0)}, {s(S_T1)}')
    A(f's_lshl_b32 {s(S_T1)}, {s(S_I)}, 6'); A(f's_add_u32 {s(S_T0)}, {s(S_T0)}, {s(S_T1)}')
    add64s(A, PO, S_WO, S_T0)
    A(f's_lshl_b32 {s(S_T3)}, {s(S_W)}, 15')
    def dma_pair(base, voff, rowstride, k0, slot):
        for q in range(4):
            add64(A, S_T0, base, (k0 + 16 * q) * rowstride)
            A(f's_add_u32 m0, {s(S_T3)}, {slot * 4096 + q * 1024}')
            A('s_nop 0')
            A(f'global_load_lds_dwordx4 {v(voff)}, {s(S_T0,2)}')
    def read_pair(slot, aregs):
        for t in range(2):
            for q, off in enumerate((0, 256, 2048, 2304)):
                A(f'ds_read_b64_tr_b16 {a(aregs[t] + 2*q, 2)}, {v(vR)} offset:{slot * 4096 + off + 32 * t}')
    pairs = []
    for cch in range(4):
        for m in range(3):
            pairs.append(((PQ, PK, PV_)[m], vG, 8192, 64 * cch, [A_QKV + 8 * (6 * cch + 2 * m + t) for t in range(2)]))
    for cch in range(4):
        pairs.append((PO, vGo, 2048, 64 * cch, [A_WO + 8 * (2 * cch + t) for t in range(2)]))
    for rnd in range(2):
        bl = pairs[8 * rnd:8 * rnd + 8]
        for k, b in enumerate(bl): dma_pair(b[0], b[1], b[2], b[3], k)
        if WLOG: A(f's_memrealtime s[{72+4*rnd}:{73+4*rnd}]')
        A('s_waitcnt vmcnt(0)')
        if WLOG: A(f's_memrealtime s[{74+4*rnd}:{75+4*rnd}]')
        for k, b in enumerate(bl): read_pair(k, b[4])
        A('s_waitcnt lgkmcnt(0)')

def lane_setup(A):
    T = V_T
    A(f'v_and_b32 {v(V_L)}, 63, v0')
    A(f'v_lshrrev_b32 {v(T)}, 6, v0'); A('s_nop 0')
    A(f'v_readfirstlane_b32 {s(S_W)}, {v(T)}')
    A(f'v_and_b32 {v(V_N)}, 15, {v(V_L)}'); A(f'v_lshrrev_b32 {v(V_G)}, 4, {v(V_L)}'); A(f'v_lshlrev_b32 {v(V_L16)}, 4, {v(V_L)}')
    A(f's_lshr_b32 {s(S_T0)}, {s(S_I)}, 2'); A(f's_lshl_b32 {s(S_H)}, {s(S_X)}, 3'); A(f's_add_u32 {s(S_H)}, {s(S_H)}, {s(S_T0)}')
    A(f's_and_b32 {s(S_J)}, {s(S_I)}, 3')
    A(f's_mov_b32 {s(S_LO16)}, 0x00ff00ff'); A(f's_mov_b32 {s(S_LO16+1)}, 0x00ff00ff')
    A(f's_mov_b32 {s(S_HI32)}, 0'); A(f's_mov_b32 {s(S_HI32+1)}, -1')
    cc = 128 ** -0.5 * math.log2(math.e)
    A(f's_mov_b32 {s(S_SC)}, 0x{struct.unpack("<I", struct.pack("<f", cc))[0]:08x}')
    for k in range(4): A(f'v_mov_b32 {v(V_ONES+k)}, -1')
    A(f'v_mov_b32 {v(T)}, 0xeeee'); A(f'v_mov_b32 {v(T+1)}, 0x4444')
    A(f'v_cndmask_b32 {v(V_IDX)}, {v(T)}, {v(T+1)}, {s(S_LO16,2)}')
    A(f's_lshl_b32 {s(S_T0)}, {s(S_W)}, 12'); A(f'v_add_u32 {v(V_WQ)}, {s(S_T0)}, {v(V_L16)}')
    A(f's_lshl_b32 {s(S_T0)}, {s(S_W)}, 11'); A(f'v_add_u32 {v(V_WL2)}, {s(S_T0)}, {v(V_L16)}')
    A(f's_lshl_b32 {s(S_T0)}, {s(S_W)}, 10'); A(f'v_add_u32 {v(V_WL1)}, {s(S_T0)}, {v(V_L16)}')
    A(f'v_lshrrev_b32 {v(T)}, 3, {v(V_L)}'); A(f'v_and_b32 {v(T+1)}, 7, {v(V_L)}')
    A(f'v_lshrrev_b32 {v(T+2)}, 2, {v(T)}'); A(f'v_lshlrev_b32 {v(T+2)}, 8, {v(T+2)}')
    A(f'v_lshl_add_u32 {v(T+2)}, {v(T+1)}, 5, {v(T+2)}')
    A(f'v_and_b32 {v(T+3)}, 3, {v(T)}'); A(f'v_lshl_add_u32 {v(T+2)}, {v(T+3)}, 2, {v(T+2)}')
    A(f's_lshr_b32 {s(S_T0)}, {s(S_W)}, 1'); A(f's_lshl_b32 {s(S_T0)}, {s(S_T0)}, 10')
    A(f's_and_b32 {s(S_T1)}, {s(S_W)}, 1'); A(f's_lshl_b32 {s(S_T1)}, {s(S_T1)}, 9'); A(f's_add_u32 {s(S_T0)}, {s(S_T0)}, {s(S_T1)}')
    A(f'v_add_u32 {v(V_RQ4)}, {s(S_T0)}, {v(T+2)}')
    for k in range(1, 4): A(f'v_add_u32 {v(V_RQ4+k)}, 2048, {v(V_RQ4+k-1)}')
    A(f'v_lshrrev_b32 {v(T+2)}, 2, {v(T+1)}'); A(f'v_lshlrev_b32 {v(T+2)}, 7, {v(T+2)}')
    A(f'v_lshl_add_u32 {v(T+2)}, {v(T)}, 4, {v(T+2)}')
    A(f'v_and_b32 {v(T+3)}, 3, {v(T+1)}'); A(f'v_lshl_add_u32 {v(T+2)}, {v(T+3)}, 2, {v(T+2)}')
    A(f's_lshr_b32 {s(S_T0)}, {s(S_W)}, 1'); A(f's_lshl_b32 {s(S_T0)}, {s(S_T0)}, 11')
    A(f's_lshl_b32 {s(S_T1)}, {s(S_J)}, 9'); A(f's_add_u32 {s(S_T0)}, {s(S_T0)}, {s(S_T1)}')
    A(f's_and_b32 {s(S_T1)}, {s(S_W)}, 1'); A(f's_lshl_b32 {s(S_T1)}, {s(S_T1)}, 8'); A(f's_add_u32 {s(S_T0)}, {s(S_T0)}, {s(S_T1)}')
    A(f'v_add_u32 {v(V_QKST)}, {s(S_T0)}, {v(T+2)}')
    A(f'v_and_b32 {v(T)}, 7, {v(V_L)}'); A(f'v_lshlrev_b32 {v(T)}, 4, {v(T)}'); A(f'v_lshl_add_u32 {v(V_QLD)}, {v(V_G)}, 7, {v(T)}')
    A(f's_lshl_b32 {s(S_T0)}, {s(S_H)}, 13')
    A(f'v_add_u32 {v(V_KX0)}, {s(S_T0)}, {v(V_L16)}'); A(f'v_add_u32 {v(V_KX1)}, 4096, {v(V_KX0)}')
    A(f's_lshl_b32 {s(S_T1)}, {s(S_J)}, 11'); A(f's_add_u32 {s(S_T0)}, {s(S_T0)}, {s(S_T1)}')
    A(f'v_add_u32 {v(V_VX0)}, {s(S_T0)}, {v(V_L16)}')
    A(f'v_lshrrev_b32 {v(T)}, 3, {v(V_N)}'); A(f'v_lshlrev_b32 {v(T)}, 4, {v(T)}')
    A(f'v_and_b32 {v(T+1)}, 7, {v(V_N)}'); A(f'v_add_u32 {v(T)}, {v(T)}, {v(T+1)}')
    A(f'v_lshlrev_b32 {v(T)}, 4, {v(T)}'); A(f'v_lshl_add_u32 {v(T)}, {v(V_G)}, 2, {v(T)}')
    A(f's_lshl_b32 {s(S_T0)}, {s(S_I)}, 9')
    A(f'v_add_u32 {v(V_OST)}, {s(S_T0)}, {v(T)}')
    A(f'v_lshrrev_b32 {v(T)}, 5, {v(V_L)}'); A(f'v_lshlrev_b32 {v(T)}, 4, {v(T)}')
    A(f'v_bfe_u32 {v(T+1)}, {v(V_L)}, 3, 1'); A(f'v_lshl_add_u32 {v(T)}, {v(T+1)}, 2, {v(T)}')
    A(f'v_bfe_u32 {v(T+1)}, {v(V_L)}, 1, 2'); A(f'v_add_u32 {v(T)}, {v(T)}, {v(T+1)}')
    A(f'v_and_b32 {v(T+1)}, 1, {v(V_L)}'); A(f'v_lshl_add_u32 {v(T)}, {v(T+1)}, 3, {v(T)}')
    A(f'v_lshlrev_b32 {v(T)}, 4, {v(T)}')
    A(f'v_bfe_u32 {v(T+1)}, {v(V_L)}, 4, 1'); A(f'v_lshl_add_u32 {v(T)}, {v(T+1)}, 3, {v(T)}')
    A(f'v_add_u32 {v(V_MST)}, {s(S_T0)}, {v(T)}')
    A(f'v_and_b32 {v(T)}, 1, {v(V_L)}')
    A(f'v_bfe_u32 {v(T+1)}, {v(V_L)}, 1, 1'); A(f'v_lshl_add_u32 {v(T)}, {v(T+1)}, 2, {v(T)}')
    A(f'v_bfe_u32 {v(T+1)}, {v(V_L)}, 2, 1'); A(f'v_lshl_add_u32 {v(T)}, {v(T+1)}, 1, {v(T)}')
    A(f'v_lshrrev_b32 {v(T+1)}, 5, {v(V_L)}'); A(f'v_lshl_add_u32 {v(T)}, {v(T+1)}, 4, {v(T)}')
    A(f'v_lshlrev_b32 {v(T)}, 4, {v(T)}')
    A(f'v_bfe_u32 {v(T+1)}, {v(V_L)}, 3, 2'); A(f'v_lshl_add_u32 {v(T)}, {v(T+1)}, 2, {v(T)}')
    A(f's_lshr_b32 {s(S_T0)}, {s(S_W)}, 1'); A(f's_lshl_b32 {s(S_T0)}, {s(S_T0)}, 9')
    A(f's_and_b32 {s(S_T1)}, {s(S_W)}, 1'); A(f's_lshl_b32 {s(S_T1)}, {s(S_T1)}, 7'); A(f's_add_u32 {s(S_T0)}, {s(S_T0)}, {s(S_T1)}')
    A(f'v_add_u32 {v(V_RWO)}, {s(S_T0)}, {v(T)}')
    A(f's_lshl_b32 {s(S_T0)}, {s(S_X)}, 10'); A(f's_lshl_b32 {s(S_T1)}, {s(S_W)}, 8'); A(f's_add_u32 {s(S_T0)}, {s(S_T0)}, {s(S_T1)}')
    A(f'v_lshlrev_b32 {v(T)}, 2, {v(V_L)}'); A(f'v_add_u32 {v(V_PST)}, {s(S_T0)}, {v(T)}')
    A(f's_lshl_b32 {s(S_T0)}, {s(S_I)}, 9')
    A(f'v_add_u32 {v(V_FMEM)}, {s(S_T0)}, {v(V_L16)}'); A(f'v_mov_b32 {v(V_FOX)}, {v(V_FMEM)}')
    A(f'v_and_b32 {v(T)}, 31, {v(V_L)}'); A(f'v_lshlrev_b32 {v(T)}, 4, {v(T)}')
    A(f'v_lshrrev_b32 {v(T+1)}, 5, {v(V_L)}'); A(f'v_lshl_add_u32 {v(T)}, {v(T+1)}, 11, {v(T)}')
    A(f's_lshl_b32 {s(S_T1)}, {s(S_J)}, 9'); A(f'v_add_u32 {v(V_FQK)}, {s(S_T1)}, {v(T)}')
    A(f's_lshl_b32 {s(S_T1)}, {s(S_X)}, 10'); A(f'v_add_u32 {v(V_FPART)}, {s(S_T1)}, {v(V_L16)}')
    A(f'v_and_b32 {v(T)}, 31, {v(V_L)}'); A(f'v_lshlrev_b32 {v(T)}, 3, {v(T)}')
    A(f's_lshl_b32 {s(S_T1)}, {s(S_J)}, 9'); A(f'v_add_u32 {v(V_VMST)}, {s(S_T1)}, {v(T)}')
    A(f'v_and_b32 {v(T)}, 31, {v(V_L)}'); A(f'v_lshlrev_b32 {v(V_VPLD)}, 4, {v(T)}')

def slot_ptr(A, dst, base, ahead, size):
    A(f's_add_u32 {s(S_T2)}, {s(S_STEP)}, {ahead}'); A(f's_and_b32 {s(S_T2)}, {s(S_T2)}, {RING-1}')
    A(f's_mul_i32 {s(S_T2)}, {s(S_T2)}, {size}')
    add64s(A, dst, base, S_T2)

def fill_slots(A, ahead, touch=False, mode='store'):
    T = S_T0
    def st(vo, flags=''):
        if mode == 'store': A(f'global_store_dwordx4 {v(vo)}, {v(V_ONES,4)}, {s(T,2)}{flags}')
        else: A(f'global_load_dwordx4 {v(V_POLL,4)}, {v(vo)}, {s(T,2)} sc1')
    slot_ptr(A, T, B_QK, ahead, STEP_QK); st(V_FQK)
    if mode == 'store':
        slot_ptr(A, T, B_PART, ahead, STEP_PART); st(V_FPART, ' sc1')
    A('s_mov_b32 exec_hi, 0')
    slot_ptr(A, T, B_MEM, ahead + 1, STEP_MEM); st(V_FMEM)
    slot_ptr(A, T, B_OX, ahead, STEP_OX); st(V_FOX)
    A('s_mov_b64 exec, -1')

def cur_ptrs(A):
    A(f's_and_b32 {s(S_T3)}, {s(S_STEP)}, {RING-1}')
    for p, b, sz in ((P_MEM, B_MEM, STEP_MEM), (P_QK, B_QK, STEP_QK), (P_OX, B_OX, STEP_OX), (P_PART, B_PART, STEP_PART)):
        A(f's_mul_i32 {s(S_T2)}, {s(S_T3)}, {sz}'); add64s(A, p, b, S_T2)

def advance_ptrs(A):
    for p in (P_KM, P_VM): add64(A, p, p, STEP_KM)

def prefetch_kv(A):
    for t, vo in ((0, V_KX0), (1, V_KX1)):
        for cc in range(4):
            A(f'global_load_dwordx4 {v(V_KXF + 16*t + 4*cc, 4)}, {v(vo)}, {s(P_KX,2)} offset:{1024*cc} sc1')
    for et in range(2):
        A(f'global_load_dwordx4 {v(V_VXF + 4*et, 4)}, {v(V_VX0)}, {s(P_VX,2)} offset:{1024*et} sc1')

HOOK_W2 = None
HOOK_PREBAR = None
WLOG = False
RS = dict(rs=0, rd=0, rq=0, sd=0, sq=0, gap=0)
def scalar_prefetch(A, which):
    L = A.newlabel('nsp')
    A(f's_cmp_ge_u32 {s(S_STEP)}, 62'); A(f's_cbranch_scc1 {L}')
    A(f's_add_u32 {s(S_T2)}, {s(S_STEP)}, 2'); A(f's_lshl_b32 {s(S_T2)}, {s(S_T2)}, 18')
    A(f's_lshl_b32 {s(S_T3)}, {s(S_H)}, 13'); A(f's_add_u32 {s(S_T2)}, {s(S_T2)}, {s(S_T3)}')
    A(f's_lshl_b32 {s(S_T3)}, {s(S_J)}, 11'); A(f's_add_u32 {s(S_T2)}, {s(S_T2)}, {s(S_T3)}')
    A(f's_add_u32 {s(S_T2)}, {s(S_T2)}, {KB if which == 0 else VT}')
    add64s(A, S_T0, S_WS, S_T2)
    for r in range(32): A(f's_load_dword s55, {s(S_T0,2)}, {r*64}')
    A.label(L)

def chunk_pipeline(A, ptr, mf, EXIT, extra_first=(), nochk=False):
    ld = lambda cc: f'global_load_dwordx4 {v(V_POLL+4*cc,4)}, {v(V_WQ)}, {s(ptr,2)} offset:{1024*cc} sc1'
    CK = V_T
    def chk_valu(cc):
        r = V_POLL + 4 * cc
        return [f'v_max3_u32 {v(CK)}, {v(r)}, {v(r+1)}, {v(r+2)}', f'v_max_u32 {v(CK)}, {v(CK)}, {v(r+3)}', f'v_cmp_eq_u32 vcc, -1, {v(CK)}']
    R = [A.newlabel('rt') for _ in range(4)]
    B = [A.newlabel('bd') for _ in range(4)]
    DONE = A.newlabel('cdone')
    A(f's_mov_b32 {s(S_RETRY)}, 0')
    ex = list(extra_first)
    gap = RS['gap']
    for cc in range(4):
        A(ld(cc))
        if cc < 3:
            n = 0
            while ex and n < gap: A(ex.pop(0)); n += 1
            while n < gap: A('v_nop'); n += 1
    for x in ex: A(x)
    A('s_waitcnt vmcnt(3)')
    for x in chk_valu(0): A(x)
    if not nochk: A(f's_cbranch_vccnz {R[0]}')
    for cc in range(4):
        A.label(B[cc])
        m = mf(cc)
        if cc < 3:
            A(m[0])
            A(f's_waitcnt vmcnt({2-cc})')
            ck = chk_valu(cc + 1)
            rest = m[1:]
            for k, x in enumerate(ck):
                A(x)
                if k < len(rest): A(rest[k])
            for x in rest[len(ck):]: A(x)
            if not nochk: A(f's_cbranch_vccnz {R[cc+1]}')
        else:
            for x in m: A(x)
    A(f's_branch {DONE}')
    for cc in range(4):
        A.label(R[cc])
        A(f's_add_u32 {s(S_RETRY)}, {s(S_RETRY)}, 1')
        A(f's_cmp_ge_u32 {s(S_RETRY)}, {POLL_LIMIT}'); A(f's_cbranch_scc1 {EXIT}')
        for k in range(cc, 4): A(ld(k))
        A(f's_waitcnt vmcnt({3-cc})')
        for x in chk_valu(cc): A(x)
        A(f's_cbranch_vccnz {R[cc]}')
        A(f's_branch {B[cc]}')
    A.label(DONE)

def poll2(A, loads, regs, tmp, exit_label, first_sleep, retry_sleep):
    L = A.newlabel('poll'); D = A.newlabel('polld')
    A(f's_mov_b32 {s(S_RETRY)}, 0')
    if first_sleep: A(f's_sleep {first_sleep}')
    A.label(L)
    for ld in loads: A(ld)
    A('s_waitcnt vmcnt(0)')
    r = list(regs)
    A(f'v_max3_u32 {v(tmp)}, {v(r[0])}, {v(r[1])}, {v(r[2])}')
    k = 3
    while k + 1 < len(r):
        A(f'v_max3_u32 {v(tmp)}, {v(tmp)}, {v(r[k])}, {v(r[k+1])}'); k += 2
    if k < len(r): A(f'v_max_u32 {v(tmp)}, {v(tmp)}, {v(r[k])}')
    A(f'v_cmp_eq_u32 vcc, -1, {v(tmp)}')
    A(f's_cbranch_vccz {D}')
    if retry_sleep: A(f's_sleep {retry_sleep}')
    A(f's_add_u32 {s(S_RETRY)}, {s(S_RETRY)}, 1')
    A(f's_cmp_lt_u32 {s(S_RETRY)}, {POLL_LIMIT}')
    A(f's_cbranch_scc1 {L}')
    A(f's_branch {exit_label}')
    A.label(D)

def step_body(A, EXIT, timing, sleep_a=0, sleep_c=0, rs=0, rd=0, rq=0, sd=0, sq=0, nopf=0, nofill=0, nokm=0, spf=0, gap=8, na=0, nc=0, nq=0, nd=0):
    RS.update(rs=rs, rd=rd, rq=rq, sd=sd, sq=sq, gap=gap)
    W_ATT = 3
    SM = 'v_smfmac_f32_16x16x64_bf16'
    zero = [f'v_mov_b32 {v(V_ACC+k)}, 0' for k in range(24)]
    if sleep_a: A(f's_sleep {sleep_a}')
    chunk_pipeline(A, P_MEM, lambda cc: [f'{SM} {v(V_ACC+4*t,4)}, {v(V_POLL+4*cc,4)}, {a(A_QKV+8*(6*cc+t),8)}, {v(V_IDX)}' for t in range(4)], EXIT, zero, na)
    stamp(A, 0, timing)
    vs = [f'{SM} {v(V_ACC+16+4*t,4)}, {v(V_POLL+4*cc,4)}, {a(A_QKV+8*(6*cc+4+t),8)}, {v(V_IDX)}' for cc in range(4) for t in range(2)]
    Q0 = V_ACC
    A(vs[0]); A(vs[1])
    for i in range(4): A(f'v_permlane32_swap_b32 {v(Q0+i)}, {v(Q0+4+i)}')
    A(vs[2])
    for i in (0, 2): A(f'v_pk_add_f32 {v(Q0+i,2)}, {v(Q0+i,2)}, {v(Q0+4+i,2)}')
    A(f'v_permlane32_swap_b32 {v(Q0+8)}, {v(Q0+12)}'); A(f'v_permlane32_swap_b32 {v(Q0+9)}, {v(Q0+13)}')
    A(f'ds_write_b128 {v(V_WL2)}, {v(Q0,4)} offset:{LDS_QK}')
    A(vs[3])
    A(f'v_permlane32_swap_b32 {v(Q0+10)}, {v(Q0+14)}'); A(f'v_permlane32_swap_b32 {v(Q0+11)}, {v(Q0+15)}')
    for i in (0, 2): A(f'v_pk_add_f32 {v(Q0+8+i,2)}, {v(Q0+8+i,2)}, {v(Q0+12+i,2)}')
    A(f'ds_write_b128 {v(V_WL2)}, {v(Q0+8,4)} offset:{LDS_QK + 1024}')
    A(vs[4])
    A('s_waitcnt lgkmcnt(0)')
    A('s_barrier')
    stamp(A, 8, timing)
    R = V_R
    for ws in range(4): A(f'ds_read2_b32 {v(R+2*ws,2)}, {v(V_RQ4+ws)} offset0:{LDS_QK//4} offset1:{LDS_QK//4+4}')
    A(vs[5]); A(vs[6]); A(vs[7])
    A('s_waitcnt lgkmcnt(0)')
    A(f'v_pk_add_f32 {v(R,2)}, {v(R,2)}, {v(R+2,2)}'); A(f'v_pk_add_f32 {v(R+4,2)}, {v(R+4,2)}, {v(R+6,2)}')
    A(f'v_pk_add_f32 {v(R,2)}, {v(R,2)}, {v(R+4,2)}')
    A(f'v_cvt_pk_bf16_f32 {v(V_KKEEP)}, {v(R)}, {v(R+1)}')
    A(f'global_store_dword {v(V_QKST)}, {v(V_KKEEP)}, {s(P_QK,2)}')
    stamp(A, 1, timing)
    for i in range(4): A(f'v_permlane32_swap_b32 {v(V_ACC+16+i)}, {v(V_ACC+20+i)}')
    for i in (0, 2): A(f'v_pk_add_f32 {v(V_ACC+16+i,2)}, {v(V_ACC+16+i,2)}, {v(V_ACC+20+i,2)}')
    A(f'ds_write_b128 {v(V_WL1)}, {v(V_ACC+16,4)} offset:{LDS_VP}')
    A('s_waitcnt lgkmcnt(0)')
    A('s_barrier')
    LB = A.newlabel('noatt')
    A(f's_cmp_lg_u32 {s(S_W)}, {W_ATT}'); A(f's_cbranch_scc1 {LB}')
    X = V_X
    loads = [f'global_load_dwordx4 {v(V_QF+4*cc,4)}, {v(V_QLD)}, {s(P_QK,2)} offset:{512*cc} sc1' for cc in range(4)]
    loads += [f'global_load_dwordx4 {v(V_KMF+4*cc,4)}, {v(V_QLD)}, {s(P_QK,2)} offset:{2048+512*cc} sc1' for cc in range(4)]
    for et in range(2):
        for ws in range(4):
            A(f'ds_read_b128 {v(R + 16*et + 4*ws, 4)}, {v(V_VPLD)} offset:{LDS_VP + ws*1024 + et*512}')
    A('s_waitcnt lgkmcnt(0)')
    if sq: A(f's_sleep {sq}')
    for ld in loads: A(ld)
    for et in range(2):
        b = R + 16 * et
        for i in (0, 2):
            A(f'v_pk_add_f32 {v(b+i,2)}, {v(b+i,2)}, {v(b+4+i,2)}'); A(f'v_pk_add_f32 {v(b+8+i,2)}, {v(b+8+i,2)}, {v(b+12+i,2)}')
        for i in (0, 2): A(f'v_pk_add_f32 {v(b+i,2)}, {v(b+i,2)}, {v(b+8+i,2)}')
        A(f'v_cvt_pk_bf16_f32 {v(V_VMF+2*et)}, {v(b)}, {v(b+1)}')
        A(f'v_cvt_pk_bf16_f32 {v(V_VMF+2*et+1)}, {v(b+2)}, {v(b+3)}')
    LQ, LQD = A.newlabel('qp'), A.newlabel('qpd')
    A(f's_mov_b32 {s(S_RETRY)}, 0')
    A.label(LQ)
    rr = list(range(V_QF, V_QF + 32))
    CH = X + 2
    chk = [f'v_max3_u32 {v(CH)}, {v(rr[0])}, {v(rr[1])}, {v(rr[2])}', f'v_max3_u32 {v(CH+1)}, {v(rr[3])}, {v(rr[4])}, {v(rr[5])}']
    k = 6
    while k + 3 < 16:
        chk += [f'v_max3_u32 {v(CH)}, {v(CH)}, {v(rr[k])}, {v(rr[k+1])}', f'v_max3_u32 {v(CH+1)}, {v(CH+1)}, {v(rr[k+2])}, {v(rr[k+3])}']; k += 4
    chk += [f'v_max3_u32 {v(CH)}, {v(CH)}, {v(rr[14])}, {v(rr[15])}']
    chk2 = []
    k = 16
    while k + 3 < 32:
        chk2 += [f'v_max3_u32 {v(CH)}, {v(CH)}, {v(rr[k])}, {v(rr[k+1])}', f'v_max3_u32 {v(CH+1)}, {v(CH+1)}, {v(rr[k+2])}, {v(rr[k+3])}']; k += 4
    chk2 += [f'v_max_u32 {v(CH)}, {v(CH)}, {v(CH+1)}', f'v_cmp_eq_u32 vcc, -1, {v(CH)}']
    A('s_waitcnt vmcnt(4)')
    mfl = []
    for t, base in ((0, V_KXF), (1, V_KXF + 16), (2, V_KMF)):
        for cc in range(4):
            C = '0' if cc == 0 else v(V_S + 4*t, 4)
            mfl.append(f'v_mfma_f32_16x16x32_bf16 {v(V_S+4*t,4)}, {v(base+4*cc,4)}, {v(V_QF+4*cc,4)}, {C}')
    fill = list(chk)
    for k in range(8):
        A(mfl[k])
        if fill: A(fill.pop(0))
    A('s_waitcnt vmcnt(0)')
    fill = fill + chk2
    extra = {9: [f'v_max3_f32 {v(X)}, {v(V_S)}, {v(V_S+1)}, {v(V_S+2)}'], 10: [f'v_mov_b32 {v(X+1)}, 0xff800000', f'v_max3_f32 {v(X)}, {v(X)}, {v(V_S+3)}, {v(V_S+4)}']}
    for k in range(8, 12):
        A(mfl[k])
        for _ in range(3):
            if fill: A(fill.pop(0))
        for x in extra.get(k, []): A(x)
    for x in fill: A(x)
    A(f's_cbranch_vccz {LQD}') if not nq else A(f's_branch {LQD}')
    A(f's_add_u32 {s(S_RETRY)}, {s(S_RETRY)}, 1')
    A(f's_cmp_ge_u32 {s(S_RETRY)}, {POLL_LIMIT}'); A(f's_cbranch_scc1 {EXIT}')
    for ld in loads: A(ld)
    A(f's_branch {LQ}')
    A.label(LQD)
    stamp(A, 2, timing)
    A(f'v_max3_f32 {v(X)}, {v(X)}, {v(V_S+5)}, {v(V_S+6)}')
    S = V_S
    A(f'v_max_f32 {v(X)}, {v(X)}, {v(S+7)}')
    for i in range(4): A(f'v_cndmask_b32 {v(S+8+i)}, {v(S+8+i)}, {v(X+1)}, {s(S_HI32,2)}')
    A(f'v_max3_f32 {v(X)}, {v(X)}, {v(S+8)}, {v(S+9)}')
    A(f'v_max3_f32 {v(X)}, {v(X)}, {v(S+10)}, {v(S+11)}')
    for sw in ('v_permlane16_swap_b32', 'v_permlane32_swap_b32'):
        A(f'v_mov_b32 {v(X+1)}, {v(X)}'); A(f'{sw} {v(X)}, {v(X+1)}'); A(f'v_max_f32 {v(X)}, {v(X)}, {v(X+1)}')
    A(f'v_mul_f32 {v(X)}, {s(S_SC)}, {v(X)}')
    for i in range(12): A(f'v_fma_f32 {v(S+i)}, {v(S+i)}, {s(S_SC)}, -{v(X)}')
    for i in range(12): A(f'v_exp_f32 {v(S+i)}, {v(S+i)}')
    for i in range(6): A(f'v_cvt_pk_bf16_f32 {v(V_P+i)}, {v(S+2*i)}, {v(S+2*i+1)}')
    sums = [f'v_add_f32 {v(S+i)}, {v(S+i)}, {v(S+6+i)}' for i in range(6)] + [f'v_add_f32 {v(S+i)}, {v(S+i)}, {v(S+3+i)}' for i in range(3)]
    sums += [f'v_add_f32 {v(S)}, {v(S)}, {v(S+1)}', f'v_add_f32 {v(X)}, {v(S)}, {v(S+2)}']
    A(f'v_mfma_f32_16x16x16_bf16 {v(V_O,4)}, {v(V_VMF,2)}, {v(V_P+4,2)}, 0')
    for x in sums[:3]: A(x)
    A(f'v_mfma_f32_16x16x16_bf16 {v(V_O+4,4)}, {v(V_VMF+2,2)}, {v(V_P+4,2)}, 0')
    for x in sums[3:9]: A(x)
    A(f'v_mfma_f32_16x16x32_bf16 {v(V_O,4)}, {v(V_VXF,4)}, {v(V_P,4)}, {v(V_O,4)}')
    for x in sums[9:]: A(x)
    A(f'v_mfma_f32_16x16x32_bf16 {v(V_O+4,4)}, {v(V_VXF+4,4)}, {v(V_P,4)}, {v(V_O+4,4)}')
    for sw in ('v_permlane16_swap_b32', 'v_permlane32_swap_b32'):
        A(f'v_mov_b32 {v(X+1)}, {v(X)}'); A(f'{sw} {v(X)}, {v(X+1)}'); A(f'v_add_f32 {v(X)}, {v(X)}, {v(X+1)}')
    A(f'v_rcp_f32 {v(X)}, {v(X)}')
    for i in range(4): A(f'v_cndmask_b32 {v(X+2+i)}, {v(V_O+4+i)}, {v(V_O+i)}, {s(S_LO16,2)}')
    for i in range(4): A(f'v_mul_f32 {v(X+2+i)}, {v(X+2+i)}, {v(X)}')
    A(f'v_cvt_pk_bf16_f32 {v(X+6)}, {v(X+2)}, {v(X+3)}'); A(f'v_cvt_pk_bf16_f32 {v(X+7)}, {v(X+4)}, {v(X+5)}')
    A(f'global_store_dword {v(V_OST)}, {v(X+6)}, {s(P_OX,2)}')
    A(f'global_store_dword {v(V_OST)}, {v(X+7)}, {s(P_OX,2)} offset:128')
    stamp(A, 3, timing)
    A.label(LB)
    A('s_barrier')
    if sleep_c: A(f's_sleep {sleep_c}')
    zero = [f'v_mov_b32 {v(V_ACC+k)}, 0' for k in range(8)]
    chunk_pipeline(A, P_OX, lambda cc: [f'{SM} {v(V_ACC+4*t,4)}, {v(V_POLL+4*cc,4)}, {a(A_WO+8*(2*cc+t),8)}, {v(V_IDX)}' for t in range(2)], EXIT, zero, nc)
    stamp(A, 4, timing)
    for i in range(4): A(f'v_permlane32_swap_b32 {v(V_ACC+i)}, {v(V_ACC+4+i)}')
    for i in (0, 2): A(f'v_pk_add_f32 {v(V_ACC+i,2)}, {v(V_ACC+i,2)}, {v(V_ACC+4+i,2)}')
    A(f'ds_write_b128 {v(V_WL1)}, {v(V_ACC,4)} offset:{LDS_WOP}')
    A('s_waitcnt lgkmcnt(0)')
    A('s_barrier')
    for ws in range(4): A(f'ds_read_b32 {v(R+ws)}, {v(V_RWO)} offset:{LDS_WOP + 1024*ws}')
    A('s_waitcnt lgkmcnt(0)')
    A(f'v_pk_add_f32 {v(R,2)}, {v(R,2)}, {v(R+2,2)}')
    A(f'v_add_f32 {v(R)}, {v(R)}, {v(R+1)}')
    A(f'global_store_dword {v(V_PST)}, {v(R)}, {s(P_PART,2)} sc1')
    stamp(A, 5, timing)
    LD, LE, LF, LG = A.newlabel('notw0'), A.newlabel('endD'), A.newlabel('notw1'), A.newlabel('notw3')
    A(f's_cmp_lg_u32 {s(S_W)}, 0'); A(f's_cbranch_scc1 {LD}')
    loads = [f'global_load_dwordx4 {v(V_POLL+4*k,4)}, {v(V_L16)}, {s(P_PART,2)} offset:{1024*k} sc1' for k in range(4)]
    if nd:
        if sd: A(f's_sleep {sd}')
        for ld in loads: A(ld)
        A('s_waitcnt vmcnt(0)')
    else:
        poll2(A, loads, range(V_POLL, V_POLL + 16), V_T, EXIT, sd, rd)
    stamp(A, 6, timing)
    Q = V_POLL
    for i in (0, 2):
        A(f'v_pk_add_f32 {v(Q+i,2)}, {v(Q+i,2)}, {v(Q+4+i,2)}'); A(f'v_pk_add_f32 {v(Q+8+i,2)}, {v(Q+8+i,2)}, {v(Q+12+i,2)}')
    for i in (0, 2): A(f'v_pk_add_f32 {v(Q+i,2)}, {v(Q+i,2)}, {v(Q+8+i,2)}')
    A(f'v_cvt_pk_bf16_f32 {v(R)}, {v(Q)}, {v(Q+1)}'); A(f'v_cvt_pk_bf16_f32 {v(R+1)}, {v(Q+2)}, {v(Q+3)}')
    slot_ptr(A, S_T0, B_MEM, 1, STEP_MEM)
    A(f'global_store_dwordx2 {v(V_MST)}, {v(R,2)}, {s(S_T0,2)}')
    stamp(A, 7, timing)
    A(f's_branch {LE}')
    A.label(LD)
    A('s_sleep 2')
    A(f's_cmp_lg_u32 {s(S_W)}, 1'); A(f's_cbranch_scc1 {LF}')
    fill_slots(A, 2)
    if spf: scalar_prefetch(A, 0)
    A(f's_branch {LE}')
    A.label(LF)
    if HOOK_W2 is not None:
        LH = A.newlabel('nh2')
        A(f's_cmp_lg_u32 {s(S_W)}, 2'); A(f's_cbranch_scc1 {LH}')
        HOOK_W2(A)
        A.label(LH)
    if spf:
        L2_ = A.newlabel('nw2')
        A(f's_cmp_lg_u32 {s(S_W)}, 2'); A(f's_cbranch_scc1 {L2_}')
        scalar_prefetch(A, 1)
        A.label(L2_)
    if not nokm: A(f'global_store_dword {v(V_QKST)}, {v(V_KKEEP)}, {s(P_KM,2)} offset:-2048 sc1')
    A(f's_cmp_lg_u32 {s(S_W)}, {W_ATT}'); A(f's_cbranch_scc1 {LE}')
    A('s_mov_b32 exec_hi, 0')
    for et in range(2):
        if not nokm: A(f'global_store_dwordx2 {v(V_VMST)}, {v(V_VMF+2*et,2)}, {s(P_VM,2)} offset:{256*et} sc1')
    A('s_mov_b64 exec, -1')
    A(f's_cmp_ge_u32 {s(S_STEP)}, 63'); A(f's_cbranch_scc1 {LE}')
    add64(A, P_KX, P_KX, 262144); add64(A, P_VX, P_VX, 262144)
    if not nopf: prefetch_kv(A)
    A.label(LE)
    A('s_barrier')
    stamp(A, 9, timing)

def publish_mem0(A):
    T = V_R
    A(f'v_bfe_u32 {v(T)}, {v(V_L)}, 3, 1'); A(f'v_lshlrev_b32 {v(T)}, 2, {v(T)}')
    A(f'v_bfe_u32 {v(T+1)}, {v(V_L)}, 1, 2'); A(f'v_add_u32 {v(T)}, {v(T)}, {v(T+1)}')
    A(f'v_lshlrev_b32 {v(T)}, 11, {v(T)}')
    A(f'v_lshrrev_b32 {v(T+1)}, 5, {v(V_L)}'); A(f'v_lshl_add_u32 {v(T)}, {v(T+1)}, 5, {v(T)}')
    A(f'v_bfe_u32 {v(T+1)}, {v(V_L)}, 4, 1'); A(f'v_lshl_add_u32 {v(T)}, {v(T+1)}, 4, {v(T)}')
    A(f'v_and_b32 {v(T+1)}, 1, {v(V_L)}'); A(f'v_lshl_add_u32 {v(T)}, {v(T+1)}, 2, {v(T)}')
    A(f's_lshl_b32 {s(S_T0)}, {s(S_I)}, 6')
    A(f'v_add_u32 {v(T)}, {s(S_T0)}, {v(T)}')
    A(f'global_load_dword {v(T+2)}, {v(T)}, {s(S_MEM0,2)}')
    A(f'global_load_dword {v(T+3)}, {v(T)}, {s(S_MEM0,2)} offset:8')
    A('s_waitcnt vmcnt(0)')
    A(f'global_store_dwordx2 {v(V_MST)}, {v(T+2,2)}, {s(P_MEM,2)}')

def chain_main(A, EXIT, timing, nbar, **kw):
    lane_setup(A)
    load_weights(A)
    A('s_memrealtime s[86:87]')
    set_ptrs(A)
    for p, b in ((P_MEM, B_MEM), (P_QK, B_QK), (P_OX, B_OX), (P_PART, B_PART)): A(f's_mov_b64 {s(b,2)}, {s(p,2)}')
    A(f's_mov_b32 {s(S_STEP)}, 0')
    L0 = A.newlabel('nf')
    A(f's_cmp_lg_u32 {s(S_W)}, 1'); A(f's_cbranch_scc1 {L0}')
    for k in range(4): fill_slots(A, k)
    A('s_waitcnt vmcnt(0)')
    for k in range(4): fill_slots(A, k, mode='load')
    A.label(L0)
    if HOOK_PREBAR is not None: HOOK_PREBAR(A)
    A('s_memrealtime s[82:83]'); A('s_waitcnt lgkmcnt(0)'); A('s_mov_b32 s83, s82')
    chain_barrier(A, nbar, EXIT)
    A('s_memrealtime s[84:85]')
    L1, L2 = A.newlabel('nm0'), A.newlabel('npf')
    A(f's_cmp_lg_u32 {s(S_W)}, 0'); A(f's_cbranch_scc1 {L1}')
    publish_mem0(A)
    A.label(L1)
    A(f's_cmp_lg_u32 {s(S_W)}, 3'); A(f's_cbranch_scc1 {L2}')
    prefetch_kv(A)
    A.label(L2)
    A(f's_mov_b32 {s(S_STEP)}, 0')
    if timing:
        for k in range(20): A(f's_mov_b32 {s(S_ACC+k)}, 0')
    A(f's_memrealtime {s(S_TM0,2)}')
    A('s_memtime s[90:91]')
    A('s_waitcnt lgkmcnt(0)')
    A.label('C_step')
    step_body(A, EXIT, timing, **kw)
    advance_ptrs(A)
    A(f's_add_u32 {s(S_STEP)}, {s(S_STEP)}, 1')
    cur_ptrs(A)
    A(f's_cmp_lt_u32 {s(S_STEP)}, 64')
    A('s_cbranch_scc1 C_step')
    A(f's_memrealtime {s(S_TM1,2)}')
    A('s_memtime s[92:93]')
    A('s_waitcnt lgkmcnt(0)')

if __name__ == '__main__':
    import sys
    c1.chain_main = lambda A, EXIT, timing, nbar: chain_main(A, EXIT, timing, nbar, **KW)
    KW = {}
    for x in sys.argv[3:]:
        k, val = x.split('='); KW[k] = int(val)
    txt, n, nz = c1.gen_standalone(sys.argv[2] == 't')
    open(sys.argv[1], 'w').write(txt)
    print('instructions', n, 'nops', nz)
```

```python
from asmlib import *
from layout import *
from ln import ln_row

def ln_rows(A, srow, nrows, SX, SWS, flags=' sc1', st=30):
    R, X, T, PK, O = 8, 24, 40, 44, 2
    A('v_and_b32 v1, 63, v0')
    A('v_lshlrev_b32 v4, 4, v1')
    A(f's_lshl_b32 {s(st)}, {s(srow)}, 11')
    A(f'v_add_u32 {v(O)}, {s(st)}, v4')
    A('v_lshrrev_b32 v5, 2, v1'); A('v_lshlrev_b32 v5, 17, v5')
    A('v_and_b32 v6, 3, v1')
    RB = 64
    for r in range(nrows):
        A(f'global_load_dwordx4 {v(RB+8*r,4)}, {v(O)}, {s(SX,2)} offset:{(r%2)*2048}') if False else None
    for r in range(nrows):
        A(f'v_add_u32 {v(60+r)}, {2048*r}, {v(O)}')
    for r in range(nrows):
        A(f'global_load_dwordx4 {v(RB+8*r,4)}, {v(60+r)}, {s(SX,2)}')
        A(f'global_load_dwordx4 {v(RB+8*r+4,4)}, {v(60+r)}, {s(SX,2)} offset:1024')
    for r in range(nrows):
        R = RB + 8 * r
        A(f's_add_u32 {s(st)}, {s(srow)}, {r}')
        A(f's_bfe_u32 {s(st+1)}, {s(st)}, 0x20002'); A(f's_lshr_b32 {s(st+2)}, {s(st+1)}, 1')
        A(f's_xor_b32 {s(st+1)}, {s(st+1)}, {s(st+2)}'); A(f's_and_b32 {s(st+1)}, {s(st+1)}, 1'); A(f's_lshl_b32 {s(st+1)}, {s(st+1)}, 1')
        A(f's_add_u32 {s(st+1)}, {s(st+1)}, {s(st+2)}')
        A(f'v_xor_b32 v7, {s(st+1)}, v6'); A('v_lshl_add_u32 v7, v7, 4, v5')
        A(f's_lshl_b32 {s(st)}, {s(st)}, 6'); A(f's_add_u32 {s(st)}, {s(st)}, {XN}')
        A(f'v_add_u32 v7, {s(st)}, v7')
        younger = 2 * (nrows - 1 - r) + 4 * r
        A(f's_waitcnt vmcnt({younger})')
        for d in range(8):
            A(f'v_lshlrev_b32 {v(X+2*d)}, 16, {v(R+d)}'); A(f'v_and_b32 {v(X+2*d+1)}, 0xffff0000, {v(R+d)}')
        PKr = PK + 16 * (r % 2) if False else PK
        ln_row(A, X, T, PK)
        A(f'global_store_dwordx4 v7, {v(PK,4)}, {s(SWS,2)}{flags}')
        A('v_add_u32 v7, 0x200000, v7')
        A(f'global_store_dwordx4 v7, {v(PK+4,4)}, {s(SWS,2)}{flags}')
        ln_row(A, X, T, PK + 8)
        A(f'v_add_u32 {v(O+1)}, {HT}, {v(60+r)}')
        A(f'global_store_dwordx4 {v(O+1)}, {v(PK+8,4)}, {s(SWS,2)}{flags}')
        A(f'global_store_dwordx4 {v(O+1)}, {v(PK+12,4)}, {s(SWS,2)} offset:1024{flags}')
```

```python
TY_K, TY_V, TY_Q, TY_M1, TY_M2, TY_KS, TY_VS, TY_AT, TY_OP, TY_OPP = range(10)
NMED = 10
def lists(nmed=NMED):
    kv = lambda b: [t for j in range(4) for t in ((TY_K, b, j), (TY_V, b, j))]
    ks = [t for sb in range(4) for j in range(4) for t in ((TY_KS, sb, j), (TY_VS, sb, j))]
    q = lambda b: [(TY_Q, b, j) for j in range(4)]
    m1 = [(TY_M1, 0, j) for j in range(14)]
    m2 = [(TY_M2, j % 8, j // 8) for j in range(16)]
    A = ks + kv(1) + kv(2) + m1 + q(0)[:2] + kv(3) + q(0)[2:] + q(1) + q(2) + kv(4) + kv(5) + q(3) + kv(6) + kv(7) + q(4) + q(5) + q(6) + q(7)
    AT = [(TY_AT, g, 0) for g in range(32)]
    OP = [(TY_OP, gg, 0) for gg in range(nmed)]
    for g in range(2 * nmed, 32): OP += [(TY_OPP, g, kq) for kq in range(4)]
    return A, AT, OP, m2
if __name__ == '__main__':
    print([len(x) for x in lists()])
```

```python
from sched2 import TY_K, TY_V, TY_Q, TY_M1, TY_M2, TY_KS, TY_VS, TY_AT, TY_OP, TY_OPP, NMED

def simulate(step=2.8, t0=11.0, cstart=25.0, dKS=10.0, dB=24.5, dM1=55.0, dM2=43.0, dAT=10.5, dOP=44.0, dOPP=10.0, kvlead=30.0, verbose=False):
    T = []
    add = lambda **k: T.append(dict(start=None, end=None, **k))
    for sb in range(4):
        for j in range(4): add(ty=TY_KS, tm=sb, j=j, d=dKS, blk=0); add(ty=TY_VS, tm=sb, j=j, d=dKS, blk=0)
    for b in range(1, 8):
        for j in range(4): add(ty=TY_K, tm=b, j=j, d=dB, blk=b); add(ty=TY_V, tm=b, j=j, d=dB, blk=b)
    for b in range(8):
        for j in range(4): add(ty=TY_Q, tm=b, j=j, d=dB, blk=b)
    for j in range(14): add(ty=TY_M1, tm=0, j=j, d=dM1)
    for j in range(16): add(ty=TY_M2, tm=j % 8, j=j // 8, d=dM2)
    for g in range(32): add(ty=TY_AT, tm=g, j=0, d=dAT)
    for gg in range(NMED): add(ty=TY_OP, tm=gg, j=0, d=dOP)
    for g in range(2 * NMED, 32):
        for kq in range(4): add(ty=TY_OPP, tm=g, j=kq, d=dOPP)
    by = lambda pred: [t for t in T if pred(t)]
    KV = {b: by(lambda x: x['ty'] in (TY_K, TY_V, TY_KS, TY_VS) and x['blk'] == b) for b in range(8)}
    Q = {b: by(lambda x: x['ty'] == TY_Q and x['blk'] == b) for b in range(8)}
    M1, M2 = by(lambda x: x['ty'] == TY_M1), by(lambda x: x['ty'] == TY_M2)
    AT = {t['tm']: t for t in T if t['ty'] == TY_AT}
    def done(l):
        e = [t['end'] for t in l]
        return None if any(x is None for x in e) else max(e)
    def chain():
        t, out = cstart, []
        for s_ in range(64):
            kv = done(KV[s_ // 8])
            if kv is None: return out + [None] * (64 - s_)
            t = max(t, kv + 1.0) + step; out.append(t)
        return out
    def ready(t, ct):
        ty = t['ty']
        if ty in (TY_K, TY_V, TY_KS, TY_VS, TY_Q, TY_M1): return t0
        if ty == TY_M2: return done(M1)
        if ty == TY_AT:
            s_ = min(63, 2 * t['tm'] + 3)
            c, q = ct[s_], done(Q[t['tm'] // 4])
            return None if c is None or q is None else max(c, q)
        if ty == TY_OP:
            e = done([AT[2 * t['tm']], AT[2 * t['tm'] + 1]] + M2); return e
        return done([AT[t['tm']]] + (M2 if t['j'] == 3 else []))
    def prio(t):
        ty = t['ty']
        if ty in (TY_KS, TY_VS): return -100
        if ty in (TY_K, TY_V): return cstart + t['blk'] * 8 * step - dB - kvlead
        if ty == TY_M1: return cstart + 2 * 8 * step - dB - kvlead - 0.5
        if ty == TY_M2: return 1.0
        if ty == TY_OPP: return 2.0 + t['tm'] * 0.01
        if ty == TY_OP: return 3.0 + t['tm'] * 0.01
        if ty == TY_AT: return 4.0 + t['tm'] * 0.01
        return cstart + t['blk'] * 8 * step + 25.0
    free = [t0] * 32
    joined = False
    order, pend = [], list(T)
    while pend:
        ct = chain()
        if not joined and ct[63] is not None and min(free) >= ct[63]:
            free += [ct[63] + 1.0] * 32; joined = True
        w = min(range(len(free)), key=lambda i: free[i]); now = free[w]
        cand = [(t, ready(t, ct)) for t in pend]
        rdy = [t for t, r in cand if r is not None and r <= now + 1e-9]
        if rdy: t = min(rdy, key=prio); st = now
        else:
            known = [(r, prio(t), id(t), t) for t, r in cand if r is not None]
            later = [x for x in free if x > now + 1e-9]
            if not known: free[w] = min(later); continue
            r, _, _, t = min(known, key=lambda x: (x[0], x[1]))
            if later and r > min(later): free[w] = min(later); continue
            st = r
        t['start'], t['end'] = st, st + t['d']; free[w] = t['end']; pend.remove(t); order.append(t)
    ct = chain()
    if verbose:
        print('chain last step end %.1f ; all tasks end %.1f' % (ct[63], max(t['end'] for t in T)))
        for t in order: print(t['ty'], t['tm'], t['j'], '%.0f-%.0f' % (t['start'], t['end']))
    return [(t['ty'], t['tm'], t['j']) for t in order]
if __name__ == '__main__':
    o = simulate(verbose=True); print(len(o))
```

```python
import sys
from asmlib import *
from layout import *
import chain as c1, chain5 as c5, gemm3, ln2, att3, sched2, sched3
from gemm3 import *
from chain import kernel_head, kernel_footer
from sched2 import TY_K, TY_V, TY_Q, TY_M1, TY_M2, TY_KS, TY_VS, TY_AT, TY_OP, TY_OPP, NMED

D_TICKET, D_CBAR, D_ERR, D_LNALL, D_M1, D_QA, D_LN, D_KV, D_QAT, D_QOP, D_Q, D_M2, D_CH, D_QM2 = 0, 8, 9, 10, 11, 12, 16, 24, 32, 36, 40, 48, 56, 60
CNT = 0xA800000
PBUF = 0xB000000
POLL = 400000
LDS_Q = 163824
LOG = 0xA000000

WS, PWQ, PWK, PWV, PW1, PB1, PW2, PB2, DBG = 40, 42, 44, 46, 48, 50, 52, 54, 56
S_Y, S_TASK, S_TY, S_TM, S_TN, S_BLK = 58, 59, 60, 61, 62, 63
T0, T1, T2, T3 = 64, 65, 66, 67
TAB, PWO, PX, POUT = 68, 70, 72, 74
S_WKR, S_TS = 76, 78
S_LIST, S_F0, S_F1, S_F2, S_F3, S_M0, S_M1 = 77, 80, 81, 82, 83, 84, 86

def wait_ge(A, EXIT, dword, target, index=None, shift=None, mask=None, sleep=32):
    L, D = A.newlabel('wc'), A.newlabel('wcd')
    A(f's_cmp_lg_u32 {s(G_WV)}, 0'); A(f's_cbranch_scc1 {D}')
    if index is not None:
        A(f's_lshl_b32 {s(T0)}, {s(index)}, 2'); A(f's_add_u32 {s(T0)}, {s(T0)}, {4*dword}'); A(f'v_mov_b32 {v(GV_T)}, {s(T0)}')
    else:
        A(f'v_mov_b32 {v(GV_T)}, {4*dword}')
    A(f's_mov_b32 {s(T1)}, 0')
    A('s_mov_b64 exec, 1')
    A.label(L)
    A(f'global_load_dword {v(GV_T+1)}, {v(GV_T)}, {s(DBG,2)} sc1')
    A('s_waitcnt vmcnt(0)')
    A(f'v_readfirstlane_b32 {s(T0)}, {v(GV_T+1)}')
    if shift is not None:
        A(f's_lshr_b32 {s(T0)}, {s(T0)}, {s(shift)}'); A(f's_and_b32 {s(T0)}, {s(T0)}, {mask}')
    A(f's_cmp_ge_u32 {s(T0)}, {target}'); A(f's_cbranch_scc1 {D}_x')
    A(f's_sleep {sleep}')
    A(f's_add_u32 {s(T1)}, {s(T1)}, 1'); A(f's_cmp_lt_u32 {s(T1)}, {POLL}'); A(f's_cbranch_scc1 {L}')
    A('s_mov_b64 exec, -1')
    A(f's_branch {EXIT}')
    A.label(D + '_x')
    A('s_mov_b64 exec, -1')
    A.label(D)
    A('s_barrier')

def wait_ws(A, EXIT, soff, target, sleep=24):
    L, D = A.newlabel('ww'), A.newlabel('wwd')
    A(f's_cmp_lg_u32 {s(G_WV)}, 0'); A(f's_cbranch_scc1 {D}')
    A(f's_add_u32 {s(T0)}, {s(soff)}, {CNT}'); A(f'v_mov_b32 {v(GV_T)}, {s(T0)}')
    A(f's_mov_b32 {s(T1)}, 0')
    A('s_mov_b64 exec, 1')
    A.label(L)
    A(f'global_load_dword {v(GV_T+1)}, {v(GV_T)}, {s(WS,2)} sc1')
    A('s_waitcnt vmcnt(0)')
    A(f'v_readfirstlane_b32 {s(T0)}, {v(GV_T+1)}')
    A(f's_cmp_ge_u32 {s(T0)}, {target}'); A(f's_cbranch_scc1 {D}_x')
    A(f's_sleep {sleep}')
    A(f's_add_u32 {s(T1)}, {s(T1)}, 1'); A(f's_cmp_lt_u32 {s(T1)}, {POLL}'); A(f's_cbranch_scc1 {L}')
    A('s_mov_b64 exec, -1')
    A(f's_branch {EXIT}')
    A.label(D + '_x')
    A('s_mov_b64 exec, -1')
    A.label(D)
    A('s_barrier')

def wait_ws8(A, EXIT, soff, sleep=24):
    L, D = A.newlabel('w8'), A.newlabel('w8d')
    A(f's_cmp_lg_u32 {s(G_WV)}, 0'); A(f's_cbranch_scc1 {D}')
    A(f's_add_u32 {s(T0)}, {s(soff)}, {CNT}')
    A(f'v_lshlrev_b32 {v(GV_T)}, 2, {v(GV_L)}'); A(f'v_add_u32 {v(GV_T)}, {s(T0)}, {v(GV_T)}')
    A(f's_mov_b32 {s(T1)}, 0')
    A('s_mov_b64 exec, 0xff')
    A.label(L)
    A(f'global_load_dword {v(GV_T+1)}, {v(GV_T)}, {s(WS,2)} sc1')
    A('s_waitcnt vmcnt(0)')
    A(f'v_cmp_eq_u32 vcc, 0, {v(GV_T+1)}')
    A(f's_cbranch_vccz {D}_x')
    A(f's_sleep {sleep}')
    A(f's_add_u32 {s(T1)}, {s(T1)}, 1'); A(f's_cmp_lt_u32 {s(T1)}, {POLL}'); A(f's_cbranch_scc1 {L}')
    A('s_mov_b64 exec, -1')
    A(f's_branch {EXIT}')
    A.label(D + '_x')
    A('s_mov_b64 exec, -1')
    A.label(D)
    A('s_barrier')

def signal_ws(A, soff, ret=False):
    L = A.newlabel('sw')
    A('s_waitcnt vmcnt(0)')
    A('s_barrier')
    A(f'v_mov_b32 {v(GV_T+2)}, {LDS_Q}')
    A(f's_cmp_lg_u32 {s(G_WV)}, 0'); A(f's_cbranch_scc1 {L}')
    A(f's_add_u32 {s(T0)}, {s(soff)}, {CNT}'); A(f'v_mov_b32 {v(GV_T)}, {s(T0)}'); A(f'v_mov_b32 {v(GV_T+1)}, 1')
    A('s_mov_b64 exec, 1')
    if ret:
        A(f'global_atomic_add {v(GV_T+3)}, {v(GV_T)}, {v(GV_T+1)}, {s(WS,2)} sc0')
        A('s_waitcnt vmcnt(0)')
        A(f'ds_write_b32 {v(GV_T+2)}, {v(GV_T+3)}')
        A('s_waitcnt lgkmcnt(0)')
    else:
        A(f'global_atomic_add {v(GV_T)}, {v(GV_T+1)}, {s(WS,2)}')
    A('s_mov_b64 exec, -1')
    A.label(L)
    if ret:
        A('s_barrier')
        A(f'ds_read_b32 {v(GV_T+3)}, {v(GV_T+2)}')
        A('s_waitcnt lgkmcnt(0)')
        A(f'v_readfirstlane_b32 {s(T2)}, {v(GV_T+3)}')
        A('s_barrier')

def signal(A, dword, index=None, inc=1, second=None):
    L = A.newlabel('sg')
    A('s_waitcnt vmcnt(0)')
    A('s_barrier')
    A(f's_cmp_lg_u32 {s(G_WV)}, 0'); A(f's_cbranch_scc1 {L}')
    if index is not None:
        A(f's_lshl_b32 {s(T0)}, {s(index)}, 2'); A(f's_add_u32 {s(T0)}, {s(T0)}, {4*dword}'); A(f'v_mov_b32 {v(GV_T)}, {s(T0)}')
    else:
        A(f'v_mov_b32 {v(GV_T)}, {4*dword}')
    A(f'v_mov_b32 {v(GV_T+1)}, {inc}')
    A('s_mov_b64 exec, 1')
    A(f'global_atomic_add {v(GV_T)}, {v(GV_T+1)}, {s(DBG,2)}')
    if second is not None:
        A(f'v_mov_b32 {v(GV_T)}, {4*second}')
        A(f'global_atomic_add {v(GV_T)}, {v(GV_T+1)}, {s(DBG,2)}')
    A('s_mov_b64 exec, -1')
    A.label(L)

def next_task(A):
    L = A.newlabel('nt')
    A(f'v_mov_b32 {v(GV_T+2)}, {LDS_Q}')
    A(f's_cmp_lg_u32 {s(G_WV)}, 0'); A(f's_cbranch_scc1 {L}')
    A(f's_lshl_b32 {s(T0)}, {s(S_Y)}, 2'); A(f's_add_u32 {s(T0)}, {s(T0)}, {4*D_QA}')
    A(f'v_mov_b32 {v(GV_T)}, {s(T0)}'); A(f'v_mov_b32 {v(GV_T+1)}, 1')
    A('s_mov_b64 exec, 1')
    A(f'global_atomic_add {v(GV_T+3)}, {v(GV_T)}, {v(GV_T+1)}, {s(DBG,2)} sc0')
    A('s_waitcnt vmcnt(0)')
    A(f'ds_write_b32 {v(GV_T+2)}, {v(GV_T+3)}')
    A('s_waitcnt lgkmcnt(0)')
    A('s_mov_b64 exec, -1')
    A.label(L)
    A('s_barrier')
    A(f'ds_read_b32 {v(GV_T+3)}, {v(GV_T+2)}')
    A('s_waitcnt lgkmcnt(0)')
    A(f'v_readfirstlane_b32 {s(S_TASK)}, {v(GV_T+3)}')
    A('s_barrier')

def run_tile(A, cfg, orient, xmode):
    setup_dma(A, cfg, xmode)
    prologue_dma(A, cfg, xmode)
    setup_reads(A, cfg, xmode)
    mainloop(A, cfg, orient, xmode)

def log_task(A, slot):
    L = A.newlabel('lg')
    A(f's_memrealtime {s(S_TS,2)}'); A('s_waitcnt lgkmcnt(0)')
    A(f's_cmp_lg_u32 {s(G_WV)}, 0'); A(f's_cbranch_scc1 {L}')
    A(f's_lshl_b32 {s(T0)}, {s(S_Y)}, 9'); A(f's_add_u32 {s(T0)}, {s(T0)}, {s(S_TASK)}'); A(f's_lshl_b32 {s(T0)}, {s(T0)}, 4')
    A(f's_add_u32 {s(T0)}, {s(T0)}, {LOG + 4*slot}')
    A(f'v_mov_b32 {v(GV_T)}, {s(T0)}'); A(f'v_mov_b32 {v(GV_T+1)}, {s(S_TS)}')
    A('s_mov_b64 exec, 1'); A(f'global_store_dword {v(GV_T)}, {v(GV_T+1)}, {s(WS,2)}'); A('s_mov_b64 exec, -1')
    A.label(L)

def qkv_task(A, EXIT, cfg, isv, LOOP, log):
    sh = {256: 0, 64: 2}[cfg.BM]
    A(f's_lshr_b32 {s(S_BLK)}, {s(S_TM)}, {sh}')
    wait_ge(A, EXIT, D_LN, 16, S_BLK)
    if log: log_task(A, 1)
    kt, vt = (TY_K, TY_V) if cfg.BM == 256 else (TY_KS, TY_VS)
    if isv:
        A(f's_mov_b32 {s(T2)}, {s(PWV)}'); A(f's_mov_b32 {s(T3)}, {s(PWV+1)}')
    else:
        A(f's_cmp_eq_u32 {s(S_TY)}, {kt}'); A(f's_cselect_b32 {s(T2)}, {s(PWK)}, {s(PWQ)}'); A(f's_cselect_b32 {s(T3)}, {s(PWK+1)}, {s(PWQ+1)}')
    A(f's_lshl_b32 {s(T0)}, {s(S_TN)}, 9'); add64r(A, G_W, T2, T0)
    A(f's_mul_i32 {s(T0)}, {s(S_TM)}, {cfg.BM*64}'); A(f's_add_u32 {s(T0)}, {s(T0)}, {XN}'); add64r(A, G_X, WS, T0)
    A(f's_mov_b32 {s(G_DX)}, 131072'); A(f's_mov_b32 {s(G_LDW)}, 8192'); A(f's_mov_b32 {s(G_DW)}, {8192*32}'); A(f's_mov_b32 {s(G_NST)}, 32')
    A(f's_mul_i32 {s(T0)}, {s(S_TM)}, {cfg.BM//32*262144}'); A(f's_lshl_b32 {s(T1)}, {s(S_TN)}, 14'); A(f's_add_u32 {s(T0)}, {s(T0)}, {s(T1)}')
    if isv: A(f's_add_u32 {s(T0)}, {s(T0)}, {VT}')
    else:
        A(f's_mov_b32 {s(T1)}, {QB}')
        A(f's_cmp_eq_u32 {s(S_TY)}, {kt}'); A(f's_cselect_b32 {s(T1)}, {KB}, {s(T1)}')
        A(f's_add_u32 {s(T0)}, {s(T0)}, {s(T1)}')
    add64r(A, G_OUT, WS, T0)
    run_tile(A, cfg, 'M' if isv else 'N', 'blk')
    (epi_v if isv else epi_qk)(A, cfg)
    inc = 4 if cfg.BM == 256 else 1
    if isv or cfg.BM != 256:
        signal(A, D_KV, S_BLK, inc)
    else:
        LQ = A.newlabel('isq')
        A(f's_cmp_eq_u32 {s(S_TY)}, {TY_Q}'); A(f's_cbranch_scc1 {LQ}')
        signal(A, D_KV, S_BLK, inc)
        A(f's_branch {LOOP}')
        A.label(LQ)
        signal(A, D_Q, S_BLK, 1)
    A(f's_branch {LOOP}')

def worker(A, EXIT, tasks, log):
    NT = len(tasks)
    wave_id(A)
    A('s_cmp_eq_u32 s99, 1'); A('s_cbranch_scc1 W_first')
    A(f's_lshl_b32 {s(S_WKR)}, {s(S_Y)}, 5'); A(f's_add_u32 {s(S_WKR)}, {s(S_WKR)}, {s(c1.S_I)}')
    A(f's_lshr_b32 {s(S_TM)}, {s(S_WKR)}, 4')
    A(f's_lshl_b32 {s(T0)}, {s(S_WKR)}, 4'); A(f's_lshl_b32 {s(T1)}, {s(G_WV)}, 2'); A(f's_add_u32 {s(T2)}, {s(T0)}, {s(T1)}')
    A(f's_load_dwordx2 s[4:5], s[0:1], {KA["x"]}'); A('s_waitcnt lgkmcnt(0)')
    ln2.ln_rows(A, T2, 4, 4, WS, st=32)
    if log: A('s_memrealtime s[82:83]')
    signal(A, D_LN, S_TM, second=D_LNALL)
    if log:
        A('s_memrealtime s[84:85]'); A('s_waitcnt lgkmcnt(0)')
        A(f's_lshl_b32 {s(T0)}, {s(S_WKR)}, 5'); A(f's_add_u32 {s(T0)}, {s(T0)}, {LOG + 0x20000 + 128*32}')
        A(f'v_mov_b32 {v(GV_T)}, {s(T0)}'); A('s_mov_b64 exec, 1')
        for k, r in enumerate((88, 80, 82, 84)):
            A(f'v_mov_b32 {v(GV_T+1)}, {s(r)}'); A(f'global_store_dword {v(GV_T)}, {v(GV_T+1)}, {s(WS,2)} offset:{4*k}')
        A('s_mov_b64 exec, -1')
    LOOP = 'W_loop'
    A.label(LOOP)
    if log: log_task(A, 3)
    A.label('W_first')
    wave_id(A)
    next_task(A)
    A(f's_cmp_ge_u32 {s(S_TASK)}, {NT}'); A('s_cbranch_scc1 M_end')
    if log: log_task(A, 0)
    A(f's_lshl_b32 {s(T0)}, {s(S_TASK)}, 2')
    A(f's_load_dword {s(T1)}, {s(TAB,2)}, {s(T0)}'); A('s_waitcnt lgkmcnt(0)')
    A(f's_and_b32 {s(S_TY)}, {s(T1)}, 0xff'); A(f's_bfe_u32 {s(S_TM)}, {s(T1)}, 0x80008'); A(f's_bfe_u32 {s(S_TN)}, {s(T1)}, 0x80010')
    for ty, lab in ((TY_M1, 'W_m1'), (TY_M2, 'W_m2'), (TY_AT, 'W_at'), (TY_OP, 'W_op'), (TY_OPP, 'W_opp')):
        A(f's_cmp_eq_u32 {s(S_TY)}, {ty}'); A(f's_cbranch_scc1 {lab}')
    A(f's_lshl_b32 {s(S_TN)}, {s(S_TN)}, 2'); A(f's_add_u32 {s(S_TN)}, {s(S_TN)}, {s(S_Y)}')
    for ty, lab in ((TY_V, 'W_v'), (TY_KS, 'W_ks'), (TY_VS, 'W_vs')):
        A(f's_cmp_eq_u32 {s(S_TY)}, {ty}'); A(f's_cbranch_scc1 {lab}')
    qkv_task(A, EXIT, BIG, False, LOOP, log)
    A.label('W_v'); qkv_task(A, EXIT, BIG, True, LOOP, log)
    A.label('W_ks'); qkv_task(A, EXIT, SMALL, False, LOOP, log)
    A.label('W_vs'); qkv_task(A, EXIT, SMALL, True, LOOP, log)
    A.label('W_m1')
    A(f's_mul_i32 {s(T0)}, {s(S_Y)}, 14'); A(f's_add_u32 {s(T0)}, {s(T0)}, {s(S_TN)}')
    A(f's_and_b32 {s(S_TM)}, {s(T0)}, 3'); A(f's_lshr_b32 {s(S_TN)}, {s(T0)}, 2')
    wait_ge(A, EXIT, D_LNALL, 128)
    if log: log_task(A, 1)
    A(f's_lshl_b32 {s(T0)}, {s(S_TM)}, 9'); A(f's_add_u32 {s(T0)}, {s(T0)}, {HT}'); add64r(A, G_X, WS, T0)
    A(f's_lshl_b32 {s(T0)}, {s(S_TN)}, 9'); add64r(A, G_W, PW1, T0); add64r(A, G_P2, PB1, T0)
    A(f's_mov_b32 {s(G_LDX)}, 2048'); A(f's_mov_b32 {s(G_DX)}, {2048*32}'); A(f's_mov_b32 {s(G_LDW)}, 7168'); A(f's_mov_b32 {s(G_DW)}, {7168*32}'); A(f's_mov_b32 {s(G_NST)}, 64')
    A(f's_lshl_b32 {s(T0)}, {s(S_TN)}, 19'); A(f's_lshl_b32 {s(T1)}, {s(S_TM)}, 14'); A(f's_add_u32 {s(T0)}, {s(T0)}, {s(T1)}'); A(f's_add_u32 {s(T0)}, {s(T0)}, {UB}')
    add64r(A, G_OUT, WS, T0)
    run_tile(A, BIG, 'N', 'tr'); epi_mlp1(A, BIG)
    signal(A, D_M1, None, 1)
    A(f's_branch {LOOP}')
    A.label('W_m2')
    A(f's_lshl_b32 {s(T0)}, {s(S_Y)}, 1'); A(f's_add_u32 {s(S_TN)}, {s(S_TN)}, {s(T0)}')
    wait_ge(A, EXIT, D_M1, 56)
    if log: log_task(A, 1)
    A(f's_lshl_b32 {s(T0)}, {s(S_TM)}, 13'); A(f's_add_u32 {s(T0)}, {s(T0)}, {UB}'); add64r(A, G_X, WS, T0)
    A(f's_lshl_b32 {s(T0)}, {s(S_TN)}, 9'); add64r(A, G_W, PW2, T0); add64r(A, G_P2, PB2, T0)
    A(f's_mov_b32 {s(G_DX)}, 65536'); A(f's_mov_b32 {s(G_LDW)}, 4096'); A(f's_mov_b32 {s(G_DW)}, {4096*32}'); A(f's_mov_b32 {s(G_NST)}, 112')
    A(f's_lshl_b32 {s(T0)}, {s(S_TN)}, 19'); A(f's_lshl_b32 {s(T1)}, {s(S_TM)}, 8'); A(f's_add_u32 {s(T0)}, {s(T0)}, {s(T1)}'); A(f's_add_u32 {s(T0)}, {s(T0)}, {GB}')
    add64r(A, G_OUT, WS, T0)
    run_tile(A, MED, 'M', 'blk'); epi_mlp2(A, MED)
    signal(A, D_M2, S_TN, 1)
    A(f's_branch {LOOP}')
    A.label('W_at')
    A(f's_lshr_b32 {s(S_BLK)}, {s(S_TM)}, 2')
    wait_ge(A, EXIT, D_Q, 16, S_BLK)
    A(f's_lshl_b32 {s(T2)}, {s(S_TM)}, 6'); A(f's_add_u32 {s(T2)}, {s(T2)}, 64')
    wait_ge(A, EXIT, D_CH, s(T2), S_Y, sleep=24)
    if log: log_task(A, 1)
    A(f's_lshl_b32 s30, {s(S_TM)}, 1'); A(f's_lshl_b32 s31, {s(S_Y)}, 3'); A(f's_lshl_b32 {s(T0)}, {s(G_WV)}, 1'); A(f's_add_u32 s31, s31, {s(T0)}')
    att3.att_task(A, 30, 31, WS, [(0, 0), (0, 1), (1, 0), (1, 1)], 28, 29)
    A(f's_lshl_b32 {s(T2)}, {s(S_TM)}, 4'); A(f's_lshl_b32 {s(T3)}, {s(S_Y)}, 2'); A(f's_add_u32 {s(T2)}, {s(T2)}, {s(T3)}')
    signal_ws(A, T2)
    A(f's_branch {LOOP}')
    A.label('W_op')
    A(f's_lshr_b32 {s(S_BLK)}, {s(S_TM)}, 1')
    wait_ge(A, EXIT, D_M2, 8, S_BLK)
    A(f's_lshl_b32 {s(T2)}, {s(S_TM)}, 5')
    wait_ws8(A, EXIT, T2)
    if log: log_task(A, 1)
    A(f's_lshl_b32 {s(T0)}, {s(S_TM)}, 13'); A(f's_add_u32 {s(T0)}, {s(T0)}, {OB}'); add64r(A, G_X, WS, T0)
    A(f's_lshl_b32 {s(T0)}, {s(S_Y)}, 9'); add64r(A, G_W, PWO, T0)
    A(f's_mov_b32 {s(G_DX)}, 131072'); A(f's_mov_b32 {s(G_LDW)}, 2048'); A(f's_mov_b32 {s(G_DW)}, {2048*32}'); A(f's_mov_b32 {s(G_NST)}, 128')
    run_tile(A, MED, 'N', 'blk')
    A(f's_lshl_b32 {s(T0)}, {s(S_TM)}, 18'); A(f's_lshl_b32 {s(T1)}, {s(S_Y)}, 9'); A(f's_add_u32 {s(T0)}, {s(T0)}, {s(T1)}')
    add64r(A, G_OUT, POUT, T0); add64r(A, G_P3, PX, T0)
    A(f's_add_u32 {s(T0)}, {s(T0)}, {GB}'); add64r(A, G_P2, WS, T0)
    epi_final(A, MED, gflags=' sc1')
    A('s_waitcnt vmcnt(0)'); A('s_barrier')
    A(f's_branch {LOOP}')
    A.label('W_opp')
    A(f's_lshl_b32 {s(T2)}, {s(S_TM)}, 4'); A(f's_lshl_b32 {s(T3)}, {s(S_TN)}, 2'); A(f's_add_u32 {s(T2)}, {s(T2)}, {s(T3)}')
    wait_ws(A, EXIT, T2, 1)
    if log: log_task(A, 1)
    A(f's_lshl_b32 {s(T0)}, {s(S_TM)}, 12'); A(f's_lshl_b32 {s(T1)}, {s(S_TN)}, 22'); A(f's_add_u32 {s(T0)}, {s(T0)}, {s(T1)}')
    A(f's_add_u32 {s(T0)}, {s(T0)}, {OB}'); add64r(A, G_X, WS, T0)
    A(f's_lshl_b32 {s(T0)}, {s(S_Y)}, 9'); A(f's_lshl_b32 {s(T1)}, {s(S_TN)}, 21'); A(f's_add_u32 {s(T0)}, {s(T0)}, {s(T1)}'); add64r(A, G_W, PWO, T0)
    A(f's_mov_b32 {s(G_DX)}, 131072'); A(f's_mov_b32 {s(G_LDW)}, 2048'); A(f's_mov_b32 {s(G_DW)}, {2048*32}'); A(f's_mov_b32 {s(G_NST)}, 32')
    run_tile(A, SMALL, 'N', 'blk')
    A(f's_sub_u32 {s(T0)}, {s(S_TM)}, {2*NMED}'); A(f's_lshl_b32 {s(T0)}, {s(T0)}, 2'); A(f's_add_u32 {s(T0)}, {s(T0)}, {s(S_Y)}')
    A(f's_lshl_b32 {s(T0)}, {s(T0)}, 18'); A(f's_add_u32 {s(T0)}, {s(T0)}, {PBUF}'); add64r(A, G_P2, WS, T0)
    A(f's_lshl_b32 {s(T0)}, {s(G_WV)}, 14'); A(f'v_lshlrev_b32 {v(E_LO)}, 4, {v(GV_L)}'); A(f'v_add_u32 {v(E_LO)}, {s(T0)}, {v(E_LO)}')
    A(f's_lshl_b32 {s(T0)}, {s(S_TN)}, 16'); A(f'v_add_u32 {v(E_HI)}, {s(T0)}, {v(E_LO)}')
    for t in range(16):
        if t and t % 4 == 0: A(f'v_add_u32 {v(E_HI)}, 4096, {v(E_HI)}')
        A(f'global_store_dwordx4 {v(E_HI)}, {a(4*t,4)}, {s(G_P2,2)} offset:{1024*(t%4)} sc1')
    A(f's_lshl_b32 {s(T3)}, {s(S_TM)}, 4'); A(f's_lshl_b32 {s(T2)}, {s(S_Y)}, 2'); A(f's_add_u32 {s(T3)}, {s(T3)}, {s(T2)}'); A(f's_add_u32 {s(T3)}, {s(T3)}, 512')
    signal_ws(A, T3, ret=True)
    A(f's_cmp_lg_u32 {s(T2)}, 3'); A(f's_cbranch_scc1 {LOOP}')
    A(f's_lshr_b32 {s(S_BLK)}, {s(S_TM)}, 2')
    wait_ge(A, EXIT, D_M2, 8, S_BLK)
    for half in range(2):
        for t in range(8 * half, 8 * half + 8):
            for k in range(4):
                r = GV_F + 16 * (t % 8) + 4 * k
                A(f'v_add_u32 {v(E_HI)}, {k*65536 + (t//4)*4096}, {v(E_LO)}')
                A(f'global_load_dwordx4 {v(r,4)}, {v(E_HI)}, {s(G_P2,2)} offset:{1024*(t%4)} sc1')
        A('s_waitcnt vmcnt(0)')
        for t in range(8 * half, 8 * half + 8):
            r = GV_F + 16 * (t % 8)
            for i in (0, 2):
                A(f'v_pk_add_f32 {v(r+i,2)}, {v(r+i,2)}, {v(r+4+i,2)}'); A(f'v_pk_add_f32 {v(r+8+i,2)}, {v(r+8+i,2)}, {v(r+12+i,2)}')
            for i in (0, 2): A(f'v_pk_add_f32 {v(r+i,2)}, {v(r+i,2)}, {v(r+8+i,2)}')
            for i in range(4): A(f'v_accvgpr_write_b32 {a(4*t+i)}, {v(r+i)}')
    A(f's_lshl_b32 {s(T0)}, {s(S_TM)}, 17'); A(f's_lshl_b32 {s(T1)}, {s(S_Y)}, 9'); A(f's_add_u32 {s(T0)}, {s(T0)}, {s(T1)}')
    add64r(A, G_OUT, POUT, T0); add64r(A, G_P3, PX, T0)
    A(f's_add_u32 {s(T0)}, {s(T0)}, {GB}'); add64r(A, G_P2, WS, T0)
    epi_final(A, SMALL, gflags=' sc1')
    A('s_waitcnt vmcnt(0)'); A('s_barrier')
    A(f's_branch {LOOP}')

def kv_wait_block(A, sseg, EXIT):
    S = c1
    P, D = A.newlabel('kvp'), A.newlabel('kvd')
    T = c5.V_T
    A(f's_lshr_b32 {s(S.S_T3)}, {s(sseg)}, 3'); A(f's_lshl_b32 {s(S.S_T3)}, {s(S.S_T3)}, 2'); A(f's_add_u32 {s(S.S_T3)}, {s(S.S_T3)}, {4*D_KV}')
    A(f'v_mov_b32 {v(T)}, {s(S.S_T3)}')
    A(f's_mov_b32 {s(S.S_RETRY)}, 0')
    A.label(P)
    A(f'global_load_dword {v(T+1)}, {v(T)}, {s(S.S_DBG,2)} sc1')
    A('s_waitcnt vmcnt(0)')
    A(f'v_readfirstlane_b32 {s(S.S_T3)}, {v(T+1)}')
    A(f's_cmp_ge_u32 {s(S.S_T3)}, 128'); A(f's_cbranch_scc1 {D}')
    A('s_sleep 32')
    A(f's_add_u32 {s(S.S_RETRY)}, {s(S.S_RETRY)}, 1'); A(f's_cmp_lt_u32 {s(S.S_RETRY)}, {POLL}'); A(f's_cbranch_scc1 {P}')
    A(f's_branch {EXIT}')
    A.label(D)

def kv_wait_hook(A, EXIT):
    S = c1
    L = A.newlabel('kvw')
    A(f's_add_u32 {s(S.S_T2)}, {s(S.S_STEP)}, 1'); A(f's_and_b32 {s(S.S_T3)}, {s(S.S_T2)}, 7')
    A(f's_cmp_lg_u32 {s(S.S_T3)}, 0'); A(f's_cbranch_scc1 {L}')
    kv_wait_block(A, S.S_T2, EXIT)
    A.label(L)

def chain_signal(A, inc):
    T = c5.V_T
    A(f's_lshl_b32 {s(c1.S_T2)}, {s(c1.S_X)}, 2'); A(f's_add_u32 {s(c1.S_T2)}, {s(c1.S_T2)}, {4*D_CH}')
    A(f'v_mov_b32 {v(T)}, {s(c1.S_T2)}'); A(f'v_mov_b32 {v(T+1)}, {inc}')
    A('s_mov_b64 exec, 1')
    A(f'global_atomic_add {v(T)}, {v(T+1)}, {s(c1.S_DBG,2)}')
    A('s_mov_b64 exec, -1')

CH_KW = dict(sleep_a=1, sleep_c=1, gap=8, sd=6, rd=1)
def k_mega(log=False, chain_mod=None, **skw):
    ch = chain_mod or c5
    A = Asm('M_')
    EXIT = 'M_exit'
    tasks = sched3.simulate(**skw)
    A('s_cmp_ge_u32 s2, 256'); A('s_cbranch_scc1 M_end')
    A('s_getpc_b64 s[90:91]')
    A.label('M_pc0')
    A('s_lshr_b32 s92, s2, 3'); A('s_and_b32 s92, s92, 31'); A('s_min_u32 s92, s92, (M_tab-M_pc0)/4096-1'); A('s_lshl_b32 s92, s92, 12')
    A('v_lshlrev_b32 v2, 4, v0'); A('v_add_u32 v2, s92, v2')
    A('global_load_dwordx4 v[200:203], v2, s[90:91]')
    for r, k in ((c1.S_WQ, 'Wq'), (c1.S_WK, 'Wk'), (c1.S_WV, 'Wv'), (c1.S_WO, 'Wo'), (c1.S_MEM0, 'mem0'), (c1.S_DBG, 'dbg'), (c1.S_WS, 'ws')):
        A(f's_load_dwordx2 {s(r,2)}, s[0:1], {KA[k]}')
    A('s_memrealtime s[88:89]')
    A('s_waitcnt lgkmcnt(0)')
    c1.ticket(A)
    if log: A('s_memrealtime s[80:81]')
    A(f's_cmp_ge_u32 {s(c1.S_I)}, 32'); A(f's_cbranch_scc1 {EXIT}')
    A(f's_cmp_ge_u32 {s(c1.S_X)}, 4'); A('s_cbranch_scc1 M_worker')
    orig_pf = ch.prefetch_kv
    first = [True]
    def pf(A_):
        if first[0]:
            first[0] = False
            A_(f's_mov_b32 {s(c1.S_T2)}, 0'); kv_wait_block(A_, c1.S_T2, EXIT)
        else:
            kv_wait_hook(A_, EXIT)
        orig_pf(A_)
    ch.prefetch_kv = pf
    ch.HOOK_W2 = lambda A_: hook_w2(A_)
    def hook_w2(A_):
        L = A_.newlabel('ns')
        A_(f's_cmp_lt_u32 {s(c1.S_STEP)}, 2'); A_(f's_cbranch_scc1 {L}')
        A_(f's_cmp_lg_u32 {s(c1.S_I)}, 0'); A_(f's_cbranch_scc1 {L}')
        chain_signal(A_, 32)
        A_.label(L)
    ch.WLOG = log
    def pre_bar(A_):
        L = A_.newlabel('zc')
        A_(f's_or_b32 {s(c1.S_T0)}, {s(c1.S_X)}, {s(c1.S_I)}'); A_(f's_cmp_lg_u32 {s(c1.S_T0)}, 0'); A_(f's_cbranch_scc1 {L}')
        A_(f's_cmp_lg_u32 {s(c1.S_W)}, 2'); A_(f's_cbranch_scc1 {L}')
        for k in range(4): A_(f'v_mov_b32 {v(ch.V_R+k)}, 0')
        A_(f'v_add_u32 {v(ch.V_R+4)}, {CNT}, {v(ch.V_L16)}')
        A_(f'global_store_dwordx4 {v(ch.V_R+4)}, {v(ch.V_R,4)}, {s(c1.S_WS,2)} sc1')
        A_.label(L)
    ch.HOOK_PREBAR = pre_bar
    ch.chain_main(A, EXIT, False, 128, **CH_KW)
    ch.prefetch_kv = orig_pf
    A('s_waitcnt vmcnt(0)'); A('s_barrier')
    LS = A.newlabel('ls')
    A(f's_cmp_lg_u32 {s(c1.S_W)}, 2'); A(f's_cbranch_scc1 {LS}')
    chain_signal(A, 2)
    A.label(LS)
    if log:
        A(f's_lshl_b32 {s(c1.S_T0)}, {s(c1.S_X)}, 5'); A(f's_add_u32 {s(c1.S_T0)}, {s(c1.S_T0)}, {s(c1.S_I)}'); A(f's_lshl_b32 {s(c1.S_T0)}, {s(c1.S_T0)}, 5')
        A(f's_add_u32 {s(c1.S_T0)}, {s(c1.S_T0)}, {LOG + 0x20000}')
        A(f'v_mov_b32 v2, {s(c1.S_T0)}'); A('s_mov_b64 exec, 1')
        A('s_getreg_b32 s81, hwreg(HW_REG_HW_ID)')
        for k, r in enumerate((88, 80, 86, 83, 84, c1.S_TM0, c1.S_TM1, 81)):
            A(f'v_mov_b32 v3, {s(r)}'); A(f'global_store_dword v2, v3, {s(c1.S_WS,2)} offset:{4*k}')
        A('v_add_u32 v2, 0x4000, v2')
        for k, r in enumerate((72, 74, 76, 78)):
            A(f'v_mov_b32 v3, {s(r)}'); A(f'global_store_dword v2, v3, {s(c1.S_WS,2)} offset:{4*k}')
        A('s_mov_b64 exec, -1')
        A(f's_or_b32 {s(c1.S_T0)}, {s(c1.S_X)}, {s(c1.S_I)}'); A(f's_or_b32 {s(c1.S_T0)}, {s(c1.S_T0)}, {s(c1.S_W)}')
        A(f's_cmp_lg_u32 {s(c1.S_T0)}, 0'); A('s_cbranch_scc1 M_join')
        A(f'v_mov_b32 v2, {LOG + 0x10000}'); A('s_mov_b64 exec, 1')
        for k, r in enumerate((88, c1.S_TM0, c1.S_TM1, 86, 84)):
            A(f'v_mov_b32 v3, {s(r)}'); A(f'global_store_dword v2, v3, {s(c1.S_WS,2)} offset:{4*k}')
        A('s_mov_b64 exec, -1')
    A.label('M_join')
    A(f's_add_u32 {s(c1.S_X)}, {s(c1.S_X)}, 4')
    A(f's_mov_b32 s99, 1')
    A('s_branch M_worker2')
    A.label('M_worker')
    A('s_mov_b32 s99, 0')
    A.label('M_worker2')
    for r, k in ((WS, 'ws'), (PWQ, 'Wq'), (PWK, 'Wk'), (PWV, 'Wv'), (PW1, 'w1'), (PB1, 'b1'), (PW2, 'w2'), (PB2, 'b2'), (DBG, 'dbg'),
                 (PWO, 'Wo'), (PX, 'x'), (POUT, 'out')):
        A(f's_load_dwordx2 {s(r,2)}, s[0:1], {KA[k]}')
    A('s_waitcnt lgkmcnt(0)')
    A(f's_sub_u32 {s(S_Y)}, {s(c1.S_X)}, 4')
    A(f's_mov_b32 {s(S_TASK)}, 500')
    A(f's_getpc_b64 {s(TAB,2)}')
    A.label('M_pc')
    A(f's_add_u32 {s(TAB)}, {s(TAB)}, M_tab-M_pc'); A(f's_addc_u32 {s(TAB+1)}, {s(TAB+1)}, 0')
    worker(A, EXIT, tasks, log)
    A.label(EXIT)
    A(f's_load_dwordx2 s[4:5], s[0:1], {KA["dbg"]}'); A('s_waitcnt lgkmcnt(0)')
    A(f'v_mov_b32 v2, {4*D_ERR}'); A('v_mov_b32 v3, 1'); A('s_mov_b64 exec, 1')
    A('global_atomic_add v2, v3, s[4:5]')
    A.label('M_end'); A('s_endpgm')
    A.fix_hazards()
    tab = '.p2align 2\nM_tab:\n' + ''.join(f'.long {t | (m << 8) | (j << 16)}\n' for t, m, j in tasks)
    K = NAME + '_kernel'
    txt = HEADER + '; @launch grid=(256,1,1) block=(256,1,1) lds=163840\n.amdgcn_target "amdgcn-amd-amdhsa--gfx950"\n'
    body = A.text()
    body = '\n'.join(l.strip() if not l.startswith('.') else l for l in body.split('\n'))
    return txt + kernel_head(K) + body + tab + kernel_footer(K, 512, 102, 256), tasks

if __name__ == '__main__':
    log = len(sys.argv) > 2 and sys.argv[2] == 'log'
    txt, tasks = k_mega(log)
    open(sys.argv[1], 'w').write(txt)
    import json; json.dump(tasks, open(sys.argv[1].replace('.s', '.tasks.json'), 'w'))
    print('bytes', len(txt), 'tasks', len(tasks))
```

```python
from asmlib import *
from layout import *
import chain as c1
from chain import (poll, add64, add64s, S_WQ, S_WK, S_WV, S_WO, S_MEM0, S_DBG, S_WS, S_X, S_I, S_W, S_H, S_J, S_STEP,
                   P_MEM, P_QK, P_OX, P_PART, P_KX, P_VX, P_KM, P_VM, S_T0, S_T1, S_T2, S_T3, S_EVEN, S_SC, S_RETRY, S_LO16, S_HI32,
                   S_TM0, S_TM1, S_ACC, POLL_LIMIT, STEP_MEM, STEP_QK, STEP_OX, STEP_PART, STEP_KX, STEP_VX, STEP_KM,
                   kernel_head, kernel_footer, ticket, chain_barrier, set_ptrs, stamp)
import struct, math

V_L, V_N, V_G, V_L16, V_QKST, V_QLD, V_KX0, V_KX1, V_VX0, V_VX1, V_OST, V_MST, V_RQK, V_IDX, V_RWO = 1, 2, 3, 4, 5, 6, 7, 8, 9, 10, 11, 12, 13, 14, 15
V_ONES = 16
V_FMEM, V_FQK, V_FOX, V_FPART, V_VMST, V_VPLD, V_T = 20, 21, 22, 23, 24, 25, 26
V_WQ, V_PST, V_KKEEP = 32, 33, 34
V_RQ4 = 112
V_WL2, V_WL1 = 36, 37
V_POLL = 40
V_ACC = 56
V_R = 80
V_KXF, V_VXF, V_QF, V_KMF, V_S, V_P, V_VMF, V_O, V_X = 128, 160, 168, 184, 200, 212, 218, 222, 230
c1.V_T = V_T

B_MEM, B_QK, B_OX, B_PART = 56, 58, 96, 98
STEP_PART = 262144
D_PAR = 62
PART7 = 0x9000000
RING = 4
LDS_QK, LDS_VP, LDS_WOP = 0, 8192, 12288
A_QKV, A_WO = 0, 192

def load_weights(A):
    vG, vR, vT = V_T, V_T + 1, V_T + 2
    A(f'v_lshrrev_b32 {v(vT)}, 2, {v(V_L)}')
    A(f'v_and_b32 {v(vT+1)}, 3, {v(V_L)}')
    A(f'v_lshlrev_b32 {v(vT+1)}, 4, {v(vT+1)}')
    A(f'v_lshl_add_u32 {v(vG)}, {v(vT)}, 13, {v(vT+1)}')
    A(f'v_lshl_add_u32 {v(vT+2)}, {v(vT)}, 11, {v(vT+1)}')
    vGo = vT + 2
    A(f'v_lshrrev_b32 {v(vT)}, 2, {v(V_N)}')
    A(f'v_lshl_add_u32 {v(vT)}, {v(V_G)}, 3, {v(vT)}')
    A(f'v_lshlrev_b32 {v(vT)}, 6, {v(vT)}')
    A(f'v_and_b32 {v(vT+1)}, 3, {v(V_N)}')
    A(f'v_lshl_add_u32 {v(vR)}, {v(vT+1)}, 3, {v(vT)}')
    A(f's_lshl_b32 {s(S_T0)}, {s(S_W)}, 15')
    A(f'v_add_u32 {v(vR)}, {s(S_T0)}, {v(vR)}')
    PQ, PK, PV_, PO = P_MEM, P_QK, P_KM, P_OX
    A(f's_lshl_b32 {s(S_T0)}, {s(S_H)}, 8'); A(f's_lshl_b32 {s(S_T1)}, {s(S_J)}, 6'); A(f's_add_u32 {s(S_T0)}, {s(S_T0)}, {s(S_T1)}')
    A(f's_lshl_b32 {s(S_T1)}, {s(S_W)}, 21'); A(f's_add_u32 {s(S_T0)}, {s(S_T0)}, {s(S_T1)}')
    add64s(A, PQ, S_WQ, S_T0); add64s(A, PK, S_WK, S_T0); add64s(A, PV_, S_WV, S_T0)
    A(f's_lshl_b32 {s(S_T0)}, {s(S_X)}, 21'); A(f's_lshl_b32 {s(S_T1)}, {s(S_W)}, 19'); A(f's_add_u32 {s(S_T0)}, {s(S_T0)}, {s(S_T1)}')
    A(f's_lshl_b32 {s(S_T1)}, {s(S_I)}, 6'); A(f's_add_u32 {s(S_T0)}, {s(S_T0)}, {s(S_T1)}')
    add64s(A, PO, S_WO, S_T0)
    A(f's_lshl_b32 {s(S_T3)}, {s(S_W)}, 15')
    def read_pair(slot, aregs):
        for t in range(2):
            for q, off in enumerate((0, 256, 2048, 2304)):
                A(f'ds_read_b64_tr_b16 {a(aregs[t] + 2*q, 2)}, {v(vR)} offset:{slot * 4096 + off + 32 * t}')
    def dma_loop(base, voff, rowstride, nrows16, ldsoff):
        L = A.newlabel('wl')
        A(f's_mov_b32 {s(S_T2)}, 0')
        A.label(L)
        A(f's_add_u32 {s(S_T1)}, {s(S_T2)}, {s(S_I)}'); A(f's_and_b32 {s(S_T1)}, {s(S_T1)}, 15')
        A(f's_lshl_b32 m0, {s(S_T1)}, 10'); A(f's_add_u32 m0, m0, {s(S_T3)}')
        if ldsoff: A(f's_add_u32 m0, m0, {ldsoff}')
        A(f's_mul_i32 {s(S_T1)}, {s(S_T1)}, {16 * rowstride}')
        A(f's_add_u32 {s(S_T0)}, {s(base)}, {s(S_T1)}'); A(f's_addc_u32 {s(S_T0+1)}, {s(base+1)}, 0')
        A(f'global_load_lds_dwordx4 {v(voff)}, {s(S_T0,2)}')
        A(f's_add_u32 {s(S_T2)}, {s(S_T2)}, 1'); A(f's_cmp_lt_u32 {s(S_T2)}, 16'); A(f's_cbranch_scc1 {L}')
    for rnd, (b0, b1, vo1, st1) in enumerate(((PQ, PK, vG, 8192), (PV_, PO, vGo, 2048))):
        dma_loop(b0, vG, 8192, 16, 0)
        dma_loop(b1, vo1, st1, 16, 16384)
        if WLOG: A(f's_memrealtime s[{72+4*rnd}:{73+4*rnd}]')
        A('s_waitcnt vmcnt(0)')
        if WLOG: A(f's_memrealtime s[{74+4*rnd}:{75+4*rnd}]')
        for cch in range(4):
            m = 0 if rnd == 0 else 2
            read_pair(cch, [A_QKV + 8 * (6 * cch + 2 * m + t) for t in range(2)])
            if rnd == 0: read_pair(4 + cch, [A_QKV + 8 * (6 * cch + 2 + t) for t in range(2)])
            else: read_pair(4 + cch, [A_WO + 8 * (2 * cch + t) for t in range(2)])
        A('s_waitcnt lgkmcnt(0)')

def lane_setup(A):
    T = V_T
    A(f'v_and_b32 {v(V_L)}, 63, v0')
    A(f'v_lshrrev_b32 {v(T)}, 6, v0'); A('s_nop 0')
    A(f'v_readfirstlane_b32 {s(S_W)}, {v(T)}')
    A(f'v_and_b32 {v(V_N)}, 15, {v(V_L)}'); A(f'v_lshrrev_b32 {v(V_G)}, 4, {v(V_L)}'); A(f'v_lshlrev_b32 {v(V_L16)}, 4, {v(V_L)}')
    A(f's_lshr_b32 {s(S_T0)}, {s(S_I)}, 2'); A(f's_lshl_b32 {s(S_H)}, {s(S_X)}, 3'); A(f's_add_u32 {s(S_H)}, {s(S_H)}, {s(S_T0)}')
    A(f's_and_b32 {s(S_J)}, {s(S_I)}, 3')
    A(f's_mov_b32 {s(S_LO16)}, 0x00ff00ff'); A(f's_mov_b32 {s(S_LO16+1)}, 0x00ff00ff')
    A(f's_mov_b32 {s(S_HI32)}, 0'); A(f's_mov_b32 {s(S_HI32+1)}, -1')
    cc = 128 ** -0.5 * math.log2(math.e)
    A(f's_mov_b32 {s(S_SC)}, 0x{struct.unpack("<I", struct.pack("<f", cc))[0]:08x}')
    for k in range(4): A(f'v_mov_b32 {v(V_ONES+k)}, -1')
    A(f'v_mov_b32 {v(T)}, 0xeeee'); A(f'v_mov_b32 {v(T+1)}, 0x4444')
    A(f'v_cndmask_b32 {v(V_IDX)}, {v(T)}, {v(T+1)}, {s(S_LO16,2)}')
    A(f's_lshl_b32 {s(S_T0)}, {s(S_W)}, 12'); A(f'v_add_u32 {v(V_WQ)}, {s(S_T0)}, {v(V_L16)}')
    A(f's_lshl_b32 {s(S_T0)}, {s(S_W)}, 11'); A(f'v_add_u32 {v(V_WL2)}, {s(S_T0)}, {v(V_L16)}')
    A(f's_lshl_b32 {s(S_T0)}, {s(S_W)}, 10'); A(f'v_add_u32 {v(V_WL1)}, {s(S_T0)}, {v(V_L16)}')
    A(f'v_lshrrev_b32 {v(T)}, 3, {v(V_L)}'); A(f'v_and_b32 {v(T+1)}, 7, {v(V_L)}')
    A(f'v_lshrrev_b32 {v(T+2)}, 2, {v(T)}'); A(f'v_lshlrev_b32 {v(T+2)}, 8, {v(T+2)}')
    A(f'v_lshl_add_u32 {v(T+2)}, {v(T+1)}, 5, {v(T+2)}')
    A(f'v_and_b32 {v(T+3)}, 3, {v(T)}'); A(f'v_lshl_add_u32 {v(T+2)}, {v(T+3)}, 2, {v(T+2)}')
    A(f's_lshr_b32 {s(S_T0)}, {s(S_W)}, 1'); A(f's_lshl_b32 {s(S_T0)}, {s(S_T0)}, 10')
    A(f's_and_b32 {s(S_T1)}, {s(S_W)}, 1'); A(f's_lshl_b32 {s(S_T1)}, {s(S_T1)}, 9'); A(f's_add_u32 {s(S_T0)}, {s(S_T0)}, {s(S_T1)}')
    A(f'v_add_u32 {v(V_RQ4)}, {s(S_T0)}, {v(T+2)}')
    for k in range(1, 4): A(f'v_add_u32 {v(V_RQ4+k)}, 2048, {v(V_RQ4+k-1)}')
    A(f'v_lshrrev_b32 {v(T+2)}, 2, {v(T+1)}'); A(f'v_lshlrev_b32 {v(T+2)}, 7, {v(T+2)}')
    A(f'v_lshl_add_u32 {v(T+2)}, {v(T)}, 4, {v(T+2)}')
    A(f'v_and_b32 {v(T+3)}, 3, {v(T+1)}'); A(f'v_lshl_add_u32 {v(T+2)}, {v(T+3)}, 2, {v(T+2)}')
    A(f's_lshr_b32 {s(S_T0)}, {s(S_W)}, 1'); A(f's_lshl_b32 {s(S_T0)}, {s(S_T0)}, 11')
    A(f's_lshl_b32 {s(S_T1)}, {s(S_J)}, 9'); A(f's_add_u32 {s(S_T0)}, {s(S_T0)}, {s(S_T1)}')
    A(f's_and_b32 {s(S_T1)}, {s(S_W)}, 1'); A(f's_lshl_b32 {s(S_T1)}, {s(S_T1)}, 8'); A(f's_add_u32 {s(S_T0)}, {s(S_T0)}, {s(S_T1)}')
    A(f'v_add_u32 {v(V_QKST)}, {s(S_T0)}, {v(T+2)}')
    A(f'v_and_b32 {v(T)}, 7, {v(V_L)}'); A(f'v_lshlrev_b32 {v(T)}, 4, {v(T)}'); A(f'v_lshl_add_u32 {v(V_QLD)}, {v(V_G)}, 7, {v(T)}')
    A(f's_lshl_b32 {s(S_T0)}, {s(S_H)}, 13')
    A(f'v_add_u32 {v(V_KX0)}, {s(S_T0)}, {v(V_L16)}'); A(f'v_add_u32 {v(V_KX1)}, 4096, {v(V_KX0)}')
    A(f's_lshl_b32 {s(S_T1)}, {s(S_J)}, 11'); A(f's_add_u32 {s(S_T0)}, {s(S_T0)}, {s(S_T1)}')
    A(f'v_add_u32 {v(V_VX0)}, {s(S_T0)}, {v(V_L16)}')
    A(f'v_lshrrev_b32 {v(T)}, 3, {v(V_N)}'); A(f'v_lshlrev_b32 {v(T)}, 4, {v(T)}')
    A(f'v_and_b32 {v(T+1)}, 7, {v(V_N)}'); A(f'v_add_u32 {v(T)}, {v(T)}, {v(T+1)}')
    A(f'v_lshlrev_b32 {v(T)}, 4, {v(T)}'); A(f'v_lshl_add_u32 {v(T)}, {v(V_G)}, 2, {v(T)}')
    A(f's_lshl_b32 {s(S_T0)}, {s(S_I)}, 9')
    A(f'v_add_u32 {v(V_OST)}, {s(S_T0)}, {v(T)}')
    A(f'v_lshrrev_b32 {v(T)}, 5, {v(V_L)}'); A(f'v_lshlrev_b32 {v(T)}, 4, {v(T)}')
    A(f'v_bfe_u32 {v(T+1)}, {v(V_L)}, 3, 1'); A(f'v_lshl_add_u32 {v(T)}, {v(T+1)}, 2, {v(T)}')
    A(f'v_bfe_u32 {v(T+1)}, {v(V_L)}, 1, 2'); A(f'v_add_u32 {v(T)}, {v(T)}, {v(T+1)}')
    A(f'v_and_b32 {v(T+1)}, 1, {v(V_L)}'); A(f'v_lshl_add_u32 {v(T)}, {v(T+1)}, 3, {v(T)}')
    A(f'v_lshlrev_b32 {v(T)}, 4, {v(T)}')
    A(f'v_bfe_u32 {v(T+1)}, {v(V_L)}, 4, 1'); A(f'v_lshl_add_u32 {v(T)}, {v(T+1)}, 3, {v(T)}')
    A(f'v_add_u32 {v(V_MST)}, {s(S_T0)}, {v(T)}')
    A(f'v_and_b32 {v(T)}, 1, {v(V_L)}')
    A(f'v_bfe_u32 {v(T+1)}, {v(V_L)}, 1, 1'); A(f'v_lshl_add_u32 {v(T)}, {v(T+1)}, 2, {v(T)}')
    A(f'v_bfe_u32 {v(T+1)}, {v(V_L)}, 2, 1'); A(f'v_lshl_add_u32 {v(T)}, {v(T+1)}, 1, {v(T)}')
    A(f'v_lshrrev_b32 {v(T+1)}, 5, {v(V_L)}'); A(f'v_lshl_add_u32 {v(T)}, {v(T+1)}, 4, {v(T)}')
    A(f'v_lshlrev_b32 {v(T)}, 4, {v(T)}')
    A(f'v_bfe_u32 {v(T+1)}, {v(V_L)}, 3, 2'); A(f'v_lshl_add_u32 {v(T)}, {v(T+1)}, 2, {v(T)}')
    A(f's_lshr_b32 {s(S_T0)}, {s(S_W)}, 1'); A(f's_lshl_b32 {s(S_T0)}, {s(S_T0)}, 9')
    A(f's_and_b32 {s(S_T1)}, {s(S_W)}, 1'); A(f's_lshl_b32 {s(S_T1)}, {s(S_T1)}, 7'); A(f's_add_u32 {s(S_T0)}, {s(S_T0)}, {s(S_T1)}')
    A(f'v_add_u32 {v(V_RWO)}, {s(S_T0)}, {v(T)}')
    A(f's_lshl_b32 {s(S_T0)}, {s(S_X)}, 10'); A(f's_lshl_b32 {s(S_T1)}, {s(S_W)}, 8'); A(f's_add_u32 {s(S_T0)}, {s(S_T0)}, {s(S_T1)}')
    A(f'v_lshlrev_b32 {v(T)}, 2, {v(V_L)}'); A(f'v_add_u32 {v(V_PST)}, {s(S_T0)}, {v(T)}')
    A(f's_lshl_b32 {s(S_T0)}, {s(S_I)}, 9')
    A(f'v_add_u32 {v(V_FMEM)}, {s(S_T0)}, {v(V_L16)}'); A(f'v_mov_b32 {v(V_FOX)}, {v(V_FMEM)}')
    A(f'v_and_b32 {v(T)}, 31, {v(V_L)}'); A(f'v_lshlrev_b32 {v(T)}, 4, {v(T)}')
    A(f'v_lshrrev_b32 {v(T+1)}, 5, {v(V_L)}'); A(f'v_lshl_add_u32 {v(T)}, {v(T+1)}, 11, {v(T)}')
    A(f's_lshl_b32 {s(S_T1)}, {s(S_J)}, 9'); A(f'v_add_u32 {v(V_FQK)}, {s(S_T1)}, {v(T)}')
    A(f's_lshl_b32 {s(S_T1)}, {s(S_X)}, 10'); A(f'v_add_u32 {v(V_FPART)}, {s(S_T1)}, {v(V_L16)}')
    A(f'v_and_b32 {v(T)}, 31, {v(V_L)}'); A(f'v_lshlrev_b32 {v(T)}, 3, {v(T)}')
    A(f's_lshl_b32 {s(S_T1)}, {s(S_J)}, 9'); A(f'v_add_u32 {v(V_VMST)}, {s(S_T1)}, {v(T)}')
    A(f'v_and_b32 {v(T)}, 31, {v(V_L)}'); A(f'v_lshlrev_b32 {v(V_VPLD)}, 4, {v(T)}')

def slot_ptr(A, dst, base, ahead, size):
    A(f's_add_u32 {s(S_T2)}, {s(S_STEP)}, {ahead}'); A(f's_and_b32 {s(S_T2)}, {s(S_T2)}, {RING-1}')
    A(f's_mul_i32 {s(S_T2)}, {s(S_T2)}, {size}')
    add64s(A, dst, base, S_T2)

def fill_slots(A, ahead, touch=False, mode='store'):
    T = S_T0
    def st(vo, flags=''):
        if mode == 'store': A(f'global_store_dwordx4 {v(vo)}, {v(V_ONES,4)}, {s(T,2)}{flags}')
        else: A(f'global_load_dwordx4 {v(V_POLL,4)}, {v(vo)}, {s(T,2)} sc1')
    slot_ptr(A, T, B_QK, ahead, STEP_QK); st(V_FQK)
    if mode == 'store':
        slot_ptr(A, T, B_PART, ahead, STEP_PART); st(V_FPART, ' sc1')
    A('s_mov_b32 exec_hi, 0')
    slot_ptr(A, T, B_MEM, ahead + 1, STEP_MEM); st(V_FMEM)
    slot_ptr(A, T, B_OX, ahead, STEP_OX); st(V_FOX)
    A('s_mov_b64 exec, -1')

def cur_ptrs(A):
    A(f's_and_b32 {s(S_T3)}, {s(S_STEP)}, {RING-1}')
    for p, b, sz in ((P_MEM, B_MEM, STEP_MEM), (P_QK, B_QK, STEP_QK), (P_OX, B_OX, STEP_OX), (P_PART, B_PART, STEP_PART)):
        A(f's_mul_i32 {s(S_T2)}, {s(S_T3)}, {sz}'); add64s(A, p, b, S_T2)

def advance_ptrs(A):
    for p in (P_KM, P_VM): add64(A, p, p, STEP_KM)

def prefetch_kv(A):
    for t, vo in ((0, V_KX0), (1, V_KX1)):
        for cc in range(4):
            A(f'global_load_dwordx4 {v(V_KXF + 16*t + 4*cc, 4)}, {v(vo)}, {s(P_KX,2)} offset:{1024*cc} sc1')
    for et in range(2):
        A(f'global_load_dwordx4 {v(V_VXF + 4*et, 4)}, {v(V_VX0)}, {s(P_VX,2)} offset:{1024*et} sc1')

HOOK_W2 = None
HOOK_PREBAR = None
WLOG = False
RS = dict(rs=0, rd=0, rq=0, sd=0, sq=0, gap=0)
def scalar_prefetch(A, which):
    L = A.newlabel('nsp')
    A(f's_cmp_ge_u32 {s(S_STEP)}, 62'); A(f's_cbranch_scc1 {L}')
    A(f's_add_u32 {s(S_T2)}, {s(S_STEP)}, 2'); A(f's_lshl_b32 {s(S_T2)}, {s(S_T2)}, 18')
    A(f's_lshl_b32 {s(S_T3)}, {s(S_H)}, 13'); A(f's_add_u32 {s(S_T2)}, {s(S_T2)}, {s(S_T3)}')
    A(f's_lshl_b32 {s(S_T3)}, {s(S_J)}, 11'); A(f's_add_u32 {s(S_T2)}, {s(S_T2)}, {s(S_T3)}')
    A(f's_add_u32 {s(S_T2)}, {s(S_T2)}, {KB if which == 0 else VT}')
    add64s(A, S_T0, S_WS, S_T2)
    for r in range(32): A(f's_load_dword s55, {s(S_T0,2)}, {r*64}')
    A.label(L)

def chunk_pipeline(A, ptr, mf, EXIT, extra_first=(), nochk=False):
    ld = lambda cc: f'global_load_dwordx4 {v(V_POLL+4*cc,4)}, {v(V_WQ)}, {s(ptr,2)} offset:{1024*cc} sc1'
    CK = V_T
    def chk_valu(cc):
        r = V_POLL + 4 * cc
        return [f'v_max3_u32 {v(CK)}, {v(r)}, {v(r+1)}, {v(r+2)}', f'v_max_u32 {v(CK)}, {v(CK)}, {v(r+3)}', f'v_cmp_eq_u32 vcc, -1, {v(CK)}']
    R = [A.newlabel('rt') for _ in range(4)]
    B = [A.newlabel('bd') for _ in range(4)]
    DONE = A.newlabel('cdone')
    A(f's_mov_b32 {s(S_RETRY)}, 0')
    ex = list(extra_first)
    gap = RS['gap']
    for cc in range(4):
        A(ld(cc))
        if cc < 3:
            n = 0
            while ex and n < gap: A(ex.pop(0)); n += 1
            while n < gap: A('v_nop'); n += 1
    for x in ex: A(x)
    A('s_waitcnt vmcnt(3)')
    for x in chk_valu(0): A(x)
    if not nochk: A(f's_cbranch_vccnz {R[0]}')
    for cc in range(4):
        A.label(B[cc])
        m = mf(cc)
        if cc < 3:
            A(m[0])
            A(f's_waitcnt vmcnt({2-cc})')
            ck = chk_valu(cc + 1)
            rest = m[1:]
            for k, x in enumerate(ck):
                A(x)
                if k < len(rest): A(rest[k])
            for x in rest[len(ck):]: A(x)
            if not nochk: A(f's_cbranch_vccnz {R[cc+1]}')
        else:
            for x in m: A(x)
    A(f's_branch {DONE}')
    for cc in range(4):
        A.label(R[cc])
        A(f's_add_u32 {s(S_RETRY)}, {s(S_RETRY)}, 1')
        A(f's_cmp_ge_u32 {s(S_RETRY)}, {POLL_LIMIT}'); A(f's_cbranch_scc1 {EXIT}')
        for k in range(cc, 4): A(ld(k))
        A(f's_waitcnt vmcnt({3-cc})')
        for x in chk_valu(cc): A(x)
        A(f's_cbranch_vccnz {R[cc]}')
        A(f's_branch {B[cc]}')
    A.label(DONE)

def poll2(A, loads, regs, tmp, exit_label, first_sleep, retry_sleep):
    L = A.newlabel('poll'); D = A.newlabel('polld')
    A(f's_mov_b32 {s(S_RETRY)}, 0')
    if first_sleep: A(f's_sleep {first_sleep}')
    A.label(L)
    for ld in loads: A(ld)
    A('s_waitcnt vmcnt(0)')
    r = list(regs)
    A(f'v_max3_u32 {v(tmp)}, {v(r[0])}, {v(r[1])}, {v(r[2])}')
    k = 3
    while k + 1 < len(r):
        A(f'v_max3_u32 {v(tmp)}, {v(tmp)}, {v(r[k])}, {v(r[k+1])}'); k += 2
    if k < len(r): A(f'v_max_u32 {v(tmp)}, {v(tmp)}, {v(r[k])}')
    A(f'v_cmp_eq_u32 vcc, -1, {v(tmp)}')
    A(f's_cbranch_vccz {D}')
    if retry_sleep: A(f's_sleep {retry_sleep}')
    A(f's_add_u32 {s(S_RETRY)}, {s(S_RETRY)}, 1')
    A(f's_cmp_lt_u32 {s(S_RETRY)}, {POLL_LIMIT}')
    A(f's_cbranch_scc1 {L}')
    A(f's_branch {exit_label}')
    A.label(D)

def step_body(A, EXIT, timing, sleep_a=0, sleep_c=0, rs=0, rd=0, rq=0, sd=0, sq=0, nopf=0, nofill=0, nokm=0, spf=0, gap=8, na=0, nc=0, nq=0, nd=0, stat=0):
    RS.update(rs=rs, rd=rd, rq=rq, sd=sd, sq=sq, gap=gap)
    W_ATT = 3
    SM = 'v_smfmac_f32_16x16x64_bf16'
    zero = [f'v_mov_b32 {v(V_ACC+k)}, 0' for k in range(24)]
    if sleep_a: A(f's_sleep {sleep_a}')
    chunk_pipeline(A, P_MEM, lambda cc: [f'{SM} {v(V_ACC+4*t,4)}, {v(V_POLL+4*cc,4)}, {a(A_QKV+8*(6*cc+t),8)}, {v(V_IDX)}' for t in range(4)], EXIT, zero, na)
    if stat: A(f's_add_u32 s60, s60, {s(S_RETRY)}')
    stamp(A, 0, timing)
    vs = [f'{SM} {v(V_ACC+16+4*t,4)}, {v(V_POLL+4*cc,4)}, {a(A_QKV+8*(6*cc+4+t),8)}, {v(V_IDX)}' for cc in range(4) for t in range(2)]
    Q0 = V_ACC
    A(vs[0]); A(vs[1])
    for i in range(4): A(f'v_permlane32_swap_b32 {v(Q0+i)}, {v(Q0+4+i)}')
    A(vs[2])
    for i in (0, 2): A(f'v_pk_add_f32 {v(Q0+i,2)}, {v(Q0+i,2)}, {v(Q0+4+i,2)}')
    A(f'v_permlane32_swap_b32 {v(Q0+8)}, {v(Q0+12)}'); A(f'v_permlane32_swap_b32 {v(Q0+9)}, {v(Q0+13)}')
    A(f'ds_write_b128 {v(V_WL2)}, {v(Q0,4)} offset:{LDS_QK}')
    A(vs[3])
    A(f'v_permlane32_swap_b32 {v(Q0+10)}, {v(Q0+14)}'); A(f'v_permlane32_swap_b32 {v(Q0+11)}, {v(Q0+15)}')
    for i in (0, 2): A(f'v_pk_add_f32 {v(Q0+8+i,2)}, {v(Q0+8+i,2)}, {v(Q0+12+i,2)}')
    A(f'ds_write_b128 {v(V_WL2)}, {v(Q0+8,4)} offset:{LDS_QK + 1024}')
    A(vs[4])
    A('s_waitcnt lgkmcnt(0)')
    A('s_barrier')
    stamp(A, 8, timing)
    R = V_R
    for ws in range(4): A(f'ds_read2_b32 {v(R+2*ws,2)}, {v(V_RQ4+ws)} offset0:{LDS_QK//4} offset1:{LDS_QK//4+4}')
    A(vs[5]); A(vs[6]); A(vs[7])
    A('s_waitcnt lgkmcnt(0)')
    A(f'v_pk_add_f32 {v(R,2)}, {v(R,2)}, {v(R+2,2)}'); A(f'v_pk_add_f32 {v(R+4,2)}, {v(R+4,2)}, {v(R+6,2)}')
    A(f'v_pk_add_f32 {v(R,2)}, {v(R,2)}, {v(R+4,2)}')
    A(f'v_cvt_pk_bf16_f32 {v(V_KKEEP)}, {v(R)}, {v(R+1)}')
    A(f'global_store_dword {v(V_QKST)}, {v(V_KKEEP)}, {s(P_QK,2)}')
    stamp(A, 1, timing)
    for i in range(4): A(f'v_permlane32_swap_b32 {v(V_ACC+16+i)}, {v(V_ACC+20+i)}')
    for i in (0, 2): A(f'v_pk_add_f32 {v(V_ACC+16+i,2)}, {v(V_ACC+16+i,2)}, {v(V_ACC+20+i,2)}')
    A(f'ds_write_b128 {v(V_WL1)}, {v(V_ACC+16,4)} offset:{LDS_VP}')
    A('s_waitcnt lgkmcnt(0)')
    A('s_barrier')
    LB = A.newlabel('noatt')
    A(f's_cmp_lg_u32 {s(S_W)}, {W_ATT}'); A(f's_cbranch_scc1 {LB}')
    X = V_X
    loads = [f'global_load_dwordx4 {v(V_QF+4*cc,4)}, {v(V_QLD)}, {s(P_QK,2)} offset:{512*cc} sc1' for cc in range(4)]
    loads += [f'global_load_dwordx4 {v(V_KMF+4*cc,4)}, {v(V_QLD)}, {s(P_QK,2)} offset:{2048+512*cc} sc1' for cc in range(4)]
    for et in range(2):
        for ws in range(4):
            A(f'ds_read_b128 {v(R + 16*et + 4*ws, 4)}, {v(V_VPLD)} offset:{LDS_VP + ws*1024 + et*512}')
    A('s_waitcnt lgkmcnt(0)')
    if sq: A(f's_sleep {sq}')
    for ld in loads: A(ld)
    for et in range(2):
        b = R + 16 * et
        for i in (0, 2):
            A(f'v_pk_add_f32 {v(b+i,2)}, {v(b+i,2)}, {v(b+4+i,2)}'); A(f'v_pk_add_f32 {v(b+8+i,2)}, {v(b+8+i,2)}, {v(b+12+i,2)}')
        for i in (0, 2): A(f'v_pk_add_f32 {v(b+i,2)}, {v(b+i,2)}, {v(b+8+i,2)}')
        A(f'v_cvt_pk_bf16_f32 {v(V_VMF+2*et)}, {v(b)}, {v(b+1)}')
        A(f'v_cvt_pk_bf16_f32 {v(V_VMF+2*et+1)}, {v(b+2)}, {v(b+3)}')
    LQ, LQD = A.newlabel('qp'), A.newlabel('qpd')
    A(f's_mov_b32 {s(S_RETRY)}, 0')
    A.label(LQ)
    rr = list(range(V_QF, V_QF + 32))
    CH = X + 2
    chk = [f'v_max3_u32 {v(CH)}, {v(rr[0])}, {v(rr[1])}, {v(rr[2])}', f'v_max3_u32 {v(CH+1)}, {v(rr[3])}, {v(rr[4])}, {v(rr[5])}']
    k = 6
    while k + 3 < 16:
        chk += [f'v_max3_u32 {v(CH)}, {v(CH)}, {v(rr[k])}, {v(rr[k+1])}', f'v_max3_u32 {v(CH+1)}, {v(CH+1)}, {v(rr[k+2])}, {v(rr[k+3])}']; k += 4
    chk += [f'v_max3_u32 {v(CH)}, {v(CH)}, {v(rr[14])}, {v(rr[15])}']
    chk2 = []
    k = 16
    while k + 3 < 32:
        chk2 += [f'v_max3_u32 {v(CH)}, {v(CH)}, {v(rr[k])}, {v(rr[k+1])}', f'v_max3_u32 {v(CH+1)}, {v(CH+1)}, {v(rr[k+2])}, {v(rr[k+3])}']; k += 4
    chk2 += [f'v_max_u32 {v(CH)}, {v(CH)}, {v(CH+1)}', f'v_cmp_eq_u32 vcc, -1, {v(CH)}']
    A('s_waitcnt vmcnt(4)')
    mfl = []
    for t, base in ((0, V_KXF), (1, V_KXF + 16), (2, V_KMF)):
        for cc in range(4):
            C = '0' if cc == 0 else v(V_S + 4*t, 4)
            mfl.append(f'v_mfma_f32_16x16x32_bf16 {v(V_S+4*t,4)}, {v(base+4*cc,4)}, {v(V_QF+4*cc,4)}, {C}')
    fill = list(chk)
    for k in range(8):
        A(mfl[k])
        if fill: A(fill.pop(0))
    A('s_waitcnt vmcnt(0)')
    fill = fill + chk2
    extra = {9: [f'v_max3_f32 {v(X)}, {v(V_S)}, {v(V_S+1)}, {v(V_S+2)}'], 10: [f'v_mov_b32 {v(X+1)}, 0xff800000', f'v_max3_f32 {v(X)}, {v(X)}, {v(V_S+3)}, {v(V_S+4)}']}
    for k in range(8, 12):
        A(mfl[k])
        for _ in range(3):
            if fill: A(fill.pop(0))
        for x in extra.get(k, []): A(x)
    for x in fill: A(x)
    A(f's_cbranch_vccz {LQD}') if not nq else A(f's_branch {LQD}')
    A(f's_add_u32 {s(S_RETRY)}, {s(S_RETRY)}, 1')
    A(f's_cmp_ge_u32 {s(S_RETRY)}, {POLL_LIMIT}'); A(f's_cbranch_scc1 {EXIT}')
    for ld in loads: A(ld)
    A(f's_branch {LQ}')
    A.label(LQD)
    if stat: A(f's_add_u32 s61, s61, {s(S_RETRY)}')
    stamp(A, 2, timing)
    A(f'v_max3_f32 {v(X)}, {v(X)}, {v(V_S+5)}, {v(V_S+6)}')
    S = V_S
    A(f'v_max_f32 {v(X)}, {v(X)}, {v(S+7)}')
    for i in range(4): A(f'v_cndmask_b32 {v(S+8+i)}, {v(S+8+i)}, {v(X+1)}, {s(S_HI32,2)}')
    A(f'v_max3_f32 {v(X)}, {v(X)}, {v(S+8)}, {v(S+9)}')
    A(f'v_max3_f32 {v(X)}, {v(X)}, {v(S+10)}, {v(S+11)}')
    for sw in ('v_permlane16_swap_b32', 'v_permlane32_swap_b32'):
        A(f'v_mov_b32 {v(X+1)}, {v(X)}'); A(f'{sw} {v(X)}, {v(X+1)}'); A(f'v_max_f32 {v(X)}, {v(X)}, {v(X+1)}')
    A(f'v_mul_f32 {v(X)}, {s(S_SC)}, {v(X)}')
    for i in range(12): A(f'v_fma_f32 {v(S+i)}, {v(S+i)}, {s(S_SC)}, -{v(X)}')
    for i in range(12): A(f'v_exp_f32 {v(S+i)}, {v(S+i)}')
    for i in range(6): A(f'v_cvt_pk_bf16_f32 {v(V_P+i)}, {v(S+2*i)}, {v(S+2*i+1)}')
    sums = [f'v_add_f32 {v(S+i)}, {v(S+i)}, {v(S+6+i)}' for i in range(6)] + [f'v_add_f32 {v(S+i)}, {v(S+i)}, {v(S+3+i)}' for i in range(3)]
    sums += [f'v_add_f32 {v(S)}, {v(S)}, {v(S+1)}', f'v_add_f32 {v(X)}, {v(S)}, {v(S+2)}']
    A(f'v_mfma_f32_16x16x16_bf16 {v(V_O,4)}, {v(V_VMF,2)}, {v(V_P+4,2)}, 0')
    for x in sums[:3]: A(x)
    A(f'v_mfma_f32_16x16x16_bf16 {v(V_O+4,4)}, {v(V_VMF+2,2)}, {v(V_P+4,2)}, 0')
    for x in sums[3:9]: A(x)
    A(f'v_mfma_f32_16x16x32_bf16 {v(V_O,4)}, {v(V_VXF,4)}, {v(V_P,4)}, {v(V_O,4)}')
    for x in sums[9:]: A(x)
    A(f'v_mfma_f32_16x16x32_bf16 {v(V_O+4,4)}, {v(V_VXF+4,4)}, {v(V_P,4)}, {v(V_O+4,4)}')
    for sw in ('v_permlane16_swap_b32', 'v_permlane32_swap_b32'):
        A(f'v_mov_b32 {v(X+1)}, {v(X)}'); A(f'{sw} {v(X)}, {v(X+1)}'); A(f'v_add_f32 {v(X)}, {v(X)}, {v(X+1)}')
    A(f'v_rcp_f32 {v(X)}, {v(X)}')
    for i in range(4): A(f'v_cndmask_b32 {v(X+2+i)}, {v(V_O+4+i)}, {v(V_O+i)}, {s(S_LO16,2)}')
    for i in range(4): A(f'v_mul_f32 {v(X+2+i)}, {v(X+2+i)}, {v(X)}')
    A(f'v_cvt_pk_bf16_f32 {v(X+6)}, {v(X+2)}, {v(X+3)}'); A(f'v_cvt_pk_bf16_f32 {v(X+7)}, {v(X+4)}, {v(X+5)}')
    A(f'global_store_dword {v(V_OST)}, {v(X+6)}, {s(P_OX,2)}')
    A(f'global_store_dword {v(V_OST)}, {v(X+7)}, {s(P_OX,2)} offset:128')
    stamp(A, 3, timing)
    A.label(LB)
    A('s_barrier')
    if sleep_c: A(f's_sleep {sleep_c}')
    zero = [f'v_mov_b32 {v(V_ACC+k)}, 0' for k in range(8)]
    chunk_pipeline(A, P_OX, lambda cc: [f'{SM} {v(V_ACC+4*t,4)}, {v(V_POLL+4*cc,4)}, {a(A_WO+8*(2*cc+t),8)}, {v(V_IDX)}' for t in range(2)], EXIT, zero, nc)
    if stat: A(f's_add_u32 s62, s62, {s(S_RETRY)}')
    stamp(A, 4, timing)
    for i in range(4): A(f'v_permlane32_swap_b32 {v(V_ACC+i)}, {v(V_ACC+4+i)}')
    for i in (0, 2): A(f'v_pk_add_f32 {v(V_ACC+i,2)}, {v(V_ACC+i,2)}, {v(V_ACC+4+i,2)}')
    A(f'ds_write_b128 {v(V_WL1)}, {v(V_ACC,4)} offset:{LDS_WOP}')
    A('s_waitcnt lgkmcnt(0)')
    A('s_barrier')
    for ws in range(4): A(f'ds_read_b32 {v(R+ws)}, {v(V_RWO)} offset:{LDS_WOP + 1024*ws}')
    A('s_waitcnt lgkmcnt(0)')
    A(f'v_pk_add_f32 {v(R,2)}, {v(R,2)}, {v(R+2,2)}')
    A(f'v_add_f32 {v(R)}, {v(R)}, {v(R+1)}')
    A(f'global_store_dword {v(V_PST)}, {v(R)}, {s(P_PART,2)} sc1')
    stamp(A, 5, timing)
    LD, LE, LF, LG = A.newlabel('notw0'), A.newlabel('endD'), A.newlabel('notw1'), A.newlabel('notw3')
    A(f's_cmp_lg_u32 {s(S_W)}, 0'); A(f's_cbranch_scc1 {LD}')
    loads = [f'global_load_dwordx4 {v(V_POLL+4*k,4)}, {v(V_L16)}, {s(P_PART,2)} offset:{1024*k} sc1' for k in range(4)]
    if nd:
        if sd: A(f's_sleep {sd}')
        for ld in loads: A(ld)
        A('s_waitcnt vmcnt(0)')
    else:
        poll2(A, loads, range(V_POLL, V_POLL + 16), V_T, EXIT, sd, rd)
    if stat: A(f's_add_u32 s63, s63, {s(S_RETRY)}')
    stamp(A, 6, timing)
    Q = V_POLL
    for i in (0, 2):
        A(f'v_pk_add_f32 {v(Q+i,2)}, {v(Q+i,2)}, {v(Q+4+i,2)}'); A(f'v_pk_add_f32 {v(Q+8+i,2)}, {v(Q+8+i,2)}, {v(Q+12+i,2)}')
    for i in (0, 2): A(f'v_pk_add_f32 {v(Q+i,2)}, {v(Q+i,2)}, {v(Q+8+i,2)}')
    A(f'v_cvt_pk_bf16_f32 {v(R)}, {v(Q)}, {v(Q+1)}'); A(f'v_cvt_pk_bf16_f32 {v(R+1)}, {v(Q+2)}, {v(Q+3)}')
    slot_ptr(A, S_T0, B_MEM, 1, STEP_MEM)
    A(f'global_store_dwordx2 {v(V_MST)}, {v(R,2)}, {s(S_T0,2)}')
    stamp(A, 7, timing)
    A(f's_branch {LE}')
    A.label(LD)
    A('s_sleep 2')
    A(f's_cmp_lg_u32 {s(S_W)}, 1'); A(f's_cbranch_scc1 {LF}')
    fill_slots(A, 2)
    if spf: scalar_prefetch(A, 0)
    A(f's_branch {LE}')
    A.label(LF)
    if HOOK_W2 is not None:
        LH = A.newlabel('nh2')
        A(f's_cmp_lg_u32 {s(S_W)}, 2'); A(f's_cbranch_scc1 {LH}')
        HOOK_W2(A)
        A.label(LH)
    if spf:
        L2_ = A.newlabel('nw2')
        A(f's_cmp_lg_u32 {s(S_W)}, 2'); A(f's_cbranch_scc1 {L2_}')
        scalar_prefetch(A, 1)
        A.label(L2_)
    if not nokm: A(f'global_store_dword {v(V_QKST)}, {v(V_KKEEP)}, {s(P_KM,2)} offset:-2048 sc1')
    A(f's_cmp_lg_u32 {s(S_W)}, {W_ATT}'); A(f's_cbranch_scc1 {LE}')
    A('s_mov_b32 exec_hi, 0')
    for et in range(2):
        if not nokm: A(f'global_store_dwordx2 {v(V_VMST)}, {v(V_VMF+2*et,2)}, {s(P_VM,2)} offset:{256*et} sc1')
    A('s_mov_b64 exec, -1')
    A(f's_cmp_ge_u32 {s(S_STEP)}, 63'); A(f's_cbranch_scc1 {LE}')
    add64(A, P_KX, P_KX, 262144); add64(A, P_VX, P_VX, 262144)
    if not nopf: prefetch_kv(A)
    A.label(LE)
    A('s_barrier')
    stamp(A, 9, timing)

def calibrate(A):
    L = A.newlabel('cal')
    A(f's_cmp_ge_u32 {s(S_I)}, 8'); A(f's_cbranch_scc1 {L}')
    A(f's_cmp_lg_u32 {s(S_W)}, 2'); A(f's_cbranch_scc1 {L}')
    T = V_R
    A('s_mov_b64 exec, 1')
    A(f's_lshl_b32 {s(S_T0)}, {s(S_X)}, 3'); A(f's_add_u32 {s(S_T0)}, {s(S_T0)}, {s(S_I)}'); A(f's_lshl_b32 {s(S_T0)}, {s(S_T0)}, 14')
    A(f's_add_u32 {s(S_T0)}, {s(S_T0)}, {PART7 + 0x100000}')
    A(f'v_mov_b32 {v(T)}, {s(S_T0)}'); A(f'v_add_u32 {v(T+2)}, 8192, {v(T)}')
    A('s_mov_b32 s94, -1'); A('s_mov_b32 s95, -1')
    LL = A.newlabel('call')
    A(f's_mov_b32 {s(S_T2)}, 3')
    A.label(LL)
    for p in range(2):
        vr = T + 2 * p
        A(f'global_store_dword {v(vr)}, {v(vr)}, {s(S_WS,2)} sc1')
        A('s_waitcnt vmcnt(0)')
        A('s_memtime s[90:91]'); A('s_waitcnt lgkmcnt(0)')
        A(f'global_load_dword {v(T+4)}, {v(vr)}, {s(S_WS,2)} sc1')
        A('s_waitcnt vmcnt(0)')
        A('s_memtime s[92:93]'); A('s_waitcnt lgkmcnt(0)')
        A('s_sub_u32 s92, s92, s90'); A(f's_min_u32 {s(94+p)}, {s(94+p)}, s92')
    A(f's_sub_u32 {s(S_T2)}, {s(S_T2)}, 1'); A(f's_cmp_lg_u32 {s(S_T2)}, 0'); A(f's_cbranch_scc1 {LL}')
    A('s_cmp_lt_u32 s95, s94'); A(f's_cselect_b32 {s(S_T0)}, 1, 0x100') if False else None
    A(f's_mov_b32 {s(S_T0)}, 0x100'); A('s_cmp_lt_u32 s95, s94'); A(f's_cselect_b32 {s(S_T0)}, 1, {s(S_T0)}')
    A(f'v_mov_b32 {v(T)}, {4*D_PAR}'); A(f'v_mov_b32 {v(T+1)}, {s(S_T0)}')
    A(f'global_atomic_add {v(T)}, {v(T+1)}, {s(S_DBG,2)}')
    A('s_waitcnt vmcnt(0)')
    A('s_mov_b64 exec, -1')
    A.label(L)

def part_base(A):
    A(f'v_mov_b32 {v(V_T)}, {4*D_PAR}')
    A(f'global_load_dword {v(V_T+1)}, {v(V_T)}, {s(S_DBG,2)} sc1')
    A('s_waitcnt vmcnt(0)')
    A(f'v_readfirstlane_b32 {s(S_T1)}, {v(V_T+1)}')
    A(f's_and_b32 {s(S_T2)}, {s(S_T1)}, 0xff'); A(f's_lshr_b32 {s(S_T1)}, {s(S_T1)}, 8')
    A(f's_cmp_gt_u32 {s(S_T2)}, {s(S_T1)}'); A(f's_cselect_b32 {s(S_T1)}, 8192, 0')
    A(f's_add_u32 {s(B_PART)}, {s(B_PART)}, {s(S_T1)}'); A(f's_addc_u32 {s(B_PART+1)}, {s(B_PART+1)}, 0')

def publish_mem0(A):
    T = V_R
    A(f'v_bfe_u32 {v(T)}, {v(V_L)}, 3, 1'); A(f'v_lshlrev_b32 {v(T)}, 2, {v(T)}')
    A(f'v_bfe_u32 {v(T+1)}, {v(V_L)}, 1, 2'); A(f'v_add_u32 {v(T)}, {v(T)}, {v(T+1)}')
    A(f'v_lshlrev_b32 {v(T)}, 11, {v(T)}')
    A(f'v_lshrrev_b32 {v(T+1)}, 5, {v(V_L)}'); A(f'v_lshl_add_u32 {v(T)}, {v(T+1)}, 5, {v(T)}')
    A(f'v_bfe_u32 {v(T+1)}, {v(V_L)}, 4, 1'); A(f'v_lshl_add_u32 {v(T)}, {v(T+1)}, 4, {v(T)}')
    A(f'v_and_b32 {v(T+1)}, 1, {v(V_L)}'); A(f'v_lshl_add_u32 {v(T)}, {v(T+1)}, 2, {v(T)}')
    A(f's_lshl_b32 {s(S_T0)}, {s(S_I)}, 6')
    A(f'v_add_u32 {v(T)}, {s(S_T0)}, {v(T)}')
    A(f'global_load_dword {v(T+2)}, {v(T)}, {s(S_MEM0,2)}')
    A(f'global_load_dword {v(T+3)}, {v(T)}, {s(S_MEM0,2)} offset:8')
    A('s_waitcnt vmcnt(0)')
    A(f'global_store_dwordx2 {v(V_MST)}, {v(T+2,2)}, {s(P_MEM,2)}')

def chain_main(A, EXIT, timing, nbar, **kw):
    lane_setup(A)
    load_weights(A)
    calibrate(A)
    A('s_memrealtime s[86:87]')
    set_ptrs(A)
    for p, b in ((P_MEM, B_MEM), (P_QK, B_QK), (P_OX, B_OX), (P_PART, B_PART)): A(f's_mov_b64 {s(b,2)}, {s(p,2)}')
    A(f's_lshr_b32 {s(S_T0)}, {s(S_I)}, 1'); A(f's_lshl_b32 {s(S_T0)}, {s(S_T0)}, 14')
    A(f's_and_b32 {s(S_T1)}, {s(S_I)}, 1'); A(f's_lshl_b32 {s(S_T1)}, {s(S_T1)}, 12'); A(f's_add_u32 {s(S_T0)}, {s(S_T0)}, {s(S_T1)}')
    A(f's_add_u32 {s(S_T0)}, {s(S_T0)}, {PART7}'); add64s(A, B_PART, S_WS, S_T0)
    A(f's_mov_b32 {s(S_STEP)}, 0')
    L0 = A.newlabel('nf')
    A(f's_cmp_lg_u32 {s(S_W)}, 1'); A(f's_cbranch_scc1 {L0}')
    for k in range(4): fill_slots(A, k)
    for k in range(4):
        slot_ptr(A, S_T0, B_PART, k, STEP_PART); add64(A, S_T0, S_T0, 8192)
        A(f'global_store_dwordx4 {v(V_FPART)}, {v(V_ONES,4)}, {s(S_T0,2)} sc1')
    A('s_waitcnt vmcnt(0)')
    for k in range(4): fill_slots(A, k, mode='load')
    A.label(L0)
    if HOOK_PREBAR is not None: HOOK_PREBAR(A)
    A('s_memrealtime s[82:83]'); A('s_waitcnt lgkmcnt(0)'); A('s_mov_b32 s83, s82')
    chain_barrier(A, nbar, EXIT)
    A('s_memrealtime s[84:85]')
    part_base(A)
    cur_ptrs(A)
    L1, L2 = A.newlabel('nm0'), A.newlabel('npf')
    A(f's_cmp_lg_u32 {s(S_W)}, 0'); A(f's_cbranch_scc1 {L1}')
    publish_mem0(A)
    A.label(L1)
    A(f's_cmp_lg_u32 {s(S_W)}, 3'); A(f's_cbranch_scc1 {L2}')
    prefetch_kv(A)
    A.label(L2)
    A(f's_mov_b32 {s(S_STEP)}, 0')
    if timing:
        for k in range(20): A(f's_mov_b32 {s(S_ACC+k)}, 0')
    A(f's_memrealtime {s(S_TM0,2)}')
    A('s_memtime s[90:91]')
    A('s_waitcnt lgkmcnt(0)')
    A.label('C_step')
    step_body(A, EXIT, timing, **kw)
    advance_ptrs(A)
    A(f's_add_u32 {s(S_STEP)}, {s(S_STEP)}, 1')
    cur_ptrs(A)
    A(f's_cmp_lt_u32 {s(S_STEP)}, 64')
    A('s_cbranch_scc1 C_step')
    A(f's_memrealtime {s(S_TM1,2)}')
    A('s_memtime s[92:93]')
    A('s_waitcnt lgkmcnt(0)')

if __name__ == '__main__':
    import sys
    c1.chain_main = lambda A, EXIT, timing, nbar: chain_main(A, EXIT, timing, nbar, **KW)
    KW = {}
    for x in sys.argv[3:]:
        k, val = x.split('='); KW[k] = int(val)
    txt, n, nz = c1.gen_standalone(sys.argv[2] == 't')
    open(sys.argv[1], 'w').write(txt)
    print('instructions', n, 'nops', nz)
```

```python
from asmlib import *
from layout import *
from ln import ln_row

def ln_rows(A, srow, nrows, SX, SWS, flags=' sc1', st=30, rstride=1, after_first=None):
    R, X, T, PK, O = 8, 24, 40, 44, 2
    A('v_and_b32 v1, 63, v0')
    A('v_lshlrev_b32 v4, 4, v1')
    A(f's_lshl_b32 {s(st)}, {s(srow)}, 11')
    A(f'v_add_u32 {v(O)}, {s(st)}, v4')
    A('v_lshrrev_b32 v5, 2, v1'); A('v_lshlrev_b32 v5, 17, v5')
    A('v_and_b32 v6, 3, v1')
    RB = 64
    for r in range(nrows):
        A(f'global_load_dwordx4 {v(RB+8*r,4)}, {v(O)}, {s(SX,2)} offset:{(r%2)*2048}') if False else None
    for r in range(nrows):
        A(f'v_add_u32 {v(60+r)}, {2048*r*rstride}, {v(O)}')
    for r in range(nrows):
        A(f'global_load_dwordx4 {v(RB+8*r,4)}, {v(60+r)}, {s(SX,2)}')
        A(f'global_load_dwordx4 {v(RB+8*r+4,4)}, {v(60+r)}, {s(SX,2)} offset:1024')
    for r in range(nrows):
        R = RB + 8 * r
        A(f's_add_u32 {s(st)}, {s(srow)}, {r*rstride}')
        A(f's_bfe_u32 {s(st+1)}, {s(st)}, 0x20002'); A(f's_lshr_b32 {s(st+2)}, {s(st+1)}, 1')
        A(f's_xor_b32 {s(st+1)}, {s(st+1)}, {s(st+2)}'); A(f's_and_b32 {s(st+1)}, {s(st+1)}, 1'); A(f's_lshl_b32 {s(st+1)}, {s(st+1)}, 1')
        A(f's_add_u32 {s(st+1)}, {s(st+1)}, {s(st+2)}')
        A(f'v_xor_b32 v7, {s(st+1)}, v6'); A('v_lshl_add_u32 v7, v7, 4, v5')
        A(f's_lshl_b32 {s(st)}, {s(st)}, 6'); A(f's_add_u32 {s(st)}, {s(st)}, {XN}')
        A(f'v_add_u32 v7, {s(st)}, v7')
        younger = 2 * (nrows - 1 - r) + 4 * r
        if after_first is not None and r >= 1: younger = 4 * (r - 1) + (1 if False else 0)
        A(f's_waitcnt vmcnt({younger})')
        for d in range(8):
            A(f'v_lshlrev_b32 {v(X+2*d)}, 16, {v(R+d)}'); A(f'v_and_b32 {v(X+2*d+1)}, 0xffff0000, {v(R+d)}')
        PKr = PK + 16 * (r % 2) if False else PK
        ln_row(A, X, T, PK)
        A(f'global_store_dwordx4 v7, {v(PK,4)}, {s(SWS,2)}{flags}')
        A('v_add_u32 v7, 0x200000, v7')
        A(f'global_store_dwordx4 v7, {v(PK+4,4)}, {s(SWS,2)}{flags}')
        ln_row(A, X, T, PK + 8)
        A(f'v_add_u32 {v(O+1)}, {HT}, {v(60+r)}')
        A(f'global_store_dwordx4 {v(O+1)}, {v(PK+8,4)}, {s(SWS,2)}{flags}')
        A(f'global_store_dwordx4 {v(O+1)}, {v(PK+12,4)}, {s(SWS,2)} offset:1024{flags}')
        if r == 0 and after_first is not None: after_first(A)
```

```python
from sched2 import TY_K, TY_V, TY_Q, TY_M1, TY_M2, TY_KS, TY_VS, TY_AT, TY_OP, TY_OPP, NMED

TY_AT1 = 10
NFINE = 3
def simulate(dAT1=5.5, step=2.8, t0=11.0, cstart=25.0, dKS=10.0, dB=24.5, dM1=55.0, dM2=43.0, dAT=10.5, dOP=44.0, dOPP=10.0, kvlead=30.0, verbose=False):
    T = []
    add = lambda **k: T.append(dict(start=None, end=None, **k))
    for sb in range(4):
        for j in range(4): add(ty=TY_KS, tm=sb, j=j, d=dKS, blk=0); add(ty=TY_VS, tm=sb, j=j, d=dKS, blk=0)
    for b in range(1, 8):
        for j in range(4): add(ty=TY_K, tm=b, j=j, d=dB, blk=b); add(ty=TY_V, tm=b, j=j, d=dB, blk=b)
    for b in range(8):
        for j in range(4): add(ty=TY_Q, tm=b, j=j, d=dB, blk=b)
    for j in range(14): add(ty=TY_M1, tm=0, j=j, d=dM1)
    for j in range(16): add(ty=TY_M2, tm=j % 8, j=j // 8, d=dM2)
    for g in range(32 - NFINE): add(ty=TY_AT, tm=g, j=0, d=dAT)
    for g in range(32 - NFINE, 32):
        for p in range(4): add(ty=TY_AT1, tm=g, j=p, d=dAT1)
    for gg in range(NMED): add(ty=TY_OP, tm=gg, j=0, d=dOP)
    for g in range(2 * NMED, 32):
        for kq in range(4): add(ty=TY_OPP, tm=g, j=kq, d=dOPP)
    by = lambda pred: [t for t in T if pred(t)]
    KV = {b: by(lambda x: x['ty'] in (TY_K, TY_V, TY_KS, TY_VS) and x['blk'] == b) for b in range(8)}
    Q = {b: by(lambda x: x['ty'] == TY_Q and x['blk'] == b) for b in range(8)}
    M1, M2 = by(lambda x: x['ty'] == TY_M1), by(lambda x: x['ty'] == TY_M2)
    AT = {}
    for t in T:
        if t['ty'] in (TY_AT, TY_AT1): AT.setdefault(t['tm'], []).append(t)
    def done(l):
        e = [t['end'] for t in l]
        return None if any(x is None for x in e) else max(e)
    def chain():
        t, out = cstart, []
        for s_ in range(64):
            kv = done(KV[s_ // 8])
            if kv is None: return out + [None] * (64 - s_)
            t = max(t, kv + 1.0) + step; out.append(t)
        return out
    def ready(t, ct):
        ty = t['ty']
        if ty in (TY_K, TY_V, TY_KS, TY_VS, TY_Q, TY_M1): return t0
        if ty == TY_M2: return done(M1)
        if ty in (TY_AT, TY_AT1):
            s_ = min(63, 2 * t['tm'] + 3)
            c, q = ct[s_], done(Q[t['tm'] // 4])
            return None if c is None or q is None else max(c, q)
        if ty == TY_OP:
            e = done(AT[2 * t['tm']] + AT[2 * t['tm'] + 1] + M2); return e
        return done(AT[t['tm']] + (M2 if t['j'] == 3 else []))
    def prio(t):
        ty = t['ty']
        if ty in (TY_KS, TY_VS): return -100
        if ty in (TY_K, TY_V): return cstart + t['blk'] * 8 * step - dB - kvlead
        if ty == TY_M1: return cstart + 2 * 8 * step - dB - kvlead - 0.5
        if ty == TY_M2: return 1.0
        if ty == TY_OPP: return 2.0 + t['tm'] * 0.01
        if ty == TY_OP: return 3.0 + t['tm'] * 0.01
        if ty in (TY_AT, TY_AT1): return 4.0 + t['tm'] * 0.01
        return cstart + t['blk'] * 8 * step + 25.0
    free = [t0] * 32
    joined = False
    order, pend = [], list(T)
    while pend:
        ct = chain()
        if not joined and ct[63] is not None and min(free) >= ct[63]:
            free += [ct[63] + 1.0] * 32; joined = True
        w = min(range(len(free)), key=lambda i: free[i]); now = free[w]
        cand = [(t, ready(t, ct)) for t in pend]
        rdy = [t for t, r in cand if r is not None and r <= now + 1e-9]
        if rdy: t = min(rdy, key=prio); st = now
        else:
            known = [(r, prio(t), id(t), t) for t, r in cand if r is not None]
            later = [x for x in free if x > now + 1e-9]
            if not known: free[w] = min(later); continue
            r, _, _, t = min(known, key=lambda x: (x[0], x[1]))
            if later and r > min(later): free[w] = min(later); continue
            st = r
        t['start'], t['end'] = st, st + t['d']; free[w] = t['end']; pend.remove(t); order.append(t)
    ct = chain()
    if verbose:
        print('chain last step end %.1f ; all tasks end %.1f' % (ct[63], max(t['end'] for t in T)))
        for t in order: print(t['ty'], t['tm'], t['j'], '%.0f-%.0f' % (t['start'], t['end']))
    return [(t['ty'], t['tm'], t['j']) for t in order]
if __name__ == '__main__':
    o = simulate(verbose=True); print(len(o))
```

```python
import sys
from asmlib import *
from layout import *
import chain as c1, chain7 as c5, gemm3, ln2, att3, sched2, sched3
from gemm3 import *
from chain import kernel_head, kernel_footer
from sched2 import TY_K, TY_V, TY_Q, TY_M1, TY_M2, TY_KS, TY_VS, TY_AT, TY_OP, TY_OPP, NMED
TY_AT1 = 10

D_TICKET, D_CBAR, D_ERR, D_LNALL, D_M1, D_QA, D_LN, D_KV, D_QAT, D_QOP, D_Q, D_M2, D_CH, D_QM2 = 0, 8, 9, 33, 34, 12, 36, 24, 32, 38, 40, 48, 56, 60
CNT = 0xA800000
PBUF = 0xB000000
POLL = 400000
LDS_Q = 163824
LOG = 0xA000000

WS, PWQ, PWK, PWV, PW1, PB1, PW2, PB2, DBG = 40, 42, 44, 46, 48, 50, 52, 54, 56
S_Y, S_TASK, S_TY, S_TM, S_TN, S_BLK = 58, 59, 60, 61, 62, 63
T0, T1, T2, T3 = 64, 65, 66, 67
TAB, PWO, PX, POUT = 68, 70, 72, 74
S_WKR, S_TS = 76, 78
S_LIST, S_F0, S_F1, S_F2, S_F3, S_M0, S_M1 = 77, 80, 81, 82, 83, 84, 86

def wait_ge(A, EXIT, dword, target, index=None, shift=None, mask=None, sleep=32):
    L, D = A.newlabel('wc'), A.newlabel('wcd')
    A(f's_cmp_lg_u32 {s(G_WV)}, 0'); A(f's_cbranch_scc1 {D}')
    if index is not None:
        A(f's_lshl_b32 {s(T0)}, {s(index)}, 2'); A(f's_add_u32 {s(T0)}, {s(T0)}, {4*dword}'); A(f'v_mov_b32 {v(GV_T)}, {s(T0)}')
    else:
        A(f'v_mov_b32 {v(GV_T)}, {4*dword}')
    A(f's_mov_b32 {s(T1)}, 0')
    A('s_mov_b64 exec, 1')
    A.label(L)
    A(f'global_load_dword {v(GV_T+1)}, {v(GV_T)}, {s(DBG,2)} sc1')
    A('s_waitcnt vmcnt(0)')
    A(f'v_readfirstlane_b32 {s(T0)}, {v(GV_T+1)}')
    if shift is not None:
        A(f's_lshr_b32 {s(T0)}, {s(T0)}, {s(shift)}'); A(f's_and_b32 {s(T0)}, {s(T0)}, {mask}')
    A(f's_cmp_ge_u32 {s(T0)}, {target}'); A(f's_cbranch_scc1 {D}_x')
    A(f's_sleep {sleep}')
    A(f's_add_u32 {s(T1)}, {s(T1)}, 1'); A(f's_cmp_lt_u32 {s(T1)}, {POLL}'); A(f's_cbranch_scc1 {L}')
    A('s_mov_b64 exec, -1')
    A(f's_branch {EXIT}')
    A.label(D + '_x')
    A('s_mov_b64 exec, -1')
    A.label(D)
    A('s_barrier')

def wait_ws(A, EXIT, soff, target, sleep=24):
    L, D = A.newlabel('ww'), A.newlabel('wwd')
    A(f's_cmp_lg_u32 {s(G_WV)}, 0'); A(f's_cbranch_scc1 {D}')
    A(f's_add_u32 {s(T0)}, {s(soff)}, {CNT}'); A(f'v_mov_b32 {v(GV_T)}, {s(T0)}')
    A(f's_mov_b32 {s(T1)}, 0')
    A('s_mov_b64 exec, 1')
    A.label(L)
    A(f'global_load_dword {v(GV_T+1)}, {v(GV_T)}, {s(WS,2)} sc1')
    A('s_waitcnt vmcnt(0)')
    A(f'v_readfirstlane_b32 {s(T0)}, {v(GV_T+1)}')
    A(f's_cmp_ge_u32 {s(T0)}, {target}'); A(f's_cbranch_scc1 {D}_x')
    A(f's_sleep {sleep}')
    A(f's_add_u32 {s(T1)}, {s(T1)}, 1'); A(f's_cmp_lt_u32 {s(T1)}, {POLL}'); A(f's_cbranch_scc1 {L}')
    A('s_mov_b64 exec, -1')
    A(f's_branch {EXIT}')
    A.label(D + '_x')
    A('s_mov_b64 exec, -1')
    A.label(D)
    A('s_barrier')

def wait_ws8(A, EXIT, soff, sleep=24):
    L, D = A.newlabel('w8'), A.newlabel('w8d')
    A(f's_cmp_lg_u32 {s(G_WV)}, 0'); A(f's_cbranch_scc1 {D}')
    A(f's_add_u32 {s(T0)}, {s(soff)}, {CNT}')
    A(f'v_lshlrev_b32 {v(GV_T)}, 2, {v(GV_L)}'); A(f'v_add_u32 {v(GV_T)}, {s(T0)}, {v(GV_T)}')
    A(f's_mov_b32 {s(T1)}, 0')
    A('s_mov_b64 exec, 0xff')
    A.label(L)
    A(f'global_load_dword {v(GV_T+1)}, {v(GV_T)}, {s(WS,2)} sc1')
    A('s_waitcnt vmcnt(0)')
    A(f'v_cmp_gt_u32 vcc, 4, {v(GV_T+1)}')
    A(f's_cbranch_vccz {D}_x')
    A(f's_sleep {sleep}')
    A(f's_add_u32 {s(T1)}, {s(T1)}, 1'); A(f's_cmp_lt_u32 {s(T1)}, {POLL}'); A(f's_cbranch_scc1 {L}')
    A('s_mov_b64 exec, -1')
    A(f's_branch {EXIT}')
    A.label(D + '_x')
    A('s_mov_b64 exec, -1')
    A.label(D)
    A('s_barrier')

def signal_ws(A, soff, ret=False, inc=1):
    L = A.newlabel('sw')
    A('s_waitcnt vmcnt(0)')
    A('s_barrier')
    A(f'v_mov_b32 {v(GV_T+2)}, {LDS_Q}')
    A(f's_cmp_lg_u32 {s(G_WV)}, 0'); A(f's_cbranch_scc1 {L}')
    A(f's_add_u32 {s(T0)}, {s(soff)}, {CNT}'); A(f'v_mov_b32 {v(GV_T)}, {s(T0)}'); A(f'v_mov_b32 {v(GV_T+1)}, {inc}')
    A('s_mov_b64 exec, 1')
    if ret:
        A(f'global_atomic_add {v(GV_T+3)}, {v(GV_T)}, {v(GV_T+1)}, {s(WS,2)} sc0')
        A('s_waitcnt vmcnt(0)')
        A(f'ds_write_b32 {v(GV_T+2)}, {v(GV_T+3)}')
        A('s_waitcnt lgkmcnt(0)')
    else:
        A(f'global_atomic_add {v(GV_T)}, {v(GV_T+1)}, {s(WS,2)}')
    A('s_mov_b64 exec, -1')
    A.label(L)
    if ret:
        A('s_barrier')
        A(f'ds_read_b32 {v(GV_T+3)}, {v(GV_T+2)}')
        A('s_waitcnt lgkmcnt(0)')
        A(f'v_readfirstlane_b32 {s(T2)}, {v(GV_T+3)}')
        A('s_barrier')

def signal(A, dword, index=None, inc=1, second=None):
    L = A.newlabel('sg')
    A('s_waitcnt vmcnt(0)')
    A('s_barrier')
    A(f's_cmp_lg_u32 {s(G_WV)}, 0'); A(f's_cbranch_scc1 {L}')
    if index is not None:
        A(f's_lshl_b32 {s(T0)}, {s(index)}, 2'); A(f's_add_u32 {s(T0)}, {s(T0)}, {4*dword}'); A(f'v_mov_b32 {v(GV_T)}, {s(T0)}')
    else:
        A(f'v_mov_b32 {v(GV_T)}, {4*dword}')
    A(f'v_mov_b32 {v(GV_T+1)}, {inc}')
    A('s_mov_b64 exec, 1')
    A(f'global_atomic_add {v(GV_T)}, {v(GV_T+1)}, {s(DBG,2)}')
    if second is not None:
        A(f'v_mov_b32 {v(GV_T)}, {4*second}')
        A(f'global_atomic_add {v(GV_T)}, {v(GV_T+1)}, {s(DBG,2)}')
    A('s_mov_b64 exec, -1')
    A.label(L)

def next_task(A):
    L = A.newlabel('nt')
    A(f'v_mov_b32 {v(GV_T+2)}, {LDS_Q}')
    A(f's_cmp_lg_u32 {s(G_WV)}, 0'); A(f's_cbranch_scc1 {L}')
    A(f's_lshl_b32 {s(T0)}, {s(S_Y)}, 2'); A(f's_add_u32 {s(T0)}, {s(T0)}, {4*D_QA}')
    A(f'v_mov_b32 {v(GV_T)}, {s(T0)}'); A(f'v_mov_b32 {v(GV_T+1)}, 1')
    A('s_mov_b64 exec, 1')
    A(f'global_atomic_add {v(GV_T+3)}, {v(GV_T)}, {v(GV_T+1)}, {s(DBG,2)} sc0')
    A('s_waitcnt vmcnt(0)')
    A(f'ds_write_b32 {v(GV_T+2)}, {v(GV_T+3)}')
    A('s_waitcnt lgkmcnt(0)')
    A('s_mov_b64 exec, -1')
    A.label(L)
    A('s_barrier')
    A(f'ds_read_b32 {v(GV_T+3)}, {v(GV_T+2)}')
    A('s_waitcnt lgkmcnt(0)')
    A(f'v_readfirstlane_b32 {s(S_TASK)}, {v(GV_T+3)}')
    A('s_barrier')

def run_tile(A, cfg, orient, xmode):
    setup_dma(A, cfg, xmode)
    prologue_dma(A, cfg, xmode)
    setup_reads(A, cfg, xmode)
    mainloop(A, cfg, orient, xmode)

def log_task(A, slot):
    L = A.newlabel('lg')
    A(f's_memrealtime {s(S_TS,2)}'); A('s_waitcnt lgkmcnt(0)')
    A(f's_cmp_lg_u32 {s(G_WV)}, 0'); A(f's_cbranch_scc1 {L}')
    A(f's_lshl_b32 {s(T0)}, {s(S_Y)}, 9'); A(f's_add_u32 {s(T0)}, {s(T0)}, {s(S_TASK)}'); A(f's_lshl_b32 {s(T0)}, {s(T0)}, 4')
    A(f's_add_u32 {s(T0)}, {s(T0)}, {LOG + 4*slot}')
    A(f'v_mov_b32 {v(GV_T)}, {s(T0)}'); A(f'v_mov_b32 {v(GV_T+1)}, {s(S_TS)}')
    A('s_mov_b64 exec, 1'); A(f'global_store_dword {v(GV_T)}, {v(GV_T+1)}, {s(WS,2)}'); A('s_mov_b64 exec, -1')
    A.label(L)

def qkv_task(A, EXIT, cfg, isv, LOOP, log):
    sh = {256: 0, 64: 2}[cfg.BM]
    A(f's_lshr_b32 {s(S_BLK)}, {s(S_TM)}, {sh}')
    LB2, LB3 = A.newlabel('lb'), A.newlabel('lbd')
    A(f's_cmp_ge_u32 {s(S_BLK)}, 2'); A(f's_cbranch_scc1 {LB2}')
    wait_ge(A, EXIT, D_LN, 64, S_BLK, sleep=20)
    A(f's_branch {LB3}')
    A.label(LB2)
    wait_ge(A, EXIT, D_LNALL, 128)
    A.label(LB3)
    if log: log_task(A, 1)
    kt, vt = (TY_K, TY_V) if cfg.BM == 256 else (TY_KS, TY_VS)
    if isv:
        A(f's_mov_b32 {s(T2)}, {s(PWV)}'); A(f's_mov_b32 {s(T3)}, {s(PWV+1)}')
    else:
        A(f's_cmp_eq_u32 {s(S_TY)}, {kt}'); A(f's_cselect_b32 {s(T2)}, {s(PWK)}, {s(PWQ)}'); A(f's_cselect_b32 {s(T3)}, {s(PWK+1)}, {s(PWQ+1)}')
    A(f's_lshl_b32 {s(T0)}, {s(S_TN)}, 9'); add64r(A, G_W, T2, T0)
    A(f's_mul_i32 {s(T0)}, {s(S_TM)}, {cfg.BM*64}'); A(f's_add_u32 {s(T0)}, {s(T0)}, {XN}'); add64r(A, G_X, WS, T0)
    A(f's_mov_b32 {s(G_DX)}, 131072'); A(f's_mov_b32 {s(G_LDW)}, 8192'); A(f's_mov_b32 {s(G_DW)}, {8192*32}'); A(f's_mov_b32 {s(G_NST)}, 32')
    A(f's_mul_i32 {s(T0)}, {s(S_TM)}, {cfg.BM//32*262144}'); A(f's_lshl_b32 {s(T1)}, {s(S_TN)}, 14'); A(f's_add_u32 {s(T0)}, {s(T0)}, {s(T1)}')
    if isv: A(f's_add_u32 {s(T0)}, {s(T0)}, {VT}')
    else:
        A(f's_mov_b32 {s(T1)}, {QB}')
        A(f's_cmp_eq_u32 {s(S_TY)}, {kt}'); A(f's_cselect_b32 {s(T1)}, {KB}, {s(T1)}')
        A(f's_add_u32 {s(T0)}, {s(T0)}, {s(T1)}')
    add64r(A, G_OUT, WS, T0)
    run_tile(A, cfg, 'M' if isv else 'N', 'blk')
    (epi_v if isv else epi_qk)(A, cfg)
    inc = 4 if cfg.BM == 256 else 1
    if isv or cfg.BM != 256:
        signal(A, D_KV, S_BLK, inc)
    else:
        LQ = A.newlabel('isq')
        A(f's_cmp_eq_u32 {s(S_TY)}, {TY_Q}'); A(f's_cbranch_scc1 {LQ}')
        signal(A, D_KV, S_BLK, inc)
        A(f's_branch {LOOP}')
        A.label(LQ)
        signal(A, D_Q, S_BLK, 1)
    A(f's_branch {LOOP}')

def worker(A, EXIT, tasks, log):
    NT = len(tasks)
    wave_id(A)
    A('s_cmp_eq_u32 s99, 1'); A('s_cbranch_scc1 W_first')
    A(f's_lshl_b32 {s(S_WKR)}, {s(S_Y)}, 5'); A(f's_add_u32 {s(S_WKR)}, {s(S_WKR)}, {s(c1.S_I)}')
    A(f's_lshr_b32 {s(S_TM)}, {s(S_WKR)}, 6')
    A(f's_lshl_b32 {s(T0)}, {s(S_WKR)}, 2'); A(f's_add_u32 {s(T2)}, {s(T0)}, {s(G_WV)}')
    A(f's_load_dwordx2 s[4:5], s[0:1], {KA["x"]}'); A('s_waitcnt lgkmcnt(0)')
    ln2.ln_rows(A, T2, 1, 4, WS, st=32)
    if log: A('s_memrealtime s[82:83]')
    signal(A, D_LN, S_TM)
    A(f's_mov_b32 s98, 1')
    if log:
        A('s_memrealtime s[84:85]'); A('s_waitcnt lgkmcnt(0)')
        A(f's_lshl_b32 {s(T0)}, {s(S_WKR)}, 5'); A(f's_add_u32 {s(T0)}, {s(T0)}, {LOG + 0x20000 + 128*32}')
        A(f'v_mov_b32 {v(GV_T)}, {s(T0)}'); A('s_mov_b64 exec, 1')
        for k, r in enumerate((88, 80, 82, 84)):
            A(f'v_mov_b32 {v(GV_T+1)}, {s(r)}'); A(f'global_store_dword {v(GV_T)}, {v(GV_T+1)}, {s(WS,2)} offset:{4*k}')
        A('s_mov_b64 exec, -1')
    LOOP = 'W_loop'
    wave_id(A)
    A(f's_mov_b32 {s(S_TASK)}, {s(c1.S_I)}')
    A('s_branch W_have')
    A.label(LOOP)
    if log: log_task(A, 3)
    A('s_cmp_lg_u32 s98, 1'); A('s_cbranch_scc1 W_first')
    A('s_mov_b32 s98, 0')
    wave_id(A)
    A(f's_lshl_b32 {s(T0)}, {s(S_WKR)}, 2'); A(f's_add_u32 {s(T2)}, {s(T0)}, {s(G_WV)}'); A(f's_add_u32 {s(T2)}, {s(T2)}, 512')
    A(f's_mov_b64 s[4:5], {s(PX,2)}')
    ln2.ln_rows(A, T2, 3, 4, WS, st=32, rstride=512)
    signal(A, D_LNALL)
    A.label('W_first')
    wave_id(A)
    next_task(A)
    A(f's_add_u32 {s(S_TASK)}, {s(S_TASK)}, 32')
    A.label('W_have')
    A(f's_cmp_ge_u32 {s(S_TASK)}, {NT}'); A('s_cbranch_scc1 M_end')
    if log: log_task(A, 0)
    A(f's_lshl_b32 {s(T0)}, {s(S_TASK)}, 2')
    A(f's_load_dword {s(T1)}, {s(TAB,2)}, {s(T0)}'); A('s_waitcnt lgkmcnt(0)')
    A(f's_and_b32 {s(S_TY)}, {s(T1)}, 0xff'); A(f's_bfe_u32 {s(S_TM)}, {s(T1)}, 0x80008'); A(f's_bfe_u32 {s(S_TN)}, {s(T1)}, 0x80010')
    for ty, lab in ((TY_M1, 'W_m1'), (TY_M2, 'W_m2'), (TY_AT, 'W_at'), (TY_OP, 'W_op'), (TY_OPP, 'W_opp'), (TY_AT1, 'W_at1')):
        A(f's_cmp_eq_u32 {s(S_TY)}, {ty}'); A(f's_cbranch_scc1 {lab}')
    A(f's_lshl_b32 {s(S_TN)}, {s(S_TN)}, 2'); A(f's_add_u32 {s(S_TN)}, {s(S_TN)}, {s(S_Y)}')
    for ty, lab in ((TY_V, 'W_v'), (TY_KS, 'W_ks'), (TY_VS, 'W_vs')):
        A(f's_cmp_eq_u32 {s(S_TY)}, {ty}'); A(f's_cbranch_scc1 {lab}')
    qkv_task(A, EXIT, BIG, False, LOOP, log)
    A.label('W_v'); qkv_task(A, EXIT, BIG, True, LOOP, log)
    A.label('W_ks'); qkv_task(A, EXIT, SMALL, False, LOOP, log)
    A.label('W_vs'); qkv_task(A, EXIT, SMALL, True, LOOP, log)
    A.label('W_m1')
    A(f's_mul_i32 {s(T0)}, {s(S_Y)}, 14'); A(f's_add_u32 {s(T0)}, {s(T0)}, {s(S_TN)}')
    A(f's_and_b32 {s(S_TM)}, {s(T0)}, 3'); A(f's_lshr_b32 {s(S_TN)}, {s(T0)}, 2')
    wait_ge(A, EXIT, D_LNALL, 128)
    if log: log_task(A, 1)
    A(f's_lshl_b32 {s(T0)}, {s(S_TM)}, 9'); A(f's_add_u32 {s(T0)}, {s(T0)}, {HT}'); add64r(A, G_X, WS, T0)
    A(f's_lshl_b32 {s(T0)}, {s(S_TN)}, 9'); add64r(A, G_W, PW1, T0); add64r(A, G_P2, PB1, T0)
    A(f's_mov_b32 {s(G_LDX)}, 2048'); A(f's_mov_b32 {s(G_DX)}, {2048*32}'); A(f's_mov_b32 {s(G_LDW)}, 7168'); A(f's_mov_b32 {s(G_DW)}, {7168*32}'); A(f's_mov_b32 {s(G_NST)}, 64')
    A(f's_lshl_b32 {s(T0)}, {s(S_TN)}, 19'); A(f's_lshl_b32 {s(T1)}, {s(S_TM)}, 14'); A(f's_add_u32 {s(T0)}, {s(T0)}, {s(T1)}'); A(f's_add_u32 {s(T0)}, {s(T0)}, {UB}')
    add64r(A, G_OUT, WS, T0)
    run_tile(A, BIG, 'N', 'tr'); epi_mlp1(A, BIG)
    signal(A, D_M1, None, 1)
    A(f's_branch {LOOP}')
    A.label('W_m2')
    A(f's_lshl_b32 {s(T0)}, {s(S_Y)}, 1'); A(f's_add_u32 {s(S_TN)}, {s(S_TN)}, {s(T0)}')
    wait_ge(A, EXIT, D_M1, 56)
    if log: log_task(A, 1)
    A(f's_lshl_b32 {s(T0)}, {s(S_TM)}, 13'); A(f's_add_u32 {s(T0)}, {s(T0)}, {UB}'); add64r(A, G_X, WS, T0)
    A(f's_lshl_b32 {s(T0)}, {s(S_TN)}, 9'); add64r(A, G_W, PW2, T0); add64r(A, G_P2, PB2, T0)
    A(f's_mov_b32 {s(G_DX)}, 65536'); A(f's_mov_b32 {s(G_LDW)}, 4096'); A(f's_mov_b32 {s(G_DW)}, {4096*32}'); A(f's_mov_b32 {s(G_NST)}, 112')
    A(f's_lshl_b32 {s(T0)}, {s(S_TN)}, 19'); A(f's_lshl_b32 {s(T1)}, {s(S_TM)}, 8'); A(f's_add_u32 {s(T0)}, {s(T0)}, {s(T1)}'); A(f's_add_u32 {s(T0)}, {s(T0)}, {GB}')
    add64r(A, G_OUT, WS, T0)
    run_tile(A, MED, 'M', 'blk'); epi_mlp2(A, MED)
    signal(A, D_M2, S_TN, 1)
    A(f's_branch {LOOP}')
    A.label('W_at')
    A(f's_lshr_b32 {s(S_BLK)}, {s(S_TM)}, 2')
    wait_ge(A, EXIT, D_Q, 16, S_BLK)
    A(f's_lshl_b32 {s(T2)}, {s(S_TM)}, 6'); A(f's_add_u32 {s(T2)}, {s(T2)}, 64')
    wait_ge(A, EXIT, D_CH, s(T2), S_Y, sleep=24)
    if log: log_task(A, 1)
    A(f's_lshl_b32 s30, {s(S_TM)}, 1'); A(f's_lshl_b32 s31, {s(S_Y)}, 3'); A(f's_lshl_b32 {s(T0)}, {s(G_WV)}, 1'); A(f's_add_u32 s31, s31, {s(T0)}')
    att3.att_task(A, 30, 31, WS, [(0, 0), (0, 1), (1, 0), (1, 1)], 28, 29)
    A(f's_lshl_b32 {s(T2)}, {s(S_TM)}, 4'); A(f's_lshl_b32 {s(T3)}, {s(S_Y)}, 2'); A(f's_add_u32 {s(T2)}, {s(T2)}, {s(T3)}')
    signal_ws(A, T2, inc=4)
    A(f's_branch {LOOP}')
    A.label('W_at1')
    A(f's_lshr_b32 {s(S_BLK)}, {s(S_TM)}, 2')
    wait_ge(A, EXIT, D_Q, 16, S_BLK)
    A(f's_lshl_b32 {s(T2)}, {s(S_TM)}, 6'); A(f's_add_u32 {s(T2)}, {s(T2)}, 64')
    wait_ge(A, EXIT, D_CH, s(T2), S_Y, sleep=8)
    if log: log_task(A, 1)
    A(f's_lshl_b32 s30, {s(S_TM)}, 1'); A(f's_lshr_b32 {s(T0)}, {s(S_TN)}, 1'); A(f's_add_u32 s30, s30, {s(T0)}')
    A(f's_lshl_b32 s31, {s(S_Y)}, 3'); A(f's_and_b32 {s(T0)}, {s(S_TN)}, 1'); A(f's_lshl_b32 {s(T0)}, {s(T0)}, 2'); A(f's_add_u32 s31, s31, {s(T0)}')
    A(f's_add_u32 s31, s31, {s(G_WV)}')
    att3.att_task(A, 30, 31, WS, [(0, 0)], 28, 29)
    A(f's_lshl_b32 {s(T2)}, {s(S_TM)}, 4'); A(f's_lshl_b32 {s(T3)}, {s(S_Y)}, 2'); A(f's_add_u32 {s(T2)}, {s(T2)}, {s(T3)}')
    signal_ws(A, T2, inc=1)
    A(f's_branch {LOOP}')
    A.label('W_op')
    A(f's_lshr_b32 {s(S_BLK)}, {s(S_TM)}, 1')
    wait_ge(A, EXIT, D_M2, 8, S_BLK)
    A(f's_lshl_b32 {s(T2)}, {s(S_TM)}, 5')
    wait_ws8(A, EXIT, T2)
    if log: log_task(A, 1)
    A(f's_lshl_b32 {s(T0)}, {s(S_TM)}, 13'); A(f's_add_u32 {s(T0)}, {s(T0)}, {OB}'); add64r(A, G_X, WS, T0)
    A(f's_lshl_b32 {s(T0)}, {s(S_Y)}, 9'); add64r(A, G_W, PWO, T0)
    A(f's_mov_b32 {s(G_DX)}, 131072'); A(f's_mov_b32 {s(G_LDW)}, 2048'); A(f's_mov_b32 {s(G_DW)}, {2048*32}'); A(f's_mov_b32 {s(G_NST)}, 128')
    run_tile(A, MED, 'N', 'blk')
    A(f's_lshl_b32 {s(T0)}, {s(S_TM)}, 18'); A(f's_lshl_b32 {s(T1)}, {s(S_Y)}, 9'); A(f's_add_u32 {s(T0)}, {s(T0)}, {s(T1)}')
    add64r(A, G_OUT, POUT, T0); add64r(A, G_P3, PX, T0)
    A(f's_add_u32 {s(T0)}, {s(T0)}, {GB}'); add64r(A, G_P2, WS, T0)
    epi_final(A, MED, gflags=' sc1')
    A('s_waitcnt vmcnt(0)'); A('s_barrier')
    A(f's_branch {LOOP}')
    A.label('W_opp')
    A(f's_lshl_b32 {s(T2)}, {s(S_TM)}, 4'); A(f's_lshl_b32 {s(T3)}, {s(S_TN)}, 2'); A(f's_add_u32 {s(T2)}, {s(T2)}, {s(T3)}')
    wait_ws(A, EXIT, T2, 4, sleep=8)
    if log: log_task(A, 1)
    A(f's_lshl_b32 {s(T0)}, {s(S_TM)}, 12'); A(f's_lshl_b32 {s(T1)}, {s(S_TN)}, 22'); A(f's_add_u32 {s(T0)}, {s(T0)}, {s(T1)}')
    A(f's_add_u32 {s(T0)}, {s(T0)}, {OB}'); add64r(A, G_X, WS, T0)
    A(f's_lshl_b32 {s(T0)}, {s(S_Y)}, 9'); A(f's_lshl_b32 {s(T1)}, {s(S_TN)}, 21'); A(f's_add_u32 {s(T0)}, {s(T0)}, {s(T1)}'); add64r(A, G_W, PWO, T0)
    A(f's_mov_b32 {s(G_DX)}, 131072'); A(f's_mov_b32 {s(G_LDW)}, 2048'); A(f's_mov_b32 {s(G_DW)}, {2048*32}'); A(f's_mov_b32 {s(G_NST)}, 32')
    run_tile(A, SMALL, 'N', 'blk')
    A(f's_sub_u32 {s(T0)}, {s(S_TM)}, {2*NMED}'); A(f's_lshl_b32 {s(T0)}, {s(T0)}, 2'); A(f's_add_u32 {s(T0)}, {s(T0)}, {s(S_Y)}')
    A(f's_lshl_b32 {s(T0)}, {s(T0)}, 18'); A(f's_add_u32 {s(T0)}, {s(T0)}, {PBUF}'); add64r(A, G_P2, WS, T0)
    A(f's_lshl_b32 {s(T0)}, {s(G_WV)}, 14'); A(f'v_lshlrev_b32 {v(E_LO)}, 4, {v(GV_L)}'); A(f'v_add_u32 {v(E_LO)}, {s(T0)}, {v(E_LO)}')
    A(f's_lshl_b32 {s(T0)}, {s(S_TN)}, 16'); A(f'v_add_u32 {v(E_HI)}, {s(T0)}, {v(E_LO)}')
    for t in range(16):
        if t and t % 4 == 0: A(f'v_add_u32 {v(E_HI)}, 4096, {v(E_HI)}')
        A(f'global_store_dwordx4 {v(E_HI)}, {a(4*t,4)}, {s(G_P2,2)} offset:{1024*(t%4)} sc1')
    A(f's_lshl_b32 {s(T3)}, {s(S_TM)}, 4'); A(f's_lshl_b32 {s(T2)}, {s(S_Y)}, 2'); A(f's_add_u32 {s(T3)}, {s(T3)}, {s(T2)}'); A(f's_add_u32 {s(T3)}, {s(T3)}, 512')
    signal_ws(A, T3, ret=True)
    A(f's_cmp_lg_u32 {s(T2)}, 3'); A(f's_cbranch_scc1 {LOOP}')
    A(f's_lshr_b32 {s(S_BLK)}, {s(S_TM)}, 2')
    wait_ge(A, EXIT, D_M2, 8, S_BLK)
    for half in range(2):
        for t in range(8 * half, 8 * half + 8):
            for k in range(4):
                r = GV_F + 16 * (t % 8) + 4 * k
                A(f'v_add_u32 {v(E_HI)}, {k*65536 + (t//4)*4096}, {v(E_LO)}')
                A(f'global_load_dwordx4 {v(r,4)}, {v(E_HI)}, {s(G_P2,2)} offset:{1024*(t%4)} sc1')
        A('s_waitcnt vmcnt(0)')
        for t in range(8 * half, 8 * half + 8):
            r = GV_F + 16 * (t % 8)
            for i in (0, 2):
                A(f'v_pk_add_f32 {v(r+i,2)}, {v(r+i,2)}, {v(r+4+i,2)}'); A(f'v_pk_add_f32 {v(r+8+i,2)}, {v(r+8+i,2)}, {v(r+12+i,2)}')
            for i in (0, 2): A(f'v_pk_add_f32 {v(r+i,2)}, {v(r+i,2)}, {v(r+8+i,2)}')
            for i in range(4): A(f'v_accvgpr_write_b32 {a(4*t+i)}, {v(r+i)}')
    A(f's_lshl_b32 {s(T0)}, {s(S_TM)}, 17'); A(f's_lshl_b32 {s(T1)}, {s(S_Y)}, 9'); A(f's_add_u32 {s(T0)}, {s(T0)}, {s(T1)}')
    add64r(A, G_OUT, POUT, T0); add64r(A, G_P3, PX, T0)
    A(f's_add_u32 {s(T0)}, {s(T0)}, {GB}'); add64r(A, G_P2, WS, T0)
    epi_final(A, SMALL, gflags=' sc1')
    A('s_waitcnt vmcnt(0)'); A('s_barrier')
    A(f's_branch {LOOP}')

def kv_wait_block(A, sseg, EXIT):
    S = c1
    P, D = A.newlabel('kvp'), A.newlabel('kvd')
    T = c5.V_T
    A(f's_lshr_b32 {s(S.S_T3)}, {s(sseg)}, 3'); A(f's_lshl_b32 {s(S.S_T3)}, {s(S.S_T3)}, 2'); A(f's_add_u32 {s(S.S_T3)}, {s(S.S_T3)}, {4*D_KV}')
    A(f'v_mov_b32 {v(T)}, {s(S.S_T3)}')
    A(f's_mov_b32 {s(S.S_RETRY)}, 0')
    A.label(P)
    A(f'global_load_dword {v(T+1)}, {v(T)}, {s(S.S_DBG,2)} sc1')
    A('s_waitcnt vmcnt(0)')
    A(f'v_readfirstlane_b32 {s(S.S_T3)}, {v(T+1)}')
    A(f's_cmp_ge_u32 {s(S.S_T3)}, 128'); A(f's_cbranch_scc1 {D}')
    A('s_sleep 32')
    A(f's_add_u32 {s(S.S_RETRY)}, {s(S.S_RETRY)}, 1'); A(f's_cmp_lt_u32 {s(S.S_RETRY)}, {POLL}'); A(f's_cbranch_scc1 {P}')
    A(f's_branch {EXIT}')
    A.label(D)

def kv_wait_hook(A, EXIT):
    S = c1
    L = A.newlabel('kvw')
    A(f's_add_u32 {s(S.S_T2)}, {s(S.S_STEP)}, 1'); A(f's_and_b32 {s(S.S_T3)}, {s(S.S_T2)}, 7')
    A(f's_cmp_lg_u32 {s(S.S_T3)}, 0'); A(f's_cbranch_scc1 {L}')
    kv_wait_block(A, S.S_T2, EXIT)
    A.label(L)

def chain_signal(A, inc):
    T = c5.V_T
    A(f's_lshl_b32 {s(c1.S_T2)}, {s(c1.S_X)}, 2'); A(f's_add_u32 {s(c1.S_T2)}, {s(c1.S_T2)}, {4*D_CH}')
    A(f'v_mov_b32 {v(T)}, {s(c1.S_T2)}'); A(f'v_mov_b32 {v(T+1)}, {inc}')
    A('s_mov_b64 exec, 1')
    A(f'global_atomic_add {v(T)}, {v(T+1)}, {s(c1.S_DBG,2)}')
    A('s_mov_b64 exec, -1')

CH_KW = dict(sleep_a=1, sleep_c=1, gap=8, sd=4, rd=1)
def k_mega(log=False, chain_mod=None, **skw):
    ch = chain_mod or c5
    A = Asm('M_')
    EXIT = 'M_exit'
    tasks = sched3.simulate(step=2.55, **skw)
    A('s_cmp_ge_u32 s2, 256'); A('s_cbranch_scc1 M_end')
    A('s_getpc_b64 s[90:91]')
    A.label('M_pc0')
    A('s_lshr_b32 s92, s2, 3'); A('s_and_b32 s92, s92, 31'); A('s_min_u32 s92, s92, (M_tab-M_pc0)/4096-1'); A('s_lshl_b32 s92, s92, 12')
    A('v_lshlrev_b32 v2, 4, v0'); A('v_add_u32 v2, s92, v2')
    A('global_load_dwordx4 v[200:203], v2, s[90:91]')
    for r, k in ((c1.S_WQ, 'Wq'), (c1.S_WK, 'Wk'), (c1.S_WV, 'Wv'), (c1.S_WO, 'Wo'), (c1.S_MEM0, 'mem0'), (c1.S_DBG, 'dbg'), (c1.S_WS, 'ws')):
        A(f's_load_dwordx2 {s(r,2)}, s[0:1], {KA[k]}')
    A('s_memrealtime s[88:89]')
    A('s_waitcnt lgkmcnt(0)')
    c1.ticket(A)
    if log: A('s_memrealtime s[80:81]')
    A(f's_cmp_ge_u32 {s(c1.S_I)}, 32'); A(f's_cbranch_scc1 {EXIT}')
    A(f's_cmp_ge_u32 {s(c1.S_X)}, 4'); A('s_cbranch_scc1 M_worker')
    orig_pf = ch.prefetch_kv
    first = [True]
    def pf(A_):
        if first[0]:
            first[0] = False
            A_(f's_mov_b32 {s(c1.S_T2)}, 0'); kv_wait_block(A_, c1.S_T2, EXIT)
        else:
            kv_wait_hook(A_, EXIT)
        orig_pf(A_)
    ch.prefetch_kv = pf
    ch.HOOK_W2 = lambda A_: hook_w2(A_)
    def hook_w2(A_):
        L = A_.newlabel('ns')
        A_(f's_cmp_lt_u32 {s(c1.S_STEP)}, 2'); A_(f's_cbranch_scc1 {L}')
        A_(f's_cmp_lg_u32 {s(c1.S_I)}, 0'); A_(f's_cbranch_scc1 {L}')
        chain_signal(A_, 32)
        A_.label(L)
    ch.WLOG = log
    def pre_bar(A_):
        L = A_.newlabel('zc')
        A_(f's_or_b32 {s(c1.S_T0)}, {s(c1.S_X)}, {s(c1.S_I)}'); A_(f's_cmp_lg_u32 {s(c1.S_T0)}, 0'); A_(f's_cbranch_scc1 {L}')
        A_(f's_cmp_lg_u32 {s(c1.S_W)}, 2'); A_(f's_cbranch_scc1 {L}')
        for k in range(4): A_(f'v_mov_b32 {v(ch.V_R+k)}, 0')
        A_(f'v_add_u32 {v(ch.V_R+4)}, {CNT}, {v(ch.V_L16)}')
        A_(f'global_store_dwordx4 {v(ch.V_R+4)}, {v(ch.V_R,4)}, {s(c1.S_WS,2)} sc1')
        A_.label(L)
    ch.HOOK_PREBAR = pre_bar
    ch.chain_main(A, EXIT, False, 128, **CH_KW)
    ch.prefetch_kv = orig_pf
    A('s_waitcnt vmcnt(0)'); A('s_barrier')
    LS = A.newlabel('ls')
    A(f's_cmp_lg_u32 {s(c1.S_W)}, 2'); A(f's_cbranch_scc1 {LS}')
    chain_signal(A, 2)
    A.label(LS)
    if log:
        A(f's_lshl_b32 {s(c1.S_T0)}, {s(c1.S_X)}, 5'); A(f's_add_u32 {s(c1.S_T0)}, {s(c1.S_T0)}, {s(c1.S_I)}'); A(f's_lshl_b32 {s(c1.S_T0)}, {s(c1.S_T0)}, 5')
        A(f's_add_u32 {s(c1.S_T0)}, {s(c1.S_T0)}, {LOG + 0x20000}')
        A(f'v_mov_b32 v2, {s(c1.S_T0)}'); A('s_mov_b64 exec, 1')
        A('s_getreg_b32 s81, hwreg(HW_REG_HW_ID)')
        for k, r in enumerate((88, 80, 86, 83, 84, c1.S_TM0, c1.S_TM1, 81)):
            A(f'v_mov_b32 v3, {s(r)}'); A(f'global_store_dword v2, v3, {s(c1.S_WS,2)} offset:{4*k}')
        A('v_add_u32 v2, 0x4000, v2')
        for k, r in enumerate((72, 74, 76, 78)):
            A(f'v_mov_b32 v3, {s(r)}'); A(f'global_store_dword v2, v3, {s(c1.S_WS,2)} offset:{4*k}')
        A('s_mov_b64 exec, -1')
        A(f's_or_b32 {s(c1.S_T0)}, {s(c1.S_X)}, {s(c1.S_I)}'); A(f's_or_b32 {s(c1.S_T0)}, {s(c1.S_T0)}, {s(c1.S_W)}')
        A(f's_cmp_lg_u32 {s(c1.S_T0)}, 0'); A('s_cbranch_scc1 M_join')
        A(f'v_mov_b32 v2, {LOG + 0x10000}'); A('s_mov_b64 exec, 1')
        for k, r in enumerate((88, c1.S_TM0, c1.S_TM1, 86, 84)):
            A(f'v_mov_b32 v3, {s(r)}'); A(f'global_store_dword v2, v3, {s(c1.S_WS,2)} offset:{4*k}')
        A('s_mov_b64 exec, -1')
    A.label('M_join')
    A(f's_add_u32 {s(c1.S_X)}, {s(c1.S_X)}, 4')
    A(f's_mov_b32 s99, 1'); A('s_mov_b32 s98, 0')
    A('s_branch M_worker2')
    A.label('M_worker')
    A('s_mov_b32 s99, 0')
    A.label('M_worker2')
    for r, k in ((WS, 'ws'), (PWQ, 'Wq'), (PWK, 'Wk'), (PWV, 'Wv'), (PW1, 'w1'), (PB1, 'b1'), (PW2, 'w2'), (PB2, 'b2'), (DBG, 'dbg'),
                 (PWO, 'Wo'), (PX, 'x'), (POUT, 'out')):
        A(f's_load_dwordx2 {s(r,2)}, s[0:1], {KA[k]}')
    A('s_waitcnt lgkmcnt(0)')
    A(f's_sub_u32 {s(S_Y)}, {s(c1.S_X)}, 4')
    A(f's_mov_b32 {s(S_TASK)}, 500')
    A(f's_getpc_b64 {s(TAB,2)}')
    A.label('M_pc')
    A(f's_add_u32 {s(TAB)}, {s(TAB)}, M_tab-M_pc'); A(f's_addc_u32 {s(TAB+1)}, {s(TAB+1)}, 0')
    worker(A, EXIT, tasks, log)
    A.label(EXIT)
    A(f's_load_dwordx2 s[4:5], s[0:1], {KA["dbg"]}'); A('s_waitcnt lgkmcnt(0)')
    A(f'v_mov_b32 v2, {4*D_ERR}'); A('v_mov_b32 v3, 1'); A('s_mov_b64 exec, 1')
    A('global_atomic_add v2, v3, s[4:5]')
    A.label('M_end'); A('s_endpgm')
    A.fix_hazards()
    tab = '.p2align 2\nM_tab:\n' + ''.join(f'.long {t | (m << 8) | (j << 16)}\n' for t, m, j in tasks)
    K = NAME + '_kernel'
    txt = HEADER + '; @launch grid=(256,1,1) block=(256,1,1) lds=163840\n.amdgcn_target "amdgcn-amd-amdhsa--gfx950"\n'
    body = A.text()
    body = '\n'.join(l.strip() if not l.startswith('.') else l for l in body.split('\n'))
    return txt + kernel_head(K) + body + tab + kernel_footer(K, 512, 102, 256), tasks

if __name__ == '__main__':
    log = len(sys.argv) > 2 and sys.argv[2] == 'log'
    txt, tasks = k_mega(log)
    open(sys.argv[1], 'w').write(txt)
    import json; json.dump(tasks, open(sys.argv[1].replace('.s', '.tasks.json'), 'w'))
    print('bytes', len(txt), 'tasks', len(tasks))
```
